```python
import torch

def _softmax(x, axis=-1):
    return torch.softmax(x, dim=axis)
def _gelu(x):
    return torch.nn.functional.gelu(x, approximate="tanh")
def _silu(x):
    return torch.nn.functional.silu(x)
def _sigmoid(x):
    return torch.sigmoid(x)
def _layernorm(x, axis=-1, eps=1e-5):
    m = x.mean(dim=axis, keepdim=True)
    v = x.var(dim=axis, keepdim=True, unbiased=False)
    return (x - m) / torch.sqrt(v + eps)
def _scatter_add(tgt, idx, src, axis=0):
    return tgt.clone().index_add_(axis, idx, src)
def _segment_sum(src, seg, n):
    out = torch.zeros((n,) + src.shape[1:], dtype=src.dtype)
    return out.index_add_(0, seg, src)
def _pad(x, pw):
    flat = tuple(v for pair in reversed(pw) for v in pair)
    return torch.nn.functional.pad(x, flat)

kernel_name = 'standalone__cross_network_dcn__recsys'

def setup_inputs():

    _w = (lambda a: (lambda t: t.to(torch.bfloat16) if t.is_floating_point() else t)(torch.as_tensor(a)))
    B, F, D, L = 4096, 26, 32, 3
    Din = min(F * D, 1024)
    return {
        "x0": _w((lambda *s: torch.randn(*s, dtype=torch.bfloat16) * 0.05)(B, Din)),
        "ws": _w((lambda *s: torch.randn(*s, dtype=torch.bfloat16) * 0.8)(L, Din, Din) * (Din ** -0.5)),
        "bs": _w((lambda *s: torch.randn(*s, dtype=torch.bfloat16) * 3.2)(L, Din) * 0.01),
    }

def reference(x0, ws, bs):
    x = x0
    L = ws.shape[0]
    for l in range(L):
        proj = torch.einsum('bd,de->be', x, ws[l]) + bs[l]
        x = x0 * proj + x
    return x
```

```python
class Em:
    def __init__(self):
        self.L = []
        self.vm = []
        self.vm_done = 0
        self.lg = []
        self.lg_done = 0

    def A(self, s):
        self.L.append(s)

    def c(self, s):
        self.L.append("; " + s)

    def vmem(self, s, tag=None):
        self.L.append(s)
        self.vm.append(tag)

    def need_vm(self, pred):
        idx = 0
        for i, t in enumerate(self.vm):
            if pred(t):
                idx = i + 1
        return idx

    def wait_vm(self, pred, extra_lg=None):
        idx = self.need_vm(pred)
        if idx <= self.vm_done:
            return False
        n = len(self.vm) - idx
        if n > 63:
            self.vm_done = max(self.vm_done, idx)
            return False
        self.L.append(f"s_waitcnt vmcnt({n})")
        self.vm_done = idx
        return True

    def wait_vm_all(self):
        self.L.append("s_waitcnt vmcnt(0)")
        self.vm_done = len(self.vm)

    def lds(self, s, tag=None):
        self.L.append(s)
        self.lg.append(tag)

    def wait_lg(self, pred):
        idx = 0
        for i, t in enumerate(self.lg):
            if pred(t):
                idx = i + 1
        if idx <= self.lg_done:
            return False
        n = len(self.lg) - idx
        if n > 15:
            n = 15
            idx = len(self.lg) - 15
        self.L.append(f"s_waitcnt lgkmcnt({n})")
        self.lg_done = idx
        return True

    def wait_lg_all(self):
        self.L.append("s_waitcnt lgkmcnt(0)")
        self.lg_done = len(self.lg)

    def text(self):
        return "\n".join(self.L) + "\n"
```

```python
import sys
from emit import Em

NAME = "standalone__cross_network_dcn__recsys"
ROWB = 1664
WLAYER = 832 * ROWB
R = 13
NB = 3
XS_BASE = R * 8192
BIAS_BASE = XS_BASE + 4 * NB * 4096
LDS_BYTES = BIAS_BASE + 4 * 256
XREG0 = 16 << 20
XREG_STRIDE = 8 << 20
ACC, WB, P0, PX, TMP = 64, 128, 192, 224, 32
NWG = 224

def stamp(e, idx, on):
    if on:
        e.A(f"s_memtime s[{60+2*idx}:{61+2*idx}]")
        e.wait_lg_all()

def gen_layer_kernel(l, kname, stamps=False, G=2, DX=8):
    e = Em(); A = e.A
    A(f".globl {kname}")
    A(".p2align 8")
    A(f".type {kname},@function")
    A(f"{kname}:")
    A(f"s_cmp_ge_u32 s2, {NWG}")
    A(f"s_cbranch_scc1 L_end_{l}")
    stamp(e, 0, stamps)
    A("s_load_dwordx8 s[4:11], s[0:1], 0")
    A("s_load_dwordx4 s[12:15], s[0:1], 32")
    A("s_and_b32 s39, s2, 7")
    A("s_lshr_b32 s44, s2, 3")
    A("s_mul_i32 s45, s44, 37")
    A("s_lshr_b32 s45, s45, 8")
    A("s_mul_i32 s46, s45, 7")
    A("s_sub_u32 s36, s44, s46")
    A("s_lshl_b32 s37, s45, 3")
    A("s_add_u32 s37, s37, s39")
    A("v_and_b32 v1, 63, v0")
    A("v_lshrrev_b32 v2, 6, v0")
    A("s_nop 0")
    A("v_readfirstlane_b32 s38, v2")
    A("s_waitcnt lgkmcnt(0)")
    def srd(d, b, size):
        A(f"s_mov_b32 s{d}, s{b}"); A(f"s_mov_b32 s{d+1}, s{b+1}")
        A(f"s_mov_b32 s{d+2}, {size}"); A(f"s_mov_b32 s{d+3}, 0x20000")
    srd(16, 6, 3 * WLAYER)
    srd(20, 4, 4096 * ROWB)
    srd(24, 14, XREG0 + 2 * XREG_STRIDE)
    srd(28, 10, 4096 * ROWB)
    srd(32, 8, 3 * ROWB)
    A("v_lshrrev_b32 v2, 4, v1")
    A("v_and_b32 v3, 15, v1")
    A("v_lshlrev_b32 v4, 2, v2")
    A("v_xor_b32 v3, v3, v4")
    A("v_mul_u32_u24 v4, 1664, v2")
    A("v_lshlrev_b32 v5, 4, v3")
    A("v_add_u32 v4, v4, v5")
    A("s_lshl_b32 s44, s36, 8")
    if l == 0:
        A("s_lshr_b32 s45, s38, 1"); A("s_lshl_b32 s45, s45, 4")
        A("s_and_b32 s46, s38, 1"); A("s_lshl_b32 s46, s46, 2")
        A("s_add_u32 s45, s45, s46")
        estep = 8 * ROWB
    else:
        A("s_lshl_b32 s45, s38, 3")
        estep = 4 * ROWB
    A("s_mul_i32 s45, s45, 1664")
    A("s_add_u32 s44, s44, s45")
    A("v_add_u32 v8, s44, v4")
    A("s_cmp_eq_u32 s36, 6")
    A("s_cselect_b32 s47, 8, 16")
    A("v_cmp_le_u32 vcc, s47, v3")
    A("v_mov_b32 v6, 0x80000000")
    A("s_nop 1")
    A("v_cndmask_b32 v8, v8, v6, vcc")
    A(f"v_add_u32 v9, {estep}, v8")
    A(f"s_mov_b32 s40, {l * WLAYER}")
    A("s_lshl_b32 s41, s38, 11")
    A(f"s_mul_i32 s43, s38, {NB*4096}")
    A(f"s_add_u32 s43, s43, {XS_BASE}")
    A("v_lshrrev_b32 v2, 5, v1")
    A("v_bfe_u32 v3, v1, 2, 2")
    A("v_lshl_add_u32 v4, v2, 2, v3")
    A("v_lshlrev_b32 v4, 8, v4")
    A("v_bfe_u32 v5, v1, 4, 1")
    A("v_lshl_add_u32 v4, v5, 5, v4")
    A("v_and_b32 v5, 3, v1")
    A("v_lshl_add_u32 v4, v5, 3, v4")
    for t in range(4):
        A(f"v_xor_b32 v5, {t}, v3")
        A(f"v_lshl_add_u32 v{18+t}, v5, 6, v4")
        A(f"v_add_u32 v{22+t}, 0x10000, v{18+t}")
    A("s_lshl_b32 s48, s37, 2"); A("s_add_u32 s48, s48, s38")
    A("s_mul_i32 s49, s48, 53248")
    A(f"s_mul_i32 s48, s48, {32*ROWB}")
    A("v_lshlrev_b32 v6, 2, v1")
    A("s_lshl_b32 s44, s36, 8")
    A(f"s_add_u32 s44, s44, {l*ROWB}")
    A("s_lshl_b32 s45, s38, 8")
    A(f"s_add_u32 s45, s45, {BIAS_BASE}")
    A("s_mov_b32 m0, s45")
    A("v_lshlrev_b32 v30, 3, v2")
    A("v_add_u32 v30, s45, v30")
    e.vmem("buffer_load_dword v6, s[32:35], s44 offen lds", ("bias",))
    if l == 0:
        A("v_lshrrev_b32 v3, 3, v1")
        A("v_and_b32 v4, 7, v1")
        A("v_lshrrev_b32 v5, 4, v1")
        for sp in range(4):
            A(f"v_xor_b32 v6, {4*(sp&1)}, v5")
            A("v_xor_b32 v6, v6, v4")
            A("v_lshlrev_b32 v6, 4, v6")
            A(f"v_add_u32 v7, {8*sp}, v3")
            A("v_mul_u32_u24 v7, 1664, v7")
            A(f"v_add3_u32 v{10+sp}, v6, v7, s48")
        A("v_and_b32 v3, 31, v1")
        A("v_bfe_u32 v4, v1, 1, 3")
        A("v_lshlrev_b32 v5, 7, v3")
        for s4 in range(4):
            A(f"v_add_u32 v6, {2*s4}, v2")
            A("v_xor_b32 v6, v6, v4")
            A("v_lshl_add_u32 v6, v6, 4, v5")
            A(f"v_add_u32 v{14+s4}, s43, v6")
    else:
        A("v_lshlrev_b32 v10, 4, v1")
        A("v_add_u32 v10, s49, v10")
    A("v_and_b32 v3, 31, v1")
    A("v_mul_u32_u24 v3, 1664, v3")
    A("v_lshl_add_u32 v3, v2, 3, v3")
    A("s_lshl_b32 s44, s36, 8")
    A("s_add_u32 s44, s44, s48")
    A("v_add_u32 v26, s44, v3")

    def w_dma(stage, ee):
        slot = stage % R
        A(f"s_add_u32 m0, s41, {slot*8192 + ee*1024}")
        if ee == 0:
            A(f"s_mov_b32 s40, {l*WLAYER + stage*32*ROWB}")
        else:
            A("s_nop 0")
        e.vmem(f"buffer_load_dwordx4 v{8+ee}, s[16:19], s40 offen lds", ("w", stage))
    def x0_dma(blk, sp):
        A(f"s_add_u32 m0, s43, {(blk % NB)*4096 + sp*1024}")
        A(f"s_movk_i32 s42, {blk*128}")
        e.vmem(f"buffer_load_dwordx4 v{10+sp}, s[20:23], s42 offen lds", ("x0", blk))
    def x_ld(f):
        if f % 4 == 0:
            A(f"s_mov_b32 s42, {XREG0 + (l-1)*XREG_STRIDE + f*1024}")
        e.vmem(f"buffer_load_dwordx4 a[{4*f}:{4*f+3}], v10, s[24:27], s42 offen offset:{(f%4)*1024}", ("x", f))
    def x0_rd(blk, s4):
        f = 4*blk + s4
        e.lds(f"ds_read_b128 a[{4*f}:{4*f+3}], v{14+s4} offset:{(blk % NB)*4096}", ("x", f))
    def w_rd(stage, i, u):
        s, t = i // 4, i % 4
        slot = stage % R
        off = slot*8192 + s*4096 + u*2048
        base = 18 + t
        if off >= 65536:
            off -= 65536; base = 22 + t
        d = WB + (stage & 1)*32 + i*4 + 2*u
        e.lds(f"ds_read_b64_tr_b16 v[{d}:{d+1}], v{base} offset:{off}", ("w", stage, i))

    extra = []
    for t in range(4):
        for a in range(4):
            extra.append((f"buffer_load_dwordx2 v[{P0+8*t+2*a}:{P0+8*t+2*a+1}], v26, s[20:23], 0 offen offset:{64*t+16*a}", ("own",)))
    if l > 0:
        A("s_lshl_b32 s50, s36, 13")
        A(f"s_add_u32 s50, s50, {XREG0 + (l-1)*XREG_STRIDE}")
        A("s_add_u32 s51, s50, 4096")
        for q in range(8):
            extra.append((f"buffer_load_dwordx4 v[{PX+4*q}:{PX+4*q+3}], v10, s[24:27], s{50+q//4} offen offset:{(q%4)*1024}", ("own",)))

    NK = 26
    for st in range(R - G):
        w_dma(st, 0); w_dma(st, 1)
        if l == 0:
            if st < NB:
                for sp in range(4): x0_dma(st, sp)
        else:
            if st < DX:
                x_ld(2*st); x_ld(2*st+1)
    stamp(e, 1, stamps)
    e.wait_vm(lambda t: t == ("bias",))
    for t in range(4):
        for a in range(4):
            e.lds(f"ds_read_b64 v[{TMP+8*t+2*a}:{TMP+8*t+2*a+1}], v30 offset:{64*t+16*a}", ("b",))
    e.wait_lg_all()
    for p in range(32):
        A(f"v_lshlrev_b32 v{ACC+2*p}, 16, v{TMP+p}")
        A(f"v_and_b32 v{ACC+2*p+1}, 0xffff0000, v{TMP+p}")
    landed = 0
    e.wait_vm(lambda t: t is not None and t[0] == "w" and t[1] <= 0)
    A("s_barrier")
    stamp(e, 2, stamps)
    for i in range(8):
        w_rd(0, i, 0); w_rd(0, i, 1)
    if l == 0:
        e.wait_vm(lambda t: t == ("x0", 0))
        for s4 in range(4): x0_rd(0, s4)
    next_w = R - G
    for k in range(NK):
        e.c(f"---- stage {k}")
        if k + 1 < NK and k + 1 > landed:
            upto = min(k + G, NK - 1)
            e.wait_vm(lambda t: t is not None and t[0] == "w" and t[1] <= upto)
            A("s_barrier")
            landed = upto
            free_upto = k - 1
        vm_list = []
        if next_w < NK and next_w - R <= free_upto:
            vm_list += [("w", next_w, 0), ("w", next_w, 1)]
            next_w += 1
        if l == 0:
            blk = k // 2 + NB
            if blk < 13:
                vm_list += [("x0", blk, 2*(k%2)), ("x0", blk, 2*(k%2)+1)]
        else:
            if k + DX < NK:
                vm_list += [("x", 2*(k+DX)), ("x", 2*(k+DX)+1)]
        for i in range(8):
            s, t = i // 4, i % 4
            f = 2*k + s
            e.wait_lg(lambda tg: tg == ("w", k, i) or tg == ("x", f))
            if l > 0:
                e.wait_vm(lambda tg: tg == ("x", f))
            a0 = WB + (k & 1)*32 + i*4
            A(f"v_mfma_f32_32x32x16_bf16 v[{ACC+16*t}:{ACC+16*t+15}], v[{a0}:{a0+3}], a[{4*f}:{4*f+3}], v[{ACC+16*t}:{ACC+16*t+15}]")
            if k + 1 < NK:
                w_rd(k+1, i, 0); w_rd(k+1, i, 1)
            if l == 0 and k % 2 == 1 and i % 2 == 0 and (k+1)//2 < 13:
                if i == 0:
                    e.wait_vm(lambda tg: tg == ("x0", (k+1)//2))
                x0_rd((k+1)//2, i//2)
            if i % 2 == 1 and vm_list:
                op = vm_list.pop(0)
                if op[0] == "w": w_dma(op[1], op[2])
                elif op[0] == "x0":
                    e.wait_lg(lambda tg: tg is not None and tg[0] == "x" and tg[1] < 4*(op[1]-NB)+4)
                    x0_dma(op[1], op[2])
                else: x_ld(op[1])
            elif i % 2 == 0 and extra and k >= 2:
                s_, tg_ = extra.pop(0)
                e.vmem(s_, tg_)
        assert not vm_list
    assert not extra
    stamp(e, 3, stamps)
    e.wait_vm(lambda t: t == ("own",))
    A("s_nop 15")
    px = P0 if l == 0 else PX
    OUTP = WB
    for p in range(32):
        A(f"v_lshlrev_b32 v2, 16, v{P0+p}")
        A(f"v_and_b32 v3, 0xffff0000, v{P0+p}")
        if l == 0:
            A(f"v_fma_f32 v2, v2, v{ACC+2*p}, v2")
            A(f"v_fma_f32 v3, v3, v{ACC+2*p+1}, v3")
        else:
            A(f"v_lshlrev_b32 v4, 16, v{px+p}")
            A(f"v_and_b32 v5, 0xffff0000, v{px+p}")
            A(f"v_fma_f32 v2, v2, v{ACC+2*p}, v4")
            A(f"v_fma_f32 v3, v3, v{ACC+2*p+1}, v5")
        A(f"v_cvt_pk_bf16_f32 v{OUTP+p}, v2, v3")
    if l < 2:
        A("v_lshlrev_b32 v6, 4, v1")
        A("v_add_u32 v6, s49, v6")
        A("s_lshl_b32 s50, s36, 13")
        A(f"s_add_u32 s50, s50, {XREG0 + l*XREG_STRIDE}")
        A("s_add_u32 s51, s50, 4096")
        for q in range(4):
            e.vmem(f"buffer_store_dwordx4 v[{OUTP+4*q}:{OUTP+4*q+3}], v6, s[24:27], s50 offen offset:{q*1024}", ("st",))
        A("s_cmp_eq_u32 s36, 6")
        A(f"s_cbranch_scc1 L_fin_{l}")
        for q in range(4, 8):
            e.vmem(f"buffer_store_dwordx4 v[{OUTP+4*q}:{OUTP+4*q+3}], v6, s[24:27], s51 offen offset:{(q-4)*1024}", ("st",))
    else:
        A("v_and_b32 v3, 31, v1")
        A("v_lshrrev_b32 v2, 5, v1")
        A("v_lshlrev_b32 v4, 8, v3")
        A("v_lshl_add_u32 v4, v2, 3, v4")
        A("v_add_u32 v4, s43, v4")
        A("v_and_b32 v5, 15, v1")
        for ch in range(16):
            A(f"v_xor_b32 v6, {ch}, v5")
            A("v_lshl_add_u32 v6, v6, 4, v4")
            e.lds(f"ds_write_b64 v6, v[{OUTP+2*ch}:{OUTP+2*ch+1}]", ("o",))
        A("v_lshrrev_b32 v2, 4, v1")
        A("v_mul_u32_u24 v7, 1664, v2")
        A("v_lshl_add_u32 v7, v5, 4, v7")
        A("s_lshl_b32 s44, s36, 8")
        A("s_add_u32 s44, s44, s48")
        A("v_add_u32 v7, s44, v7")
        A("v_cmp_le_u32 vcc, s47, v5")
        A("v_mov_b32 v6, 0x80000000")
        A("s_nop 1")
        A("v_cndmask_b32 v7, v7, v6, vcc")
        e.wait_lg_all()
        for p in range(8):
            A(f"v_add_u32 v3, {4*p}, v2")
            A("v_and_b32 v6, 15, v3")
            A("v_xor_b32 v6, v6, v5")
            A("v_lshlrev_b32 v6, 4, v6")
            A("v_lshl_add_u32 v6, v3, 8, v6")
            A("v_add_u32 v6, s43, v6")
            e.lds(f"ds_read_b128 v[{ACC+4*p}:{ACC+4*p+3}], v6", ("r", p))
        for p in range(8):
            e.wait_lg(lambda t: t == ("r", p))
            A(f"s_mov_b32 s42, {4*p*ROWB}")
            e.vmem(f"buffer_store_dwordx4 v[{ACC+4*p}:{ACC+4*p+3}], v7, s[28:31], s42 offen", ("st",))
    A(f"L_fin_{l}:")
    if stamps:
        stamp(e, 4, True)
        A("s_waitcnt vmcnt(0)")
        stamp(e, 5, True)
        A("s_cmp_lg_u32 s38, 0")
        A(f"s_cbranch_scc1 L_end_{l}")
        A(f"s_mul_i32 s44, s2, {8*18}")
        A(f"s_add_u32 s44, s44, {8*6*l}")
        for i in range(6):
            A(f"v_mov_b32 v4, s{60+2*i}")
            A(f"v_mov_b32 v5, s{61+2*i}")
            A("v_mov_b32 v6, s44")
            A(f"buffer_store_dwordx2 v[4:5], v6, s[24:27], 0 offen offset:{8*i}")
            A("s_nop 2")
    A(f"L_end_{l}:")
    A("s_endpgm")
    return e.text()

def kd(kname):
    return f""".amdhsa_kernel {kname}
  .amdhsa_next_free_vgpr 464
  .amdhsa_next_free_sgpr 80
  .amdhsa_accum_offset 256
  .amdhsa_group_segment_fixed_size 0
  .amdhsa_kernarg_size 48
  .amdhsa_user_sgpr_count 2
  .amdhsa_user_sgpr_kernarg_segment_ptr 1
  .amdhsa_system_sgpr_workgroup_id_x 1
  .amdhsa_float_denorm_mode_32 3
.end_amdhsa_kernel
"""

def main():
    out = sys.argv[1]
    stamps = "--stamps" in sys.argv
    G = 2
    for a in sys.argv:
        if a.startswith("--G="): G = int(a[4:])
    names = [f"dcn_l{l}_kernel" for l in range(3)]
    T = []
    for n in names:
        T.append(f"; @launch kernel={n} grid=({NWG},1,1) block=(256,1,1) lds={LDS_BYTES}")
    if stamps:
        T.append(f"; @stamps nwg={NWG} per=18")
    T.append('.amdgcn_target "amdgcn-amd-amdhsa--gfx950"')
    T.append(".text")
    for l, n in enumerate(names):
        T.append(gen_layer_kernel(l, n, stamps, G=G))
    T.append('.section .rodata,"a"')
    for n in names:
        T.append(".p2align 6")
        T.append(kd(n))
    open(out, "w").write("\n".join(T))

main()
```

```python
import sys
from emit import Em

NAME = "standalone__cross_network_dcn__recsys"
ROWB = 1664
WLAYER = 832 * ROWB
BLKW = 64 * ROWB
KSW = 32 * ROWB
PAGE = 4096
NPAGES = 39
MISC = NPAGES * PAGE
LDS_BYTES = 163840
FLAG_BASE = 8 << 20
XREG0 = 16 << 20
XREG_STRIDE = 8 << 20
WS_BYTES = 32 << 20
ACC, X0F, PX, Y = 32, 96, 160, 224
vLANE = 1
vW0, vW1 = 8, 9
vXS = 10
vXR = 14
vTR = 18
vXL = 24
vZ, vCB = 25, 26
vBIAS = 27
vFLAG = 28
vFST = 29
vFL = 30
vTCH = 0
vNON = 6
vOR = 5
WB = 192
sJ, sC, sWV, sCQ = 36, 37, 38, 39
sW1K, sXS = 41, 47
sNON = 48
sBW, sBX = 50, 63
sST = 76

class P:
    stamps = False; rt = False
    GB = 4
    NB = 3
    YP = 4
    NV = 3
    NVU = 6
    MINLA = 10
    XLAT = 8
    ACK = 8
    POLL_E = 49
    POLL_L = 17
    POLLW = 3
    helper = True
    simple = False
    touch = True
    H0 = 3

class Op:
    def __init__(self, kind, fn, req=(), give=(), at=0.0, urgent=False, name=""):
        self.kind, self.fn, self.req, self.give, self.at, self.urgent = kind, fn, set(req), set(give), at, urgent
        self.done = False; self.name = name

class Prog:
    def __init__(self, m6, tag):
        self.m6 = m6; self.tag = tag
        self.e = Em(); self.ops = []; self.tokens = set()
        self.icount = 0
        self.last_mfma = {}
        self.last_valu = {}
        self.nstamp = 0
        self.lab = 0
    def A(self, s):
        self.e.A(s); self.icount += 1
    def vmem(self, s, tag=None):
        self.e.vmem(s, tag); self.icount += 1
    def lds(self, s, tag=None):
        self.e.lds(s, tag); self.icount += 1
    def wait_vm(self, pred):
        if self.e.wait_vm(pred): self.icount += 1
    def wait_lg(self, pred):
        if self.e.wait_lg(pred): self.icount += 1
    def pad(self, since, need):
        have = self.icount - since
        if have < need:
            n = need - have
            while n > 0:
                k = min(n, 16)
                self.e.A(f"s_nop {k-1}"); self.icount += k; n -= k
    def valu(self, s, writes=(), acc_tile=None):
        if acc_tile is not None and acc_tile in self.last_mfma:
            self.pad(self.last_mfma[acc_tile], 12)
        self.A(s)
        for r in writes: self.last_valu[r] = self.icount
    def stamp(self):
        if P.stamps and self.nstamp < 12:
            i = self.nstamp; self.nstamp += 1
            self.A(f"s_mem{'real' if P.rt else ''}time s[{sST+2*i}:{sST+2*i+1}]")
            self.e.wait_lg_all(); self.icount += 1
    def add(self, *a, **k):
        o = Op(*a, **k); self.ops.append(o); return o
    def run(self, o):
        assert not o.done
        for t in o.req: self.ensure(t)
        o.done = True
        o.fn()
        self.tokens |= o.give
    def ensure(self, tok):
        if tok in self.tokens: return
        cand = [o for o in self.ops if tok in o.give and not o.done]
        assert cand, f"no producer for {tok}"
        self.run(cand[0])
        assert tok in self.tokens
    def fill(self, now, kind, n):
        k = 0
        for o in self.ops:
            if k >= n: break
            if o.done or o.kind != kind or o.at > now: continue
            if not o.req <= self.tokens: continue
            self.run(o); k += 1
        return k

def xreg(m6, l, pos, ks, s):
    o = 8*ks + 4*s
    if pos == 0:
        r = PX + 32*(l & 1) + o; return f"v[{r}:{r+3}]", ("v", r)
    if pos == 7 and not m6:
        r = PX + 32*(l & 1) + 16 + o; return f"v[{r}:{r+3}]", ("v", r)
    if m6: idx = pos - 1
    else: idx = pos - 1 if pos < 7 else pos - 2
    r = 16*idx + o
    return f"a[{r}:{r+3}]", ("a", r)

def unit_list(m6):
    U = []
    for l in range(3):
        L = []
        B = lambda pos, H: [(l, pos, 0, H), (l, pos, 1, H)]
        if m6:
            for pos in range(13): L += B(pos, 0)
        elif P.simple:
            for pos in (0, 7, 1, 2, 3, 4, 5, 6, 8, 9, 10, 11, 12):
                for ks in range(2):
                    L += [(l, pos, ks, 0), (l, pos, ks, 1)]
        else:
            L += B(0, 0) + B(0, 1) + B(7, 0) + B(7, 1)
            e1 = []
            for pos in range(1, 7): e1 += B(pos, 1)
            for pos in range(1, 7): L += B(pos, 0)
            L += e1[:P.YP]
            for pos in range(8, 13): L += B(pos, 0)
            L += e1[P.YP:]
            for pos in range(8, 13): L += B(pos, 1)
        U += L
    return U

def setup(p):
    A = p.A
    m6 = p.m6
    for q in range(7):
        A(f"s_add_u32 s44, s{sJ}, {q}")
        A("s_cmp_ge_u32 s44, 7"); A("s_cselect_b32 s45, 7, 0"); A("s_sub_u32 s44, s44, s45")
        A(f"s_mul_i32 s{sBW+q}, s44, {2*BLKW}")
        A(f"s_lshl_b32 s{sBX+q}, s44, 13")
    for q in range(6):
        if m6:
            A(f"s_mov_b32 s{sBW+7+q}, {(2*q+1)*BLKW}")
            A(f"s_mov_b32 s{sBX+7+q}, {(2*q+1)*4096}")
        else:
            A(f"s_add_u32 s44, s{sJ}, {q}")
            A("s_cmp_ge_u32 s44, 6"); A("s_cselect_b32 s45, 6, 0"); A("s_sub_u32 s44, s44, s45")
            A(f"s_mul_i32 s{sBW+7+q}, s44, {2*BLKW}")
            A(f"s_add_u32 s{sBW+7+q}, s{sBW+7+q}, {BLKW}")
            A(f"s_lshl_b32 s{sBX+7+q}, s44, 13")
            A(f"s_add_u32 s{sBX+7+q}, s{sBX+7+q}, 4096")

def gen_member(m6):
    tag = "m6" if m6 else "mr"
    p = Prog(m6, tag); A = p.A; e = p.e
    U = unit_list(m6); NU = len(U); UL = NU // 3
    NB = P.NB
    XS0 = NPAGES - 4*NB
    e.A(f"L_{tag}:")
    p.stamp()
    A(f"s_lshl_b32 s{sW1K}, s{sWV}, 10")
    A(f"s_mul_i32 s{sXS}, s{sWV}, {NB*PAGE}")
    A(f"s_add_u32 s{sXS}, s{sXS}, {XS0*PAGE}")
    A(f"s_lshl_b32 s43, s{sC}, 2"); A(f"s_add_u32 s43, s43, s{sWV}")
    A(f"s_mul_i32 s46, s43, {32*ROWB}")
    setup(p)
    A("v_lshrrev_b32 v2, 3, v1"); A("v_and_b32 v3, 7, v1"); A("v_lshrrev_b32 v4, 4, v1")
    for sp in range(4):
        A(f"v_xor_b32 v5, {4*(sp&1)}, v4"); A("v_xor_b32 v5, v5, v3"); A("v_lshlrev_b32 v5, 4, v5")
        A(f"v_add_u32 v6, {8*sp}, v2"); A("v_mul_u32_u24 v6, 1664, v6")
        A(f"v_add3_u32 v{vXS+sp}, v5, v6, s46")
    A("v_and_b32 v5, 1, v4"); A("v_lshlrev_b32 v5, 2, v5"); A("v_xor_b32 v5, v5, v3"); A("v_lshlrev_b32 v5, 4, v5")
    A(f"s_lshl_b32 s44, s{sJ}, 8")
    A("v_add_u32 v5, s44, v5")
    A(f"s_lshl_b32 s45, s{sWV}, 3")
    A("v_add_u32 v6, s45, v2"); A("v_mul_u32_u24 v6, 1664, v6"); A(f"v_add_u32 v{vW1}, v5, v6")
    A(f"s_lshr_b32 s45, s{sWV}, 1"); A("s_lshl_b32 s45, s45, 4"); A(f"s_and_b32 s44, s{sWV}, 1"); A("s_lshl_b32 s44, s44, 2")
    A("s_add_u32 s45, s45, s44")
    A("v_lshrrev_b32 v7, 5, v1")
    A("v_and_b32 v6, 3, v2"); A("v_lshl_add_u32 v6, v7, 3, v6"); A("v_add_u32 v6, s45, v6")
    A("v_mul_u32_u24 v6, 1664, v6"); A(f"v_add_u32 v{vW0}, v5, v6")

    free_pages = list(range(XS0))
    pending = []
    page_of = {}
    st = {"next_w": 0, "landed": -1}
    def w_dma():
        v = st["next_w"]
        if v >= NU or not free_pages: return False
        l, pos, ks, H = U[v]
        pg = free_pages.pop(0); page_of[v] = pg
        pending.append((pg, v))
        A(f"s_add_u32 m0, s{sW1K}, {pg*PAGE}")
        A(f"s_add_u32 s40, s{sBW+pos}, {l*WLAYER + ks*KSW + H*128}")
        p.vmem(f"buffer_load_dwordx4 v{vW0 if l == 0 else vW1}, s[16:19], s40 offen lds", ("w", v))
        st["next_w"] += 1
        return True
    def w_rd(v, i, u):
        s, t = i // 2, i % 2
        off = page_of[v]*PAGE + s*2048 + u*1024
        rng = off >> 16
        d = WB + (v & 1)*16 + i*4 + 2*u
        p.lds(f"ds_read_b64_tr_b16 a[{d}:{d+1}], v{vTR+2*rng+t} offset:{off & 0xffff}", ("w", v, i))
    order0 = []
    for (l, pos, ks, H) in U[:UL]:
        if pos not in order0: order0.append(pos)
    def x0_dma(n, sp):
        pos = order0[n]
        A(f"s_add_u32 m0, s{sXS}, {(n % NB)*PAGE + sp*1024}")
        A(f"s_lshr_b32 s42, s{sBX+pos}, 5")
        p.vmem(f"buffer_load_dwordx4 v{vXS+sp}, s[20:23], s42 offen lds", ("x0", n))
    for sp in range(4): x0_dma(0, sp)
    for i in range(4): w_dma()
    A(f"s_lshl_b32 s44, s43, 7")
    A(f"s_add_u32 s44, s44, {FLAG_BASE}")
    A("v_lshlrev_b32 v5, 3, v3")
    A(f"v_add_u32 v{vFLAG}, s44, v5")
    A("v_mov_b32 v5, s44")
    A(f"s_mov_b32 s45, {3*16384}")
    p.vmem(f"buffer_load_dwordx2 v[{vFL}:{vFL+1}], v5, s[24:27], s45 offen sc1", ("non",))
    A(f"s_min_u32 s45, s{sWV}, 2")
    A(f"s_mul_i32 s40, s45, {ROWB}")
    A(f"s_lshl_b32 s42, s{sJ}, 8"); A("s_add_u32 s40, s40, s42")
    A("v_lshlrev_b32 v6, 2, v1")
    p.vmem(f"buffer_load_dword v{Y}, v6, s[32:35], s40 offen", ("bias",))
    for n in range(1, NB):
        for sp in range(4): x0_dma(n, sp)
        for i in range(4): w_dma()
    A("s_lshl_b32 s45, s45, 9"); A(f"s_add_u32 s45, s45, {MISC}")
    A("v_lshlrev_b32 v6, 3, v1"); A(f"v_add_u32 v{Y+4}, s45, v6")
    A(f"v_lshlrev_b32 v{vBIAS}, 4, v7"); A(f"v_add_u32 v{vBIAS}, {MISC}, v{vBIAS}")
    A(f"s_lshl_b32 s45, s{sJ}, 3"); A("s_add_u32 s45, s45, s44")
    A("v_mov_b32 v5, 0x80000000"); A("v_mov_b32 v6, s45")
    A("v_cmp_eq_u32 vcc, 0, v1"); A("s_nop 1")
    A(f"v_cndmask_b32 v{vFST}, v5, v6, vcc")
    A(f"v_lshlrev_b32 v{vXL}, 4, v1"); A(f"v_add_u32 v{vOR}, s{sXS}, v{vXL}"); A(f"v_add_u32 v{vXL}, s46, v{vXL}")
    A("v_lshlrev_b32 v6, 7, v1"); A("v_add_u32 v6, s46, v6")
    A("v_mov_b32 v4, 0x80000000")
    A("v_cmp_gt_u32 vcc, 32, v1"); A("s_nop 1")
    A(f"v_cndmask_b32 v{vTCH}, v4, v6, vcc")
    A("v_and_b32 v2, 31, v1"); A(f"v_bfe_u32 v{vZ}, v1, 1, 3"); A("v_lshlrev_b32 v2, 7, v2")
    A(f"v_add_u32 v2, s{sXS}, v2")
    for s4 in range(4):
        A(f"v_add_u32 v6, {2*s4}, v7"); A(f"v_xor_b32 v6, v6, v{vZ}"); A(f"v_lshl_add_u32 v{vXR+s4}, v6, 4, v2")
    A(f"v_lshl_add_u32 v{vCB}, v7, 3, v2")
    A("v_bfe_u32 v3, v1, 2, 2")
    A("v_lshl_add_u32 v4, v7, 2, v3"); A("v_lshlrev_b32 v4, 7, v4")
    A("v_bfe_u32 v6, v1, 4, 1"); A("v_lshl_add_u32 v4, v6, 5, v4")
    A("v_and_b32 v6, 3, v1"); A("v_lshl_add_u32 v4, v6, 3, v4")
    A("v_lshrrev_b32 v3, 1, v3")
    for t in range(2):
        A(f"v_xor_b32 v6, {t}, v3"); A(f"v_lshl_add_u32 v{vTR+t}, v6, 6, v4")
        A(f"v_add_u32 v{vTR+2+t}, 0x10000, v{vTR+t}"); A(f"v_add_u32 v{vTR+4+t}, 0x20000, v{vTR+t}")
    p.wait_vm(lambda t: t == ("bias",))
    A(f"v_lshlrev_b32 v{Y+2}, 16, v{Y}"); A(f"v_and_b32 v{Y+3}, 0xffff0000, v{Y}")
    p.lds(f"ds_write_b64 v{Y+4}, v[{Y+2}:{Y+3}]", ("bw",))
    A(f"v_or_b32 v{vNON}, 1, v{vFL}"); A(f"v_add_u32 v{vNON}, 2, v{vNON}"); A(f"v_add_u32 v{vNON+1}, 1, v{vFL+1}")
    A("s_nop 0")
    A(f"v_readfirstlane_b32 s{sNON}, v{vNON}"); A(f"v_readfirstlane_b32 s{sNON+1}, v{vNON+1}")
    A("s_mov_b32 s46, 0x40000")

    first_use = {}; last_use = {}; last_unit = {}
    for v, (l, pos, ks, H) in enumerate(U):
        first_use.setdefault((l, pos), v); last_use[(l, pos)] = v; last_unit[(l, H)] = v
    halves = (0,) if m6 else (0, 1)
    own_pos = {0: 0, 1: 7}
    for n, pos in enumerate(order0):
        if n >= NB:
            for sp in range(4):
                def f(n=n, sp=sp):
                    p.wait_lg(lambda t: t is not None and t[0] in ("x", "cap") and t[1] == 0 and t[2] == order0[n-NB])
                    x0_dma(n, sp)
                    st[("x0at", n)] = st.get("now", 0)
                p.add("vmem", f, req=[("x0rd", n-NB)] + ([("x0d", n, sp-1)] if sp else []), give=[("x0d", n, sp)], name=f"x0dma{n}")
        else:
            for sp in range(4): p.tokens.add(("x0d", n, sp))
        for s4 in range(4):
            def f(n=n, pos=pos, s4=s4):
                p.wait_vm(lambda t: t == ("x0", n))
                txt, _ = xreg(m6, 0, pos, s4 // 2, s4 % 2)
                p.lds(f"ds_read_b128 {txt}, v{vXR+s4} offset:{(n % NB)*PAGE}", ("x", 0, pos, s4))
            give = [("x0f", n, s4)]
            is_own = pos == 0 or (pos == 7 and not m6)
            if s4 == 3:
                give.append(("xi", 0, pos))
                if not is_own: give.append(("x0rd", n))
            o = p.add("lds", f, req=[("x0d", n, 3)] + ([("x0f", n, s4-1)] if s4 else []), give=give, name=f"x0rd{n}")
            o.x0n = n
        if is_own:
            H = 0 if pos == 0 else 1
            for ch in range(8):
                def f(n=n, pos=pos, ch=ch, H=H):
                    A(f"v_xor_b32 v2, {ch}, v{vZ}"); A(f"v_lshl_add_u32 v2, v2, 4, v{vCB}")
                    p.lds(f"ds_read_b64 v[{Y+16*H+2*ch}:{Y+16*H+2*ch+1}], v2 offset:{(n % NB)*PAGE}", ("cap", 0, pos, ch))
                p.add("lds", f, req=[("xi", 0, pos)] + ([("capr", H, ch-1)] if ch else []),
                      give=[("capr", H, ch)] + ([("x0rd", n)] if ch == 7 else []), name="cap")
            for q in range(16):
                def f(pos=pos, q=q, H=H):
                    p.wait_lg(lambda t: t == ("cap", 0, pos, q // 2))
                    A(f"v_lshlrev_b32 v{X0F+32*H+2*q}, 16, v{Y+16*H+q}")
                    A(f"v_and_b32 v{X0F+32*H+2*q+1}, 0xffff0000, v{Y+16*H+q}")
                p.add("valu2", f, req=[("capr", H, 7)] + ([("capu", H, q-1)] if q else []),
                      give=[("capu", H, q)] + ([("x0cap", H)] if q == 15 else []), name="capu")
    prev_crit = None
    for l in range(3):
        for H in halves:
            lu = last_unit[(l, H)]
            req0 = [("x0cap", h) for h in halves] + ([prev_crit] if prev_crit else [])
            for q in range(8):
                def f(l=l, H=H, q=q):
                    p.lds(f"ds_read_b128 v[{Y+4*q}:{Y+4*q+3}], v{vBIAS} offset:{l*512 + (64*H + 8*q)*4}", ("yb", l, H, q))
                p.add("lds", f, req=req0 + ([("yb", l, H, q-1)] if q else []), give=[("yb", l, H, q)], at=2, name="yb")
            for q in range(16):
                def f(l=l, H=H, q=q):
                    p.wait_lg(lambda t: t == ("yb", l, H, q // 2))
                    a, b = X0F + 32*H + 2*q, Y + 2*q
                    if l == 0:
                        A(f"v_fma_f32 v{b}, v{a}, v{b}, v{a}"); A(f"v_fma_f32 v{b+1}, v{a+1}, v{b+1}, v{a+1}")
                    else:
                        x = PX + 32*(l & 1) + 16*H + q
                        A(f"v_lshlrev_b32 v3, 16, v{x}"); A(f"v_and_b32 v4, 0xffff0000, v{x}")
                        A(f"v_fma_f32 v{b}, v{a}, v{b}, v3"); A(f"v_fma_f32 v{b+1}, v{a+1}, v{b+1}, v4")
                p.add("valu2" if l == 0 else "valu4", f, req=[("yb", l, H, 7)] + ([("yp", l, H, q-1)] if q else []),
                      give=[("yp", l, H, q)], name="yprep")
            for q in range(16):
                def f(l=l, H=H, q=q):
                    a, b, c_ = X0F + 32*H + 2*q, Y + 2*q, ACC + 32*H + 2*q
                    tile = 2*H + q // 8
                    d = PX + 32*((l+1) & 1) + 16*H + q
                    p.valu(f"v_fma_f32 v{b}, v{a}, v{c_}, v{b}", acc_tile=tile)
                    p.valu(f"v_fma_f32 v{b+1}, v{a+1}, v{c_+1}, v{b+1}", acc_tile=tile)
                    p.valu(f"v_cvt_pk_bf16_f32 v{d}, v{b}, v{b+1}", writes=[d])
                give = [("cr", l, H, q)]
                if q == 15: give.append(("crit", l, H))
                p.add("crit", f, req=[("udone", lu), ("yp", l, H, 15)] + ([("cr", l, H, q-1)] if q else []), give=give, at=lu+1.25, name="crit")
            prev_crit = ("crit", l, H)
            src = PX + 32*((l+1) & 1) + 16*H
            if l < 2:
                for q in range(4):
                    def f(l=l, H=H, q=q, src=src):
                        if q == 0:
                            A(f"s_add_u32 s43, s{sBX+own_pos[H]}, {XREG0 + l*XREG_STRIDE}")
                        p.vmem(f"buffer_store_dwordx4 v[{src+4*q}:{src+4*q+3}], v{vXL}, s[24:27], s43 offen offset:{q*1024} sc1", ("st", l, H))
                        if q == 3: st[("stat", l, H)] = st["now"]
                    p.add("vmemh", f, req=[("cr", l, H, 4*q+3)] + ([("st", l, H, q-1)] if q else []), give=[("st", l, H, q)], name="store")
                def f(l=l, H=H):
                    p.wait_vm(lambda t: t == ("st", l, H))
                    A(f"s_mov_b32 s44, {(2*l+H)*16384}")
                    p.vmem(f"buffer_store_dwordx2 v[{vNON}:{vNON+1}], v{vFST}, s[24:27], s44 offen sc1", ("fl", l, H))
                    if P.touch:
                        p.vmem(f"buffer_load_dword a224, v{vTCH}, s[24:27], s43 offen sc1", ("tch", l, H))
                o = p.add("flag", f, req=[("st", l, H, 3)], give=[("sent", l, H)], name="flag"); o.lh = (l, H)
            else:
                for ch in range(8):
                    def f(H=H, ch=ch, src=src):
                        if ch == 0: p.wait_lg(lambda t: t is not None and t[0] == "or")
                        A(f"v_xor_b32 v2, {ch}, v{vZ}"); A(f"v_lshl_add_u32 v2, v2, 4, v{vCB}")
                        p.lds(f"ds_write_b64 v2, v[{src+2*ch}:{src+2*ch+1}]", ("ow", H, ch))
                    p.add("lds", f, req=[("cr", 2, H, 2*ch+1)] + ([("ow", H, ch-1)] if ch else []), give=[("ow", H, ch)], name="ow")
                dst = PX + 32*(l & 1) + 16*H
                for q in range(4):
                    def f(H=H, q=q, dst=dst):
                        p.wait_lg(lambda t: t is not None and t[0] == "ow")
                        p.lds(f"ds_read_b128 v[{dst+4*q}:{dst+4*q+3}], v{vOR} offset:{q*1024}", ("or", H, q))
                    p.add("lds", f, req=[("ow", H, 7), ("udone", last_use[(2, own_pos[H])])] + ([("or", H, q-1)] if q else []), give=[("or", H, q)], name="or")
                for q in range(4):
                    def f(H=H, q=q, dst=dst):
                        p.wait_lg(lambda t: t == ("or", H, q))
                        if q == 0:
                            A(f"s_lshl_b32 s43, s{sJ}, 8")
                            if H: A("s_add_u32 s43, s43, 128")
                        p.vmem(f"buffer_store_dwordx4 v[{dst+4*q}:{dst+4*q+3}], v{vXS+q}, s[28:31], s43 offen", ("ost", H))
                    p.add("vmemh", f, req=[("or", H, 3)] + ([("ost", H, q-1)] if q else []), give=[("ost", H, q)], name="ostore")
    for l in (1, 2):
        for H in (0, 1):
            b = l - 1
            poss = [q for q in (range(1, 7) if H == 0 else range(7 if m6 else 8, 13))]
            scale = UL / 52.0
            at = (l-1)*UL + P.POLL_E*scale if H == 0 else l*UL + P.POLL_L*scale
            if P.simple: at = l*UL
            sent = [("sent", b, h) for h in halves if h <= H or P.simple]
            def f(b=b, H=H):
                A(f"s_mov_b32 s45, {(2*b+H)*16384}")
                p.vmem(f"buffer_load_dwordx2 v[{vFL}:{vFL+1}], v{vFLAG}, s[24:27], s45 offen sc1", ("poll", b, H))
                st[("pollat", b, H)] = st["now"]
            p.add("vmemh", f, req=sent + ([("ok", b, 0)] if H else []), give=[("pi", b, H)], at=at, name="poll")
            def f(b=b, H=H):
                mask = 0x7f if H == 0 else 0x3f
                lab = f"L_{tag}_ok{b}{H}"; lp = f"L_{tag}_sp{b}{H}"
                p.wait_vm(lambda t: t == ("poll", b, H))
                e.A(f"{lp}:")
                A(f"v_cmp_eq_u64 vcc, s[{sNON}:{sNON+1}], v[{vFL}:{vFL+1}]")
                A("s_nop 1")
                A(f"s_and_b32 s44, vcc_lo, {mask}")
                A(f"s_cmp_eq_u32 s44, {mask}")
                A(f"s_cbranch_scc1 {lab}")
                e.A("s_sleep 1")
                e.A(f"buffer_load_dwordx2 v[{vFL}:{vFL+1}], v{vFLAG}, s[24:27], s45 offen sc1")
                e.A("s_sub_u32 s46, s46, 1")
                e.A("s_waitcnt vmcnt(0)")
                e.A(f"s_cbranch_scc0 {lp}")
                e.A(f"{lab}:")
            o = p.add("chk", f, req=[("pi", b, H)], give=[("ok", b, H)], name="chk"); o.bh = (b, H)
            prev = None
            for pos in poss:
                for q in range(4):
                    def f(l=l, pos=pos, q=q):
                        if q == 0:
                            A(f"s_add_u32 s42, s{sBX+pos}, {XREG0 + (l-1)*XREG_STRIDE}")
                        txt, _ = xreg(m6, l, pos, q // 2, q % 2)
                        p.vmem(f"buffer_load_dwordx4 {txt}, v{vXL}, s[24:27], s42 offen offset:{q*1024} sc1", ("x", l, pos, q))
                    give = [("xl", l, pos, q)] + ([("xi", l, pos)] if q == 3 else [])
                    p.add("vmem", f, req=[("ok", b, H), ("udone", last_use[(l-1, pos)])] + ([prev] if prev else []), give=give, name="xld")
                    prev = ("xl", l, pos, q)

    def barrier(u):
        upto = min(u + P.GB, NU - 1)
        while st["next_w"] <= upto:
            ok = w_dma(); assert ok, "no free page"
        p.wait_vm(lambda t: t is not None and t[0] == "w" and t[1] <= upto)
        A("s_barrier")
        st["landed"] = upto
        for it in list(pending):
            if it[1] <= u - 1:
                free_pages.append(it[0]); pending.remove(it)
    st["now"] = -1
    p.wait_lg(lambda t: t == ("bw",))
    p.stamp()
    p.wait_vm(lambda t: t == ("w", 0))
    A("s_barrier")
    st["landed"] = 0
    for i in range(4):
        w_rd(0, i, 0); w_rd(0, i, 1)
    donated = False
    seen = set()
    for u, (l, pos, ks, H) in enumerate(U):
        e.c(f"---- unit {u}: layer {l} pos {pos} ks {ks} H {H}")
        st["now"] = u
        if u % UL == 0 or (not m6 and u == last_unit[(l, 0)] + 1): p.stamp()
        if u + 1 < NU and u + 1 > st["landed"]:
            barrier(u)
        if not donated and ("x0rd", 12) in p.tokens and ("x0rd", 11) in p.tokens:
            p.wait_lg(lambda t: t is not None and t[0] in ("x", "cap") and t[1] == 0)
            for w in range(4):
                for i in range(1, NB): pending.append((XS0 + w*NB + i, u))
            donated = True
        for i in range(4):
            s, t = i // 2, i % 2
            now = u + i/4.0
            tile = 2*H + t
            own = pos == 0 or (pos == 7 and not m6)
            if l == 0 or not own:
                p.ensure(("xi", l, pos))
            else:
                p.ensure(("crit", l-1, 0 if pos == 0 else 1))
            first = (l, tile) not in seen
            if first and l > 0: p.ensure(("crit", l-1, H))
            seen.add((l, tile))
            txt, (kind, r) = xreg(m6, l, pos, ks, s)
            if l == 0:
                p.wait_lg(lambda tg: tg == ("w", u, i) or tg == ("x", 0, pos, 2*ks+s))
            else:
                p.wait_lg(lambda tg: tg == ("w", u, i))
                if not own: p.wait_vm(lambda tg: tg == ("x", l, pos, 2*ks+s))
            if kind == "v":
                lw = max([p.last_valu.get(x, -99) for x in range(r, r+4)])
                p.pad(lw, 2)
            a0 = WB + (u & 1)*16 + i*4
            acc = f"v[{ACC+16*tile}:{ACC+16*tile+15}]"
            A(f"v_mfma_f32_32x32x16_bf16 {acc}, a[{a0}:{a0+3}], {txt}, {'0' if first else acc}")
            p.last_mfma[tile] = p.icount
            if i == 3: p.tokens.add(("udone", u))
            if u + 1 < NU:
                w_rd(u+1, i, 0); w_rd(u+1, i, 1)
            for o in p.ops:
                if o.done: continue
                if o.kind == "flag" and ("stat",) + o.lh in st: o.at = st[("stat",) + o.lh] + P.ACK
                elif o.kind == "flag": o.at = 1e9
                if o.kind == "chk": o.at = st.get(("pollat",) + o.bh, 1e9) + P.POLLW
                if hasattr(o, "x0n") and o.x0n >= NB: o.at = st.get(("x0at", o.x0n), 1e9) + P.XLAT
                elif hasattr(o, "x0n"): o.at = max(0, first_use[(0, order0[o.x0n])] - 2)
            nv = 0
            k = p.fill(now, "crit", P.NVU // 3) if i >= 0 else 0
            nv += 3*k
            if nv < P.NV: nv += 2*p.fill(now, "valu2", 1)
            if nv < P.NV - 1: nv += 4*p.fill(now, "valu4", 1)
            p.fill(now, "lds", 1)
            p.fill(now, "chk", 1)
            got = p.fill(now, "flag", 1) or p.fill(now, "vmemh", 1)
            if not got and i % 2 == 1:
                la = st["next_w"] - u
                if la < P.MINLA:
                    got = w_dma() or p.fill(now, "vmem", 1)
                else:
                    got = p.fill(now, "vmem", 1) or w_dma()
    st["now"] = NU
    p.stamp()
    for o in p.ops:
        if not o.done: p.run(o)
    p.stamp()
    if P.stamps:
        A("s_waitcnt vmcnt(0)")
        p.stamp()
        while p.nstamp < 12: p.stamp()
        A(f"s_cmp_lg_u32 s{sWV}, 0")
        A("s_cbranch_scc1 L_end")
        A("s_mul_i32 s44, s2, 96")
        for i in range(12):
            A(f"v_mov_b32 v2, s{sST+2*i}"); A(f"v_mov_b32 v3, s{sST+2*i+1}"); A("v_mov_b32 v4, s44")
            A(f"buffer_store_dwordx2 v[2:3], v4, s[24:27], 0 offen offset:{8*i}")
            A("s_nop 2")
    A("s_endpgm")
    return e.text()

def gen_helper():
    e = Em(); A = e.A
    A("L_helper:")
    if P.stamps:
        A(f"s_mem{'real' if P.rt else ''}time s[{sST}:{sST+1}]")
    if P.helper:
        A(f"s_lshl_b32 s43, s{sCQ}, 2"); A(f"s_add_u32 s43, s43, s{sWV}")
        A("s_cmp_ge_u32 s43, 13"); A("s_cbranch_scc1 L_hdone")
        A("s_lshr_b32 s46, s43, 1")
        A("s_lshl_b32 s43, s43, 7")
        A("v_mul_u32_u24 v2, 1664, v1"); A("v_add_u32 v2, s43, v2")
        for q in range(7):
            A(f"s_add_u32 s44, s46, {q}")
            A("s_cmp_ge_u32 s44, 7"); A("s_cselect_b32 s45, 7, 0"); A("s_sub_u32 s44, s44, s45")
            A(f"s_mul_i32 s{sBW+q}, s44, {2*BLKW}")
        A("s_cmp_eq_u32 s46, 6"); A("s_cselect_b32 s46, 0, s46")
        for q in range(6):
            A(f"s_add_u32 s44, s46, {q}")
            A("s_cmp_ge_u32 s44, 6"); A("s_cselect_b32 s45, 6, 0"); A("s_sub_u32 s44, s44, s45")
            A(f"s_mul_i32 s{sBW+7+q}, s44, {2*BLKW}")
            A(f"s_add_u32 s{sBW+7+q}, s{sBW+7+q}, {BLKW}")
        order = (0, 7, 1, 2, 3, 4, 5, 6, 8, 9, 10, 11, 12)
        n = 0
        for l in range(3):
            for k, pos in enumerate(order):
                if l == 0 and k < P.H0: continue
                A(f"s_add_u32 s40, s{sBW+pos}, {l*WLAYER}")
                A(f"buffer_load_dword v{8 + n % 16}, v2, s[16:19], s40 offen")
                A("s_waitcnt vmcnt(1)")
                n += 1
        A("s_waitcnt vmcnt(0)")
        A("L_hdone:")
    if P.stamps:
        A(f"s_mem{'real' if P.rt else ''}time s[{sST+2}:{sST+3}]")
        A("s_waitcnt lgkmcnt(0)")
        A(f"s_cmp_lg_u32 s{sWV}, 0")
        A("s_cbranch_scc1 L_end")
        A("s_mul_i32 s44, s2, 96")
        for i in range(12):
            k = 0 if i == 0 else 1
            A(f"v_mov_b32 v2, s{sST+2*k}"); A(f"v_mov_b32 v3, s{sST+2*k+1}"); A("v_mov_b32 v4, s44")
            A(f"buffer_store_dwordx2 v[2:3], v4, s[24:27], 0 offen offset:{8*i}")
            A("s_nop 2")
    A("s_endpgm")
    return e.text()

def main():
    out = sys.argv[1]
    for a in sys.argv[2:]:
        a = a.lstrip("-")
        if "=" in a:
            k, v = a.split("="); setattr(P, k, type(getattr(P, k))(int(v)))
        else:
            setattr(P, a, True)
    k = NAME + "_kernel"
    T = []
    T.append(f"; @launch grid=(256,1,1) block=(256,1,1) lds={LDS_BYTES}")
    if P.stamps: T.append("; @stamps nwg=256 per=12" + (" @rt" if P.rt else "") + " @fused")
    T.append('.amdgcn_target "amdgcn-amd-amdhsa--gfx950"')
    T.append(".text"); T.append(f".globl {k}"); T.append(".p2align 8"); T.append(f".type {k},@function"); T.append(f"{k}:")
    A = T.append
    A("s_cmp_ge_u32 s2, 256"); A("s_cbranch_scc1 L_end")
    A("s_load_dwordx8 s[4:11], s[0:1], 0")
    A("s_load_dwordx4 s[12:15], s[0:1], 32")
    A("s_and_b32 s44, s2, 7")
    A(f"s_lshr_b32 s{sCQ}, s2, 6")
    A(f"s_bfe_u32 s{sJ}, s2, 0x30003")
    A(f"s_lshl_b32 s{sC}, s{sCQ}, 3"); A(f"s_add_u32 s{sC}, s{sC}, s44")
    A("v_and_b32 v1, 63, v0"); A("v_lshrrev_b32 v2, 6, v0"); A("s_nop 0")
    A(f"v_readfirstlane_b32 s{sWV}, v2")
    for d, size in ((16, 3*WLAYER), (20, 4096*ROWB), (24, WS_BYTES), (28, 4096*ROWB), (32, 3*ROWB)):
        A(f"s_mov_b32 s{d+2}, {size}"); A(f"s_mov_b32 s{d+3}, 0x20000")
    A("s_waitcnt lgkmcnt(0)")
    for d, b in ((16, 6), (20, 4), (24, 14), (28, 10), (32, 8)):
        A(f"s_mov_b32 s{d}, s{b}"); A(f"s_mov_b32 s{d+1}, s{b+1}")
    A(f"s_cmp_eq_u32 s{sJ}, 7"); A("s_cbranch_scc1 L_helper")
    A(f"s_cmp_eq_u32 s{sJ}, 6"); A("s_cbranch_scc1 L_m6")
    T.append(gen_member(False))
    T.append(gen_member(True))
    T.append(gen_helper())
    T.append("L_end:"); T.append("s_endpgm")
    T.append('.section .rodata,"a"'); T.append(".p2align 6")
    T.append(f""".amdhsa_kernel {k}
  .amdhsa_next_free_vgpr 488
  .amdhsa_next_free_sgpr 100
  .amdhsa_accum_offset 256
  .amdhsa_group_segment_fixed_size 0
  .amdhsa_kernarg_size 48
  .amdhsa_user_sgpr_count 2
  .amdhsa_user_sgpr_kernarg_segment_ptr 1
  .amdhsa_system_sgpr_workgroup_id_x 1
  .amdhsa_float_denorm_mode_32 3
.end_amdhsa_kernel
""")
    open(out, "w").write("\n".join(T))

main()
```

```python
class Em:
    def __init__(self):
        self.L = []
        self.vm = []
        self.vm_done = 0
        self.lg = []
        self.lg_done = 0

    def A(self, s):
        self.L.append(s)

    def c(self, s):
        self.L.append("; " + s)

    def vmem(self, s, tag=None):
        self.L.append(s)
        self.vm.append(tag)

    def lds(self, s, tag=None):
        self.L.append(s)
        self.lg.append(tag)

    @staticmethod
    def _idx(lst, pred):
        idx = 0
        for i, t in enumerate(lst):
            if t is not None and pred(t):
                idx = i + 1
        return idx

    def wait(self, vm=None, lg=None):
        parts = []
        if vm is not None:
            idx = self._idx(self.vm, vm)
            if idx > self.vm_done:
                n = len(self.vm) - idx
                if n <= 63:
                    parts.append(f"vmcnt({n})")
                self.vm_done = idx
        if lg is not None:
            idx = self._idx(self.lg, lg)
            if idx > self.lg_done:
                n = len(self.lg) - idx
                if n > 15:
                    n = 15
                    idx = len(self.lg) - 15
                parts.append(f"lgkmcnt({n})")
                self.lg_done = idx
        if parts:
            self.L.append("s_waitcnt " + " ".join(parts))
            return True
        return False

    def wait_vm(self, pred):
        return self.wait(vm=pred)

    def wait_lg(self, pred):
        return self.wait(lg=pred)

    def wait_vm_all(self):
        self.L.append("s_waitcnt vmcnt(0)")
        self.vm_done = len(self.vm)

    def wait_lg_all(self):
        self.L.append("s_waitcnt lgkmcnt(0)")
        self.lg_done = len(self.lg)

    def text(self):
        return "\n".join(self.L) + "\n"
```

```python
import sys
from emit import Em

NAME = "standalone__cross_network_dcn__recsys"
ROWB = 1664
WLAYER = 832 * ROWB
BLKW = 64 * ROWB
KSW = 32 * ROWB
PAGE = 4096
NPAGES = 39
MISC = NPAGES * PAGE
LDS_BYTES = 163840
FLAG_BASE = 8 << 20
XREG0 = 16 << 20
XREG_STRIDE = 8 << 20
WS_BYTES = 32 << 20
ACC, X0F, PX, Y, BC = 32, 96, 160, 192, 224
vFL = 0
vST = 5
vNON = 6
vW = 8
vXS = 12
vXR = 16
vTR = 20
vXL, vZ, vCB, vBIAS, vFLAG, vFST = 26, 27, 28, 29, 30, 31
vDELTA = Y + 31
vOR = vXR
WB = 192
sRET = 0
sT0W = 3
sMODE, sHEL, sOWN, sBASE = 32, 33, 34, 35
sJ, sC, sWV, sCQ = 36, 37, 38, 39
sW1K, sXS = 41, 47
sNON = 48
sBW, sBX = 50, 63
sXL = 76
sT0X = 80
sSTM = 94
sX2 = 93
NSTAMP = 32

class P:
    stamps = False; rt = False
    GB = 4; NB = 3; YP = 4; ORD = 2
    BUD = 6; CRITX = 1
    MINLA = 10; HILA = 18
    XLAT = 4; ACK = 4
    POLL_E0 = 56; POLL_L0 = 19; ORD0 = 0; POLL_E = 46; POLL_L = 12; POLLW = 3
    helper = True; touch = True; fast = True
    XSH = 1; HX0 = True; HELLO = 20
    HP1 = True; H2 = 13; H0 = 13
    PREW = 4; PREX = 2; L0B = 7; WDL = 2; SL3 = 5; XF = 0; SF = 0; T0 = 1; ACK0 = 10; TW = 5; CONS = 28; CPF = True; OF = 0
    VC = 4
    fine = False

class Op:
    def __init__(self, kind, fn, req=(), give=(), at=0.0, cost=1, pre=None, name=""):
        self.kind, self.fn, self.req, self.give, self.at, self.cost, self.pre = kind, fn, set(req), set(give), at, cost, pre
        self.done = False; self.name = name; self.predone = False

class Prog:
    def __init__(self, m6, tag):
        self.m6 = m6; self.tag = tag
        self.e = Em(); self.ops = []; self.tokens = set()
        self.icount = 0; self.used = 0
        self.last_mfma = {}; self.last_valu = {}
        self.nstamp = 0; self.names = []
    def A(self, s):
        self.e.A(s); self.icount += 1; self.used += 1
    def vmem(self, s, tag=None):
        self.e.vmem(s, tag); self.icount += 1; self.used += P.VC
    def lds(self, s, tag=None):
        self.e.lds(s, tag); self.icount += 1; self.used += 1
    def wait(self, vm=None, lg=None):
        if self.e.wait(vm, lg): self.icount += 1; self.used += 1
    def pad(self, since, need):
        n = need - (self.icount - since)
        while n > 0:
            k = min(n, 16)
            self.e.A(f"s_nop {k-1}"); self.icount += k; self.used += k; n -= k
    def valu(self, s, writes=(), acc_tile=None):
        if acc_tile is not None and acc_tile in self.last_mfma:
            self.pad(self.last_mfma[acc_tile], 12)
        self.A(s)
        for r in writes: self.last_valu[r] = self.icount
    def stamp(self, name):
        if P.stamps and self.nstamp < NSTAMP:
            i = self.nstamp; self.nstamp += 1; self.names.append(name)
            self.e.A(f"s_mem{'real' if P.rt else ''}time s[{sSTM}:{sSTM+1}]")
            self.e.wait_lg_all()
            self.e.A(f"v_writelane_b32 v{vST}, s{sSTM}, {i}")
            self.icount += 3
    def add(self, *a, **k):
        o = Op(*a, **k); self.ops.append(o); return o
    def run(self, o):
        assert not o.done
        for t in o.req: self.ensure(t)
        if o.pre and not o.predone:
            o.pre(); self.A("s_nop 0")
        o.done = True
        o.fn()
        self.tokens |= o.give
    def ensure(self, tok):
        if tok in self.tokens: return
        cand = [o for o in self.ops if tok in o.give and not o.done]
        assert cand, f"no producer for {tok}"
        self.run(cand[0])
    def pick(self, now, kind):
        for o in self.ops:
            if not o.done and o.kind == kind and o.at <= now and o.req <= self.tokens:
                return o
        return None

def xreg(m6, pos, ks, s):
    o = 8*ks + 4*s
    if pos == 0:
        r = PX + o; return f"v[{r}:{r+3}]", ("v", r)
    if pos == 7 and not m6:
        r = PX + 16 + o; return f"v[{r}:{r+3}]", ("v", r)
    idx = pos - 1 if (m6 or pos < 7) else pos - 2
    r = 16*idx + o
    return f"a[{r}:{r+3}]", ("a", r)

def unit_list(m6):
    U = []
    for l in range(3):
        L = []
        B = lambda pos, H: [(l, pos, 0, H), (l, pos, 1, H)]
        if m6:
            for pos in range(13): L += B(pos, 0)
        elif l == 0:
            for pos in range(P.L0B): L += B(pos, 0) + B(pos, 1)
            for pos in range(P.L0B, 13): L += B(pos, 0)
            for pos in range(P.L0B, 13): L += B(pos, 1)
        else:
            ORD = P.ORD0 if l == 1 else P.ORD
            L += B(0, 0)
            for pos in range(1, 1 + ORD): L += B(pos, 0)
            L += B(0, 1) + B(7, 0) + B(7, 1)
            e1 = []
            for pos in range(1, 7): e1 += B(pos, 1)
            for pos in range(1 + ORD, 7): L += B(pos, 0)
            L += e1[:P.YP]
            for pos in range(8, 13): L += B(pos, 0)
            L += e1[P.YP:]
            for pos in range(8, 13): L += B(pos, 1)
        U += L
    return U

def tables(p):
    A = p.A
    for q in range(7):
        A(f"s_add_u32 s40, s{sJ}, {q}")
        A("s_sub_u32 s42, s40, 7"); A("s_min_u32 s40, s40, s42")
        A(f"s_mul_i32 s{sBW+q}, s40, {2*BLKW}")
        A(f"s_lshl_b32 s{sBX+q}, s40, 13")
    for q in range(6):
        if p.m6:
            A(f"s_mov_b32 s{sBW+7+q}, {(2*q+1)*BLKW}")
            A(f"s_mov_b32 s{sBX+7+q}, {(2*q+1)*4096}")
        else:
            A(f"s_add_u32 s40, s{sJ}, {q}")
            A("s_sub_u32 s42, s40, 6"); A("s_min_u32 s40, s40, s42")
            A("s_lshl_b32 s40, s40, 1"); A("s_or_b32 s40, s40, 1")
            A(f"s_mul_i32 s{sBW+7+q}, s40, {BLKW}")
            A(f"s_lshl_b32 s{sBX+7+q}, s40, 12")

def gen_member(m6):
    tag = "m6" if m6 else "mr"
    p = Prog(m6, tag); A = p.A; e = p.e
    U = unit_list(m6); NU = len(U); UL = NU // 3
    NB = P.NB
    XS0 = NPAGES - 4*NB
    halves = (0,) if m6 else (0, 1)
    own_pos = {0: 0, 1: 7}
    e.A(f"L_{tag}:")
    if P.stamps:
        e.A(f"s_mem{'real' if P.rt else ''}time s[96:97]"); p.nstamp = 1; p.names.append("start")
    A(f"s_lshl_b32 s{sW1K}, s{sWV}, 10")
    A(f"s_mul_i32 s{sXS}, s{sWV}, {NB*PAGE}")
    A(f"s_add_u32 s{sXS}, s{sXS}, {XS0*PAGE}")
    A(f"s_lshl_b32 s43, s{sC}, 2"); A(f"s_add_u32 s43, s43, s{sWV}")
    A(f"s_mul_i32 s46, s43, {32*ROWB}")
    A(f"s_min_u32 s45, s{sWV}, 2")
    A(f"s_mul_i32 s40, s45, {ROWB}")
    A(f"s_lshl_b32 s44, s{sJ}, 8"); A("s_add_u32 s40, s40, s44")
    A("v_lshlrev_b32 v6, 2, v1")
    p.vmem(f"buffer_load_dword v{Y}, v6, s[32:35], s40 offen", ("bias",))
    A("v_lshrrev_b32 v2, 3, v1"); A("v_and_b32 v3, 7, v1"); A("v_lshrrev_b32 v4, 4, v1")
    A("v_mul_u32_u24 v6, 1664, v2"); A("v_add_u32 v6, s46, v6")
    A("v_xor_b32 v7, v4, v3"); A(f"v_lshl_add_u32 v{vXS}, v7, 4, v6")
    A("v_xor_b32 v7, 4, v7"); A(f"v_lshl_add_u32 v{vXS+1}, v7, 4, v6"); A(f"v_add_u32 v{vXS+1}, {8*ROWB}, v{vXS+1}")
    A(f"v_add_u32 v{vXS+2}, {16*ROWB}, v{vXS}"); A(f"v_add_u32 v{vXS+3}, {16*ROWB}, v{vXS+1}")

    order0 = []
    for (l, pos, ks, H) in U[:UL]:
        if pos not in order0: order0.append(pos)
    n0 = {pos: n for n, pos in enumerate(order0)}
    free_pages = list(range(XS0))
    pending = []; page_of = {}
    st = {"next_w": 0, "landed": -1, "now": -1, "wl": 0}
    def w_can():
        return st["next_w"] < NU and bool(free_pages)
    def w_pre():
        v = st["next_w"]
        l = U[v][0]
        if l != st["wl"]:
            st["wl"] = l
            A(f"s_add_u32 s16, s16, {WLAYER}"); A("s_addc_u32 s17, s17, 0"); A(f"s_sub_u32 s18, s18, {WLAYER}")
            if l == 1:
                for i in range(4): A(f"v_add_u32 v{vW+i}, v{vDELTA}, v{vW+i}")
                p.tokens.add(("wswitch",))
        pg = free_pages.pop(0); page_of[v] = pg
        pending.append((pg, v))
        A(f"s_add_u32 m0, s{sW1K}, {pg*PAGE}")
    def w_go():
        v = st["next_w"]
        l, pos, ks, H = U[v]
        so = sT0W + n0[pos] if l == 0 else sBW + pos
        p.vmem(f"buffer_load_dwordx4 v{vW+2*ks+H}, s[16:19], s{so} offen lds", ("w", v))
        st["next_w"] += 1
    def w_dma():
        assert w_can(), "no free page"
        w_pre(); A("s_nop 0"); w_go()
    def w_rd(v, i, u):
        s, t = i // 2, i % 2
        off = page_of[v]*PAGE + s*2048 + u*1024
        d = WB + (v & 1)*16 + i*4 + 2*u
        p.lds(f"ds_read_b64_tr_b16 a[{d}:{d+1}], v{vTR+2*(off >> 16)+t} offset:{off & 0xffff}", ("w", v, i))
    def x0_pre(n, sp):
        A(f"s_add_u32 m0, s{sXS}, {(n % NB)*PAGE + sp*1024}")
    def x0_go(n, sp):
        p.vmem(f"buffer_load_dwordx4 v{vXS+sp}, s[20:23], s{sT0X+n} offen lds", ("x0", n))
    for sp in range(4):
        x0_pre(0, sp)
        if sp == 0:
            A("v_and_b32 v5, 1, v4"); A("v_lshlrev_b32 v5, 2, v5"); A("v_xor_b32 v5, v5, v3"); A("v_lshl_add_u32 v5, v5, 4, s44")
        elif sp == 1:
            A(f"s_lshr_b32 s42, s{sWV}, 1"); A("s_lshl_b32 s42, s42, 4"); A(f"s_and_b32 s40, s{sWV}, 1"); A("s_lshl_b32 s40, s40, 2")
            A("s_add_u32 s42, s42, s40")
            A("v_lshrrev_b32 v7, 5, v1")
        elif sp == 2:
            A("v_and_b32 v6, 3, v2"); A("v_lshl_add_u32 v6, v7, 3, v6"); A("v_add_u32 v6, s42, v6")
            A("v_mul_u32_u24 v6, 1664, v6"); A(f"v_add_u32 v{vW}, v5, v6")
        else:
            A(f"v_add_u32 v{vW+1}, 128, v{vW}"); A(f"v_add_u32 v{vW+2}, {KSW}, v{vW}"); A(f"v_add_u32 v{vW+3}, {KSW+128}, v{vW}")
        x0_go(0, sp)
    for i in range(P.PREW): w_dma()
    A(f"s_lshl_b32 s40, s{sWV}, 3")
    A("v_add_u32 v6, s40, v2"); A("v_mul_u32_u24 v6, 1664, v6"); A("v_add_u32 v6, v5, v6")
    A(f"v_sub_u32 v{vDELTA}, v6, v{vW}")
    A("s_lshl_b32 s44, s43, 7"); A(f"s_add_u32 s44, s44, {FLAG_BASE}")
    A(f"v_lshl_add_u32 v{vFLAG}, v3, 3, s44")
    A("v_min_u32 v5, 5, v1"); A("v_lshl_add_u32 v5, v5, 14, s44")
    p.vmem(f"buffer_load_dwordx2 v[{vNON}:{vNON+1}], v5, s[24:27], 0 offen sc1".replace(f"v[{vNON}:{vNON+1}]", f"v[{Y+8}:{Y+9}]"), ("non",))
    for n in range(1, P.PREX):
        for sp in range(4):
            x0_pre(n, sp); A("s_nop 0"); x0_go(n, sp)
    tables(p)
    A("s_lshl_b32 s45, s45, 9"); A(f"s_add_u32 s45, s45, {MISC}")
    A(f"v_lshl_add_u32 v{Y+4}, v1, 3, s45")
    A(f"v_lshlrev_b32 v{vBIAS}, 4, v7"); A(f"v_add_u32 v{vBIAS}, {MISC}, v{vBIAS}")
    A(f"s_lshl_b32 s45, s{sJ}, 3"); A("s_add_u32 s45, s45, s44")
    A("v_mov_b32 v5, 0x80000000"); A("v_mov_b32 v6, s45")
    A("v_cmp_eq_u32 vcc, 0, v1")
    A(f"v_lshl_add_u32 v{vXL}, v1, 4, s46")
    A("v_and_b32 v2, 31, v1")
    A(f"v_cndmask_b32 v{vFST}, v5, v6, vcc")
    A(f"v_bfe_u32 v{vZ}, v1, 1, 3"); A(f"v_lshl_add_u32 v2, v2, 7, s{sXS}")
    for s4 in range(4):
        A(f"v_add_u32 v6, {2*s4}, v7"); A(f"v_xor_b32 v6, v6, v{vZ}"); A(f"v_lshl_add_u32 v{vXR+s4}, v6, 4, v2")
    A(f"v_lshl_add_u32 v{vCB}, v7, 3, v2")
    A("v_bfe_u32 v3, v1, 2, 2")
    A("v_lshl_add_u32 v4, v7, 2, v3"); A("v_lshlrev_b32 v4, 7, v4")
    A("v_bfe_u32 v6, v1, 4, 1"); A("v_lshl_add_u32 v4, v6, 5, v4")
    A("v_and_b32 v6, 3, v1"); A("v_lshl_add_u32 v4, v6, 3, v4")
    A("v_lshrrev_b32 v3, 1, v3")
    for t in range(2):
        A(f"v_xor_b32 v6, {t}, v3"); A(f"v_lshl_add_u32 v{vTR+t}, v6, 6, v4")
        A(f"v_add_u32 v{vTR+2+t}, 0x10000, v{vTR+t}"); A(f"v_add_u32 v{vTR+4+t}, 0x20000, v{vTR+t}")
    A(f"s_cmp_eq_u32 s{sWV}, 0"); A("s_cselect_b32 s45, 1.0, 0")
    A(f"s_lshl_b32 s{sOWN}, s{sJ}, 8")
    A(f"s_getreg_b32 s{sHEL}, hwreg(HW_REG_XCC_ID, 0, 4)")
    A(f"s_mov_b32 s{sBASE}, s46")
    A("s_mov_b32 s46, 0x40000")
    if P.stamps:
        A("s_waitcnt lgkmcnt(0)"); A(f"v_writelane_b32 v{vST}, s96, 0")
    p.wait(vm=lambda t: t == ("bias",))
    A(f"v_lshlrev_b32 v{Y+2}, 16, v{Y}"); A(f"v_and_b32 v{Y+3}, 0xffff0000, v{Y}")
    A(f"v_add_f32 v{Y+2}, s45, v{Y+2}"); A(f"v_add_f32 v{Y+3}, s45, v{Y+3}")
    p.lds(f"ds_write_b64 v{Y+4}, v[{Y+2}:{Y+3}]", ("bw",))

    first_use = {}; last_use = {}; last_unit = {}; first_unit = {}
    for v, (l, pos, ks, H) in enumerate(U):
        first_use.setdefault((l, pos), v); last_use[(l, pos)] = v; last_unit[(l, H)] = v; first_unit.setdefault((l, H), v)
    def f():
        p.wait(vm=lambda t: t == ("non",))
        A(f"v_readlane_b32 s{sNON}, v{Y+8}, 3"); A(f"v_readlane_b32 s{sNON+1}, v{Y+9}, 3")
        A("s_nop 3")
        A(f"s_or_b32 s{sNON}, s{sNON}, 1"); A(f"s_add_u32 s{sNON}, s{sNON}, 2"); A(f"s_add_u32 s{sNON+1}, s{sNON+1}, 1")
        A(f"s_add_u32 s{sHEL}, s{sHEL}, s{sNON+1}"); A(f"s_add_u32 s{sHEL}, s{sHEL}, 16")
        A(f"v_mov_b32 v{vNON}, s{sNON}"); A(f"v_mov_b32 v{vNON+1}, s{sHEL}")
        A(f"s_mov_b32 s44, {4*16384}")
        p.vmem(f"buffer_store_dwordx2 v[{vNON}:{vNON+1}], v{vFST}, s[24:27], s44 offen sc1", ("hello",))
        A("s_nop 0")
        A(f"v_mov_b32 v{vNON+1}, s{sNON+1}")
    p.add("vmemh", f, give=[("hello",)], at=0, name="hello")
    for n, pos in enumerate(order0):
        for sp in range(4):
            if n < P.PREX:
                p.tokens.add(("x0d", n, sp)); continue
            def pre(n=n, sp=sp):
                if n >= NB:
                    p.wait(lg=lambda t: t[0] == "x" and t[1] == 0 and t[2] == order0[n-NB])
                x0_pre(n, sp)
            def f(n=n, sp=sp):
                x0_go(n, sp); st[("x0at", n)] = st["now"]
            p.add("vmem", f, pre=pre, req=([("x0rd", n-NB)] if n >= NB else []) + [("x0d", n, sp-1) if sp else ("x0d", n-1, 3)],
                  give=[("x0d", n, sp)], name=f"x0dma{n}").dl = first_use[(0, pos)] - P.XLAT - 1
        for s4 in range(4):
            def f(n=n, pos=pos, s4=s4):
                p.wait(vm=lambda t: t == ("x0", n))
                txt, _ = xreg(m6, pos, s4 // 2, s4 % 2)
                p.lds(f"ds_read_b128 {txt}, v{vXR+s4} offset:{(n % NB)*PAGE}", ("x", 0, pos, s4))
            give = [("x0f", n, s4)]
            if s4 == 3: give.append(("xi", 0, pos))
            o = p.add("lds", f, req=[("x0d", n, 3)] + ([("x0f", n, s4-1)] if s4 else []), give=give, name=f"x0rd{n}")
            o.x0n = n
        def f(n=n):
            for H in halves:
                lab = f"L_{tag}_nc{n}{H}"
                if H == 0: A(f"s_cmp_eq_u32 s{sT0X+n}, s{sOWN}")
                else:
                    A(f"s_sub_u32 s44, s{sT0X+n}, 128"); A(f"s_cmp_eq_u32 s44, s{sOWN}")
                A(f"s_cbranch_scc0 {lab}")
                e.A(f"v_add_u32 v3, {(n % NB)*PAGE}, v{vCB}")
                e.A(f"s_call_b64 s[{sRET}:{sRET+1}], L_{tag}_cap{H}")
                e.A(f"{lab}:")
        p.add("chk", f, req=[("xi", 0, pos), ("hello",)] + ([("x0rd", n-1)] if n else []), give=[("x0rd", n)], cost=3, name="capchk")
    def poll_load(off, key):
        A(f"s_mov_b32 s45, {off}")
        p.vmem(f"buffer_load_dwordx2 v[{vFL}:{vFL+1}], v{vFLAG}, s[24:27], s45 offen sc1", ("poll",) + key)
        st[("pollat",) + key] = st["now"]
    def poll_check(key, cmp_, mask):
        lab = f"L_{tag}_ok{key[0]}{key[1]}"; lp = f"L_{tag}_sp{key[0]}{key[1]}"
        if P.fine: p.stamp(f"chk{key}<")
        p.wait(vm=lambda t: t == ("poll",) + key)
        e.A(f"{lp}:")
        if cmp_ == "hello":
            A(f"v_subrev_u32 v2, s{sNON+1}, v{vFL+1}")
            A("v_lshrrev_b32 v2, 4, v2")
            A(f"v_xor_b32 v3, s{sNON}, v{vFL}")
            A("v_xor_b32 v2, 1, v2")
            A("v_or_b32 v2, v2, v3")
            A("v_cmp_eq_u32 vcc, 0, v2")
        else:
            A(cmp_)
        A("s_nop 1")
        A(f"s_and_b32 s44, vcc_lo, {mask}")
        A(f"s_cmp_eq_u32 s44, {mask}")
        A(f"s_cbranch_scc1 {lab}")
        e.A("s_sleep 1")
        e.A(f"buffer_load_dwordx2 v[{vFL}:{vFL+1}], v{vFLAG}, s[24:27], s45 offen sc1")
        e.A("s_sub_u32 s46, s46, 1")
        e.A("s_waitcnt vmcnt(0)")
        e.A(f"s_cbranch_scc0 {lp}")
        e.A(f"{lab}:")
        if P.fine: p.stamp(f"chk{key}>")
    p.add("vmemh", lambda: poll_load(4*16384, (9, 9)), req=[("hello",)], give=[("pi", 9, 9)], at=P.HELLO*UL/52.0, name="hpoll")
    def f():
        poll_check((9, 9), "hello", 0x7f)
        A(f"v_cmp_eq_u32 vcc, s{sHEL}, v{vFL+1}")
        A("s_nop 1")
        A("s_and_b32 s44, s44, vcc_lo")
        A("s_cmp_eq_u32 s44, 0x7f")
        A(f"s_cselect_b32 s{sMODE}, {1 if P.fast else 0}, 0")
        A(f"s_cselect_b32 s{sX2}, {0 if P.fast else XREG_STRIDE}, {XREG_STRIDE}")
    o = p.add("chk", f, req=[("pi", 9, 9)], give=[("mode",)], cost=3, name="hchk"); o.bh = (9, 9)

    def flag_store(idx, slow_touch):
        lab = f"L_{tag}_fl{idx}"
        A(f"s_mov_b32 s44, {idx*16384}")
        A(f"s_cmp_lg_u32 s{sMODE}, 0")
        A(f"s_cbranch_scc1 {lab}f")
        e.A(f"buffer_store_dwordx2 v[{vNON}:{vNON+1}], v{vFST}, s[24:27], s44 offen sc1")
        if slow_touch and P.touch:
            e.A(f"v_subrev_u32 v2, s{sBASE}, v{vXL}")
            e.A("v_and_b32 v2, 0x1f0, v2")
            e.A(f"v_lshl_add_u32 v2, v2, 3, s{sBASE}")
            e.A(f"s_add_u32 s40, s{sBX+own_pos[idx & 1]}, {XREG0 + XREG_STRIDE}")
            e.A("buffer_load_dword a224, v2, s[24:27], s40 offen sc1")
        e.A(f"s_branch {lab}j")
        e.A(f"{lab}f:")
        p.vmem(f"buffer_store_dwordx2 v[{vNON}:{vNON+1}], v{vFST}, s[24:27], s44 offen", ("fl", idx))
        e.A(f"{lab}j:")
    def f():
        p.wait(vm=lambda t: t == ("x", 1, 6, 3))
        flag_store(5, False)
    p.add("vmemh", f, req=[("udone", first_use[(1, 6)])], give=[("cons",)], name="cons")
    p.add("vmemh", lambda: poll_load(5*16384, (8, 8)), req=[("cons",), ("ok", 0, 1)], give=[("pi", 8, 8)], at=UL + P.CONS*UL/52.0, name="cpoll")
    o = p.add("chk", lambda: poll_check((8, 8), f"v_cmp_eq_u64 vcc, s[{sNON}:{sNON+1}], v[{vFL}:{vFL+1}]", 0x7f),
              req=[("pi", 8, 8)], give=[("ok", 8, 8)], cost=3, name="cchk"); o.bh = (8, 8)
    prev_crit = None
    prev_bc = None
    for l in range(3):
        for H in halves:
            lu = last_unit[(l, H)]
            if (l, H) != (0, 0):
                for q in range(8):
                    def f(l=l, H=H, q=q):
                        p.lds(f"ds_read_b128 v[{BC+4*q}:{BC+4*q+3}], v{vBIAS} offset:{l*512 + (64*H + 8*q)*4}", ("bc", l, H, q // 4))
                    p.add("lds", f, req=[("udone", prev_bc)] + ([("bcr", l, H, q-1)] if q else []), give=[("bcr", l, H, q)],
                          at=max(0, first_unit[(l, H)] - 8), name="bc")
            prev_bc = first_unit[(l, H)]
            if l > 0:
                for q in range(32):
                    def f(H=H, q=q):
                        if q % 2 == 0: A(f"v_lshlrev_b32 v{Y+q}, 16, v{PX+16*H+q//2}")
                        else: A(f"v_and_b32 v{Y+q}, 0xffff0000, v{PX+16*H+q//2}")
                    p.add("valu", f, req=[prev_crit, ("wswitch",)] + ([("yp", l, H, q-1)] if q else []), give=[("yp", l, H, q)], name="yprep")
            for q in range(48):
                g3, k = q // 3, q % 3
                def f(l=l, H=H, g3=g3, k=k):
                    a, b, c_ = X0F + 32*H + 2*g3, Y + 2*g3, ACC + 32*H + 2*g3
                    tile = 2*H + g3 // 8
                    if k == 2:
                        d = PX + 16*H + g3
                        p.valu(f"v_cvt_pk_bf16_f32 v{d}, v{c_}, v{c_+1}", writes=[d])
                    elif l == 0:
                        p.valu(f"v_mul_f32 v{c_+k}, v{a+k}, v{c_+k}", acc_tile=tile)
                    else:
                        p.valu(f"v_fma_f32 v{c_+k}, v{a+k}, v{c_+k}, v{b+k}", acc_tile=tile)
                give = [("cr", l, H, q)] + ([("crit", l, H)] if q == 47 else [])
                req = [("udone", lu), ("udone", last_use[(l, own_pos[H])])]
                req += [("yp", l, H, 31)] if l else [("x0rd", 12)]
                if prev_crit: req.append(prev_crit)
                p.add("crit", f, req=req + ([("cr", l, H, q-1)] if q else []), give=give, at=lu+1.25, name="crit")
            prev_crit = ("crit", l, H)
            src = PX + 16*H
            if l < 2:
                for q in range(4):
                    def f(l=l, H=H, q=q, src=src):
                        lab = f"L_{tag}_st{l}{H}{q}"
                        ins = f"buffer_store_dwordx4 v[{src+4*q}:{src+4*q+3}], v{vXL}, s[24:27], s43 offen offset:{q*1024}"
                        if q == 0:
                            A(f"s_add_u32 s43, s{sBX+own_pos[H]}, {XREG0}")
                            if l == 1: A(f"s_add_u32 s43, s43, s{sX2}")
                        if l == 0:
                            p.vmem(ins + " sc1", ("st", l, H))
                        else:
                            A(f"s_cmp_lg_u32 s{sMODE}, 0")
                            A(f"s_cbranch_scc1 {lab}f")
                            e.A(ins + " sc1")
                            e.A(f"s_branch {lab}j")
                            e.A(f"{lab}f:")
                            p.vmem(ins, ("st", l, H))
                            e.A(f"{lab}j:")
                        if q == 3: st[("stat", l, H)] = st["now"]
                    req = [("cr", l, H, 12*q+11)] + ([("st", l, H, q-1)] if q else [])
                    if l == 1: req += [("mode",), ("ok", 8, 8) if H == 0 else ("ok", 1, 0)]
                    p.add("vmemh", f, req=req, give=[("st", l, H, q)], name="store")
                def touch(H):
                    A(f"v_subrev_u32 v2, s{sBASE}, v{vXL}")
                    A("v_and_b32 v2, 0x1f0, v2")
                    A(f"v_lshl_add_u32 v2, v2, 3, s{sBASE}")
                    A(f"s_add_u32 s40, s{sBX+own_pos[H]}, {XREG0}")
                    return "buffer_load_dword a224, v2, s[24:27], s40 offen sc1"
                if l == 0 and P.T0 == 2:
                    def f(l=l, H=H):
                        p.wait(vm=lambda t: t == ("st", l, H))
                        p.vmem(touch(H), ("tch", l, H))
                        st[("tat", l, H)] = st["now"]
                    o = p.add("vmemh", f, req=[("st", l, H, 3)], give=[("tch", l, H)], name="touch"); o.lh = (l, H)
                def f(l=l, H=H):
                    p.wait(vm=lambda t: t == ("st", l, H) or t == ("tch", l, H))
                    if l == 0 and P.T0 == 1:
                        p.vmem(touch(H), ("tch", l, H))
                    flag_store(2*l+H, l == 1)
                if l == 0 and P.T0 == 2:
                    o = p.add("vmemh", f, req=[("tch", l, H), ("mode",)], give=[("sent", l, H)], name="flag"); o.th = (l, H)
                else:
                    o = p.add("vmemh", f, req=[("st", l, H, 3), ("mode",)], give=[("sent", l, H)], name="flag"); o.lh = (l, H)
            else:
                for ch in range(8):
                    def f(H=H, ch=ch, src=src):
                        if ch == 0:
                            p.wait(lg=lambda t: t[0] == "or")
                            if H == 0:
                                A(f"v_subrev_u32 v{vOR}, s{sBASE}, v{vXL}"); A(f"v_add_u32 v{vOR}, s{sXS}, v{vOR}")
                        A(f"v_xor_b32 v2, {ch}, v{vZ}"); A(f"v_lshl_add_u32 v2, v2, 4, v{vCB}")
                        p.lds(f"ds_write_b64 v2, v[{src+2*ch}:{src+2*ch+1}]", ("ow", H, ch))
                    p.add("lds", f, req=[("cr", 2, H, 6*ch+5)] + ([("ow", H, ch-1)] if ch else []), give=[("ow", H, ch)], cost=3, name="ow")
                dst = BC + 16*H
                for q in range(4):
                    def f(H=H, q=q, dst=dst):
                        p.wait(lg=lambda t: t[0] == "ow")
                        p.lds(f"ds_read_b128 v[{dst+4*q}:{dst+4*q+3}], v{vOR} offset:{q*1024}", ("or", H, q))
                    p.add("lds", f, req=[("ow", H, 7)] + ([("or", H, q-1)] if q else []), give=[("or", H, q)], name="or")
                for q in range(4):
                    def f(H=H, q=q, dst=dst):
                        p.wait(lg=lambda t: t == ("or", H, q))
                        if q == 0:
                            if H: A(f"s_add_u32 s43, s{sOWN}, 128")
                            else: A(f"s_mov_b32 s43, s{sOWN}")
                        p.vmem(f"buffer_store_dwordx4 v[{dst+4*q}:{dst+4*q+3}], v{vXS+q}, s[28:31], s43 offen{('', ' sc1', ' nt', ' sc0 sc1')[P.OF]}", ("ost", H))
                    p.add("vmemh", f, req=[("or", H, 3)] + ([("ost", H, q-1)] if q else []), give=[("ost", H, q)], name="ostore")
    prev = None
    for l in (1, 2):
        for H in (0, 1):
            b = l - 1
            poss = list(range(1, 7) if H == 0 else range(7 if m6 else 8, 13))
            scale = UL / 52.0
            at = (l-1)*UL + (P.POLL_E0 if l == 1 else P.POLL_E)*scale if H == 0 else l*UL + (P.POLL_L0 if l == 1 else P.POLL_L)*scale
            sent = [("sent", b, h) for h in halves if h <= H]
            p.add("vmemh", lambda b=b, H=H: poll_load((2*b+H)*16384, (b, H)),
                  req=sent + ([("ok", b, 0)] if H else []), give=[("pi", b, H)], at=at, name="poll")
            o = p.add("chk", lambda b=b, H=H: poll_check((b, H), f"v_cmp_eq_u64 vcc, s[{sNON}:{sNON+1}], v[{vFL}:{vFL+1}]", 0x7f if H == 0 else 0x3f),
                      req=[("pi", b, H)], give=[("ok", b, H)], cost=3, name="chk"); o.bh = (b, H)
            for pos in poss:
                for q in range(4):
                    def f(l=l, pos=pos, q=q, first=(l == 2 and H == 0 and pos == 1 and q == 0)):
                        if first:
                            A(f"s_add_u32 s{sXL}, s{sXL}, s{sX2}"); A(f"s_addc_u32 s{sXL+1}, s{sXL+1}, 0")
                        txt, _ = xreg(m6, pos, q // 2, q % 2)
                        p.vmem(f"buffer_load_dwordx4 {txt}, v{vXL}, s[{sXL}:{sXL+3}], s{sBX+pos} offen offset:{q*1024}{(' sc1', '', ' nt')[P.XF]}", ("x", l, pos, q))
                    give = [("xl", l, pos, q)] + ([("xi", l, pos)] if q == 3 else [])
                    p.add("vmem", f, req=[("ok", b, H), ("udone", last_use[(l-1, pos)])] + ([prev] if prev else []), give=give, name="xld").dl = first_use[(l, pos)] + q // 2 - 1
                    prev = ("xl", l, pos, q)

    def gates():
        for o in p.ops:
            if o.done: continue
            if hasattr(o, "lh"): o.at = st.get(("stat",) + o.lh, 1e9) + (P.ACK0 if o.lh[0] == 0 else P.ACK)
            elif hasattr(o, "th"): o.at = st.get(("tat",) + o.th, 1e9) + P.TW
            elif hasattr(o, "bh"): o.at = st.get(("pollat",) + o.bh, 1e9) + P.POLLW
            elif hasattr(o, "x0n"): o.at = st.get(("x0at", o.x0n), -2) + P.XLAT
    p.wait(lg=lambda t: t == ("bw",))
    p.stamp("setup")
    p.wait(vm=lambda t: t[0] == "w" and t[1] <= 1)
    A("s_barrier")
    st["landed"] = 1
    p.stamp("w01")
    for q in range(8):
        p.lds(f"ds_read_b128 v[{BC+4*q}:{BC+4*q+3}], v{vBIAS} offset:{32*q}", ("bc", 0, 0, q // 4))
        p.tokens.add(("bcr", 0, 0, q))
    for i in range(4):
        w_rd(0, i, 0); w_rd(0, i, 1)
    donated = False
    seen = set()
    plan = None
    for u, (l, pos, ks, H) in enumerate(U):
        e.c(f"---- unit {u}: layer {l} pos {pos} ks {ks} H {H}")
        st["now"] = u
        if u % UL == 0: p.stamp(f"L{l}")
        elif not m6 and u == last_unit[(l, 0)] + 1: p.stamp(f"L{l}C")
        elif P.fine and u % UL in (8, 20): p.stamp(f"u{u}")
        own = pos == 0 or (pos == 7 and not m6)
        if l == 0 or not own: p.ensure(("xi", l, pos))
        else: p.ensure(("crit", l-1, 0 if pos == 0 else 1))
        first = (l, H) not in seen
        seen.add((l, H))
        if first:
            if l > 0: p.ensure(("crit", l-1, H))
            p.ensure(("bcr", l, H, 7))
        need_bar = u + 1 < NU and u + 1 > st["landed"]
        upto = -1
        if need_bar:
            upto = min(u + (2 if u < 4 else P.GB), NU - 1)
            assert plan is None
            while st["next_w"] <= upto: w_dma()
        xs = {("x", l, pos, 2*ks), ("x", l, pos, 2*ks+1)}
        p.wait(vm=lambda t: (t[0] == "w" and t[1] <= upto) or (l > 0 and t in xs),
               lg=lambda t: (t[0] == "w" and t[1] == u) or (l == 0 and t in xs) or (first and t[:3] == ("bc", l, H)))
        if need_bar:
            A("s_barrier")
            st["landed"] = upto
            for it in list(pending):
                if it[1] <= u - 1:
                    free_pages.append(it[0]); pending.remove(it)
        if not donated and ("x0rd", 12) in p.tokens:
            p.wait(lg=lambda t: t[0] == "x" and t[1] == 0)
            for w in range(4):
                for i in range(1, NB): pending.append((XS0 + w*NB + i, u))
            donated = True
        for i in range(4):
            s, t = i // 2, i % 2
            now = u + i/4.0
            tile = 2*H + t
            txt, (kind, r) = xreg(m6, pos, ks, s)
            if kind == "v":
                p.pad(max(p.last_valu.get(x, -99) for x in range(r, r+4)), 2)
            a0 = WB + (u & 1)*16 + i*4
            acc = f"v[{ACC+16*tile}:{ACC+16*tile+15}]"
            cin = f"v[{BC+16*t}:{BC+16*t+15}]" if (first and s == 0) else acc
            A(f"v_mfma_f32_32x32x16_bf16 {acc}, a[{a0}:{a0+3}], {txt}, {cin}")
            p.last_mfma[tile] = p.icount
            p.used = 0
            if i == 3: p.tokens.add(("udone", u))
            gates()
            if plan is not None:
                if plan == "w": w_go()
                else: p.run(plan)
                plan = None
            if u + 1 < NU and i < 2:
                for k in range(2): w_rd(u+1, 2*i+k, 0); w_rd(u+1, 2*i+k, 1)
            bud = P.BUD - (1 if i == 3 else 0)
            third = False
            if i == 0:
                o = p.pick(now + 0.25, "vmem")
                dls = ([o.dl] if o is not None else []) + ([st["next_w"] - P.GB - P.WDL] if w_can() else [])
                third = bool(dls) and min(dls) - u < P.SL3
            if i in (1, 2) or third:
                nxt = now + 0.25
                la = st["next_w"] - u
                o = p.pick(nxt, "vmemh")
                urgent = p.pick(now, "crit") is not None
                if o is None:
                    o = p.pick(nxt, "vmem")
                    if w_can():
                        wdl = st["next_w"] - P.GB - P.WDL
                        if o is not None:
                            if wdl < o.dl: o = "w"
                        elif la < P.MINLA: o = "w"
                        elif not urgent:
                            backlog = p.pick(now, "valu") is not None or p.pick(now, "lds") is not None
                            if not (backlog and la >= P.HILA and i == 2): o = "w"
                plan = o
                bud -= 1 if (o == "w" or (o is not None and o.pre)) else 0
            while True:
                rem = bud - p.used
                o = p.pick(now, "crit")
                if o is not None and rem + P.CRITX >= 1:
                    p.run(o); continue
                got = False
                for kind_ in ("chk", "lds", "valu"):
                    o = p.pick(now, kind_)
                    if o is not None and rem >= 1 and o.cost <= rem + 2:
                        p.run(o); got = True; break
                if not got: break
            if plan == "w": w_pre()
            elif plan is not None and plan.pre:
                plan.pre(); plan.predone = True
    st["now"] = NU
    p.stamp("end")
    for o in p.ops:
        if not o.done: p.run(o)
    p.stamp("flush")
    if P.stamps:
        A("s_waitcnt vmcnt(0)")
        p.stamp("drain")
        while p.nstamp < NSTAMP:
            e.A(f"v_writelane_b32 v{vST}, s{sSTM}, {p.nstamp}"); p.nstamp += 1
        stamp_store(e)
    A("s_endpgm")
    for H in halves:
        e.A(f"L_{tag}_cap{H}:")
        for ch in range(8):
            e.A(f"v_xor_b32 v2, {ch}, v{vZ}"); e.A("v_lshl_add_u32 v2, v2, 4, v3")
            e.A(f"ds_read_b64 v[{Y+2*ch}:{Y+2*ch+1}], v2")
        for q in range(16):
            if q % 2 == 0: e.A(f"s_waitcnt lgkmcnt({7 - q//2})")
            e.A(f"v_lshlrev_b32 v{X0F+32*H+2*q}, 16, v{Y+q}")
            e.A(f"v_and_b32 v{X0F+32*H+2*q+1}, 0xffff0000, v{Y+q}")
        e.A(f"s_setpc_b64 s[{sRET}:{sRET+1}]")
    return e.text(), p.names

def stamp_store(e):
    A = e.A
    A(f"s_cmp_lg_u32 s{sWV}, 0"); A("s_cbranch_scc1 L_end")
    A("v_mbcnt_lo_u32_b32 v2, -1, 0"); A("v_mbcnt_hi_u32_b32 v2, -1, v2")
    A("v_lshlrev_b32 v2, 2, v2"); A("s_lshl_b32 s44, s2, 8")
    A(f"buffer_store_dword v{vST}, v2, s[24:27], s44 offen")

def gen_helper():
    e = Em(); A = e.A
    A("L_helper:")
    n = [0]
    def stamp():
        if P.stamps:
            A(f"s_mem{'real' if P.rt else ''}time s[{sSTM}:{sSTM+1}]"); A("s_waitcnt lgkmcnt(0)")
            A(f"v_writelane_b32 v{vST}, s{sSTM}, {n[0]}"); n[0] += 1
    stamp()
    def item_loop(name, first, last, stride, start_expr, depth):
        for x in start_expr: A(x)
        A(f"s_add_u32 s50, s50, {first}")
        A(f"L_{name}:")
        A(f"s_cmp_ge_u32 s50, {last}"); A(f"s_cbranch_scc1 L_{name}_done")
        A("s_mul_i32 s51, s50, 5042"); A("s_lshr_b32 s51, s51, 16")
        A("s_mul_i32 s52, s51, 13"); A("s_sub_u32 s52, s50, s52")
        A("s_mul_i32 s53, s51, 5042"); A("s_lshr_b32 s53, s53, 16")
        A("s_mul_i32 s54, s53, 13"); A("s_sub_u32 s54, s51, s54")
        A("s_lshr_b32 s55, s52, 1")
        A("s_sub_u32 s56, s54, 1"); A("s_max_i32 s56, s56, 0")
        A("s_add_u32 s56, s56, s55")
        A("s_cmp_ge_u32 s56, 7"); A("s_cselect_b32 s57, 7, 0"); A("s_sub_u32 s56, s56, s57")
        A("s_lshl_b32 s56, s56, 1")
        A("s_sub_u32 s57, s54, 7"); A("s_max_i32 s57, s57, 0")
        A("s_cmp_eq_u32 s55, 6"); A("s_cselect_b32 s58, 0, s55")
        A("s_add_u32 s57, s57, s58")
        A("s_cmp_ge_u32 s57, 6"); A("s_cselect_b32 s58, 6, 0"); A("s_sub_u32 s57, s57, s58")
        A("s_lshl_b32 s57, s57, 1"); A("s_add_u32 s57, s57, 1")
        A("s_cmp_eq_u32 s54, 1"); A("s_cselect_b32 s56, s57, s56")
        A("s_cmp_ge_u32 s54, 8"); A("s_cselect_b32 s56, s57, s56")
        A(f"s_mul_i32 s56, s56, {BLKW}")
        A(f"s_mul_i32 s53, s53, {WLAYER}")
        A("s_lshl_b32 s52, s52, 7")
        A("s_add_u32 s40, s56, s53"); A("s_add_u32 s40, s40, s52")
        A("buffer_load_dword v8, v2, s[16:19], s40 offen")
        A(f"s_waitcnt vmcnt({depth})")
        A(f"s_add_u32 s50, s50, {stride}")
        A(f"s_branch L_{name}")
        A(f"L_{name}_done:")
    if P.CPF:
        A("s_getpc_b64 s[40:41]")
        A("L_pc:")
        A(f"s_sub_u32 s40, s40, L_pc-{NAME}_kernel"); A("s_subb_u32 s41, s41, 0")
        A(f"s_lshl_b32 s42, s{sCQ}, 2"); A(f"s_add_u32 s42, s42, s{sWV}"); A("s_lshl_b32 s42, s42, 13")
        A(f"s_cmp_ge_u32 s42, L_pc-{NAME}_kernel"); A("s_cbranch_scc1 L_cpf_done")
        A("v_lshl_add_u32 v3, v1, 7, s42")
        A(f"v_min_u32 v3, L_pc-{NAME}_kernel, v3")
        A("global_load_dword v9, v3, s[40:41]")
        A("L_cpf_done:")
    if P.helper:
        A("v_mul_u32_u24 v2, 1664, v1")
        if P.HX0:
            A(f"s_and_b32 s44, s{sWV}, 1"); A(f"s_lshl_b32 s45, s{sC}, 1"); A("s_add_u32 s44, s44, s45")
            A(f"s_mul_i32 s44, s44, {64*ROWB}")
            for r in range(3):
                A(f"s_cmp_ge_u32 s{sWV}, 2")
                A(f"s_cselect_b32 s45, s{sT0X+2*r+1}, s{sT0X+2*r}")
                A("s_add_u32 s40, s44, s45")
                A("buffer_load_dword v8, v2, s[20:23], s40 offen")
        if P.HP1:
            item_loop("hp1", 13*P.H0, 507, 128, [f"s_lshl_b32 s50, s{sC}, 2", f"s_add_u32 s50, s50, s{sWV}"], 1)
        if P.stamps: A("s_waitcnt vmcnt(0)")
        stamp()
        item_loop("hp2", 13*P.H2, 507, 16, [f"s_lshl_b32 s50, s{sCQ}, 2", f"s_add_u32 s50, s50, s{sWV}"], 1)
        A("s_waitcnt vmcnt(0)")
    stamp()
    if P.stamps:
        while n[0] < NSTAMP:
            A(f"v_writelane_b32 v{vST}, s{sSTM}, {n[0]}"); n[0] += 1
        stamp_store(e)
    A("s_endpgm")
    return e.text()

def main():
    out = sys.argv[1]
    for a in sys.argv[2:]:
        a = a.lstrip("-")
        if "=" in a:
            k, v = a.split("="); assert hasattr(P, k), k; setattr(P, k, type(getattr(P, k))(int(v)))
        else:
            assert hasattr(P, a), a; setattr(P, a, True)
    k = NAME + "_kernel"
    T = []
    A = T.append
    A('.amdgcn_target "amdgcn-amd-amdhsa--gfx950"')
    A(".text"); A(f".globl {k}"); A(".p2align 8"); A(f".type {k},@function"); A(f"{k}:")
    A("s_cmp_ge_u32 s2, 256"); A("s_cbranch_scc1 L_end")
    A("s_load_dwordx8 s[4:11], s[0:1], 0")
    A("s_load_dwordx2 s[14:15], s[0:1], 40")
    A("s_and_b32 s44, s2, 7")
    A(f"s_lshr_b32 s{sCQ}, s2, 6")
    A(f"s_bfe_u32 s{sJ}, s2, 0x30003")
    A(f"s_lshl_b32 s{sC}, s{sCQ}, 3"); A(f"s_add_u32 s{sC}, s{sC}, s44")
    A("v_and_b32 v1, 63, v0"); A("v_lshrrev_b32 v2, 6, v0"); A("s_nop 0")
    A(f"v_readfirstlane_b32 s{sWV}, v2")
    for d, size in ((16, 3*WLAYER), (20, 4096*ROWB), (24, WS_BYTES), (28, 4096*ROWB), (32, 3*ROWB), (sXL, XREG_STRIDE)):
        A(f"s_mov_b32 s{d+2}, {size}"); A(f"s_mov_b32 s{d+3}, 0x20000")
    A(f"s_mul_i32 s45, s{sCQ}, 3"); A(f"s_add_u32 s45, s45, s{sJ}")
    if P.XSH: A("s_add_u32 s45, s45, s44")
    A("s_lshl_b32 s45, s45, 1")
    A("s_mul_i32 s46, s45, 5042"); A("s_lshr_b32 s46, s46, 16"); A("s_mul_i32 s46, s46, 13")
    A("s_sub_u32 s45, s45, s46"); A(f"s_lshl_b32 s{sT0X}, s45, 7")
    for n in range(1, 13):
        A(f"s_add_u32 s45, s{sT0X+n-1}, 256"); A(f"s_sub_u32 s46, s45, {13*128}"); A(f"s_min_u32 s{sT0X+n}, s45, s46")
    A("s_waitcnt lgkmcnt(0)")
    for d, b in ((16, 6), (20, 4), (24, 14), (28, 10), (32, 8)):
        A(f"s_mov_b32 s{d}, s{b}"); A(f"s_mov_b32 s{d+1}, s{b+1}")
    A(f"s_add_u32 s{sXL}, s14, {XREG0}"); A(f"s_addc_u32 s{sXL+1}, s15, 0")
    A(f"s_cmp_eq_u32 s{sJ}, 7"); A("s_cbranch_scc1 L_helper")
    for n in range(13): A(f"s_mul_i32 s{sT0W+n}, s{sT0X+n}, 832")
    A(f"s_cmp_eq_u32 s{sJ}, 6"); A("s_cbranch_scc1 L_m6")
    t1, n1 = gen_member(False)
    t2, n2 = gen_member(True)
    T.append(t1); T.append(t2)
    T.append(gen_helper())
    A("L_end:"); A("s_endpgm")
    A('.section .rodata,"a"'); A(".p2align 6")
    A(f""".amdhsa_kernel {k}
  .amdhsa_next_free_vgpr 488
  .amdhsa_next_free_sgpr 100
  .amdhsa_accum_offset 256
  .amdhsa_group_segment_fixed_size 0
  .amdhsa_kernarg_size 48
  .amdhsa_user_sgpr_count 2
  .amdhsa_user_sgpr_kernarg_segment_ptr 1
  .amdhsa_system_sgpr_workgroup_id_x 1
  .amdhsa_float_denorm_mode_32 3
.end_amdhsa_kernel
""")
    H = [f"; @launch grid=(256,1,1) block=(256,1,1) lds={LDS_BYTES}"]
    if P.stamps:
        H.append("; @st32" + (" @rt" if P.rt else ""))
        H.append("; @names_reg " + " ".join(x.replace(" ", "") for x in n1))
        H.append("; @names_m6 " + " ".join(x.replace(" ", "") for x in n2))
    open(out, "w").write("\n".join(H + T))

main()
```

```python
import sys
from emit import Em

NAME = "standalone__cross_network_dcn__recsys"
ROWB = 1664
WLAYER = 832 * ROWB
BLKW = 64 * ROWB
KSW = 32 * ROWB
PAGE = 4096
NPAGES = 39
MISC = NPAGES * PAGE
LDS_BYTES = 163840
FLAG_BASE = 8 << 20
XREG0 = 16 << 20
XREG_STRIDE = 8 << 20
WS_BYTES = 32 << 20
ACC, X0F, PX, Y, BC = 32, 96, 160, 192, 224
vFL = 0
vST = 5
vNON = 6
vW = 8
vXS = 12
vXR = 16
vTR = 20
vXL, vZ, vCB, vBIAS, vFLAG, vFST = 26, 27, 28, 29, 30, 31
vDELTA = Y + 31
vOR = vXR
WB = 192
sRET = 0
sT0W = 3
sMODE, sHEL, sOWN, sBASE = 32, 33, 34, 35
sJ, sC, sWV, sCQ = 36, 37, 38, 39
sW1K, sXS = 41, 47
sNON = 48
sBW, sBX = 50, 63
sXL = 76
sT0X = 80
sSTM = 94
sX2 = 93
NSTAMP = 32

class P:
    stamps = False; rt = False
    GB = 4; NB = 3; YP = 4; ORD = 2
    BUD = 6; CRITX = 1
    MINLA = 10; HILA = 18
    XLAT = 4; ACK = 4
    POLL_E0 = 56; POLL_L0 = 19; ORD0 = 0; POLL_E = 46; POLL_L = 12; POLLW = 3
    helper = True; touch = True; fast = True
    XSH = 1; HX0 = True; HELLO = 20
    HP1 = True; H2 = 13; H0 = 13
    PREW = 4; PREX = 2; L0B = 7; WDL = 2; SL3 = 5; XF = 0; SF = 0; T0 = 1; ACK0 = 10; TW = 5; CONS = 28; CPF = True; OF = 1; dbg = False
    VC = 4
    fine = False

class Op:
    def __init__(self, kind, fn, req=(), give=(), at=0.0, cost=1, pre=None, name=""):
        self.kind, self.fn, self.req, self.give, self.at, self.cost, self.pre = kind, fn, set(req), set(give), at, cost, pre
        self.done = False; self.name = name; self.predone = False

class Prog:
    def __init__(self, m6, tag):
        self.m6 = m6; self.tag = tag
        self.e = Em(); self.ops = []; self.tokens = set()
        self.icount = 0; self.used = 0
        self.last_mfma = {}; self.last_valu = {}
        self.nstamp = 0; self.names = []
    def A(self, s):
        self.e.A(s); self.icount += 1; self.used += 1
    def vmem(self, s, tag=None):
        self.e.vmem(s, tag); self.icount += 1; self.used += P.VC
    def lds(self, s, tag=None):
        self.e.lds(s, tag); self.icount += 1; self.used += 1
    def wait(self, vm=None, lg=None):
        if self.e.wait(vm, lg): self.icount += 1; self.used += 1
    def pad(self, since, need):
        n = need - (self.icount - since)
        while n > 0:
            k = min(n, 16)
            self.e.A(f"s_nop {k-1}"); self.icount += k; self.used += k; n -= k
    def valu(self, s, writes=(), acc_tile=None):
        if acc_tile is not None and acc_tile in self.last_mfma:
            self.pad(self.last_mfma[acc_tile], 12)
        self.A(s)
        for r in writes: self.last_valu[r] = self.icount
    def stamp(self, name):
        if P.stamps and self.nstamp < NSTAMP:
            i = self.nstamp; self.nstamp += 1; self.names.append(name)
            self.e.A(f"s_mem{'real' if P.rt else ''}time s[{sSTM}:{sSTM+1}]")
            self.e.wait_lg_all()
            self.e.A(f"v_writelane_b32 v{vST}, s{sSTM}, {i}")
            self.icount += 3
    def add(self, *a, **k):
        o = Op(*a, **k); self.ops.append(o); return o
    def run(self, o):
        assert not o.done
        for t in o.req: self.ensure(t)
        if o.pre and not o.predone:
            o.pre(); self.A("s_nop 0")
        o.done = True
        o.fn()
        self.tokens |= o.give
    def ensure(self, tok):
        if tok in self.tokens: return
        cand = [o for o in self.ops if tok in o.give and not o.done]
        assert cand, f"no producer for {tok}"
        self.run(cand[0])
    def pick(self, now, kind):
        for o in self.ops:
            if not o.done and o.kind == kind and o.at <= now and o.req <= self.tokens:
                return o
        return None

def xreg(m6, pos, ks, s):
    o = 8*ks + 4*s
    if pos == 0:
        r = PX + o; return f"v[{r}:{r+3}]", ("v", r)
    if pos == 7 and not m6:
        r = PX + 16 + o; return f"v[{r}:{r+3}]", ("v", r)
    idx = pos - 1 if (m6 or pos < 7) else pos - 2
    r = 16*idx + o
    return f"a[{r}:{r+3}]", ("a", r)

def unit_list(m6):
    U = []
    for l in range(3):
        L = []
        B = lambda pos, H: [(l, pos, 0, H), (l, pos, 1, H)]
        if m6:
            for pos in range(13): L += B(pos, 0)
        elif l == 0:
            for pos in range(P.L0B): L += B(pos, 0) + B(pos, 1)
            for pos in range(P.L0B, 13): L += B(pos, 0)
            for pos in range(P.L0B, 13): L += B(pos, 1)
        else:
            ORD = P.ORD0 if l == 1 else P.ORD
            L += B(0, 0)
            for pos in range(1, 1 + ORD): L += B(pos, 0)
            L += B(0, 1) + B(7, 0) + B(7, 1)
            e1 = []
            for pos in range(1, 7): e1 += B(pos, 1)
            for pos in range(1 + ORD, 7): L += B(pos, 0)
            L += e1[:P.YP]
            for pos in range(8, 13): L += B(pos, 0)
            L += e1[P.YP:]
            for pos in range(8, 13): L += B(pos, 1)
        U += L
    return U

def tables(p):
    A = p.A
    for q in range(7):
        A(f"s_add_u32 s40, s{sJ}, {q}")
        A("s_sub_u32 s42, s40, 7"); A("s_min_u32 s40, s40, s42")
        A(f"s_mul_i32 s{sBW+q}, s40, {2*BLKW}")
        A(f"s_lshl_b32 s{sBX+q}, s40, 13")
    for q in range(6):
        if p.m6:
            A(f"s_mov_b32 s{sBW+7+q}, {(2*q+1)*BLKW}")
            A(f"s_mov_b32 s{sBX+7+q}, {(2*q+1)*4096}")
        else:
            A(f"s_add_u32 s40, s{sJ}, {q}")
            A("s_sub_u32 s42, s40, 6"); A("s_min_u32 s40, s40, s42")
            A("s_lshl_b32 s40, s40, 1"); A("s_or_b32 s40, s40, 1")
            A(f"s_mul_i32 s{sBW+7+q}, s40, {BLKW}")
            A(f"s_lshl_b32 s{sBX+7+q}, s40, 12")

def gen_member(m6):
    tag = "m6" if m6 else "mr"
    p = Prog(m6, tag); A = p.A; e = p.e
    U = unit_list(m6); NU = len(U); UL = NU // 3
    NB = P.NB
    XS0 = NPAGES - 4*NB
    halves = (0,) if m6 else (0, 1)
    own_pos = {0: 0, 1: 7}
    e.A(f"L_{tag}:")
    if P.stamps:
        e.A(f"s_mem{'real' if P.rt else ''}time s[96:97]"); p.nstamp = 1; p.names.append("start")
    A(f"s_lshl_b32 s{sW1K}, s{sWV}, 10")
    A(f"s_mul_i32 s{sXS}, s{sWV}, {NB*PAGE}")
    A(f"s_add_u32 s{sXS}, s{sXS}, {XS0*PAGE}")
    A(f"s_lshl_b32 s43, s{sC}, 2"); A(f"s_add_u32 s43, s43, s{sWV}")
    A(f"s_mul_i32 s46, s43, {32*ROWB}")
    A(f"s_min_u32 s45, s{sWV}, 2")
    A(f"s_mul_i32 s40, s45, {ROWB}")
    A(f"s_lshl_b32 s44, s{sJ}, 8"); A("s_add_u32 s40, s40, s44")
    A("v_lshlrev_b32 v6, 2, v1")
    p.vmem(f"buffer_load_dword v{Y}, v6, s[32:35], s40 offen", ("bias",))
    A("v_lshrrev_b32 v2, 3, v1"); A("v_and_b32 v3, 7, v1"); A("v_lshrrev_b32 v4, 4, v1")
    A("v_mul_u32_u24 v6, 1664, v2"); A("v_add_u32 v6, s46, v6")
    A("v_xor_b32 v7, v4, v3"); A(f"v_lshl_add_u32 v{vXS}, v7, 4, v6")
    A("v_xor_b32 v7, 4, v7"); A(f"v_lshl_add_u32 v{vXS+1}, v7, 4, v6"); A(f"v_add_u32 v{vXS+1}, {8*ROWB}, v{vXS+1}")
    A(f"v_add_u32 v{vXS+2}, {16*ROWB}, v{vXS}"); A(f"v_add_u32 v{vXS+3}, {16*ROWB}, v{vXS+1}")

    order0 = []
    for (l, pos, ks, H) in U[:UL]:
        if pos not in order0: order0.append(pos)
    n0 = {pos: n for n, pos in enumerate(order0)}
    free_pages = list(range(XS0))
    pending = []; page_of = {}
    st = {"next_w": 0, "landed": -1, "now": -1, "wl": 0}
    def w_can():
        return st["next_w"] < NU and bool(free_pages)
    def w_pre():
        v = st["next_w"]
        l = U[v][0]
        if l != st["wl"]:
            st["wl"] = l
            A(f"s_add_u32 s16, s16, {WLAYER}"); A("s_addc_u32 s17, s17, 0"); A(f"s_sub_u32 s18, s18, {WLAYER}")
            if l == 1:
                for i in range(4): A(f"v_add_u32 v{vW+i}, v{vDELTA}, v{vW+i}")
                p.tokens.add(("wswitch",))
        pg = free_pages.pop(0); page_of[v] = pg
        pending.append((pg, v))
        A(f"s_add_u32 m0, s{sW1K}, {pg*PAGE}")
    def w_go():
        v = st["next_w"]
        l, pos, ks, H = U[v]
        so = sT0W + n0[pos] if l == 0 else sBW + pos
        p.vmem(f"buffer_load_dwordx4 v{vW+2*ks+H}, s[16:19], s{so} offen lds", ("w", v))
        st["next_w"] += 1
    def w_dma():
        assert w_can(), "no free page"
        w_pre(); A("s_nop 0"); w_go()
    def w_rd(v, i, u):
        s, t = i // 2, i % 2
        off = page_of[v]*PAGE + s*2048 + u*1024
        d = WB + (v & 1)*16 + i*4 + 2*u
        p.lds(f"ds_read_b64_tr_b16 a[{d}:{d+1}], v{vTR+2*(off >> 16)+t} offset:{off & 0xffff}", ("w", v, i))
    def x0_pre(n, sp):
        A(f"s_add_u32 m0, s{sXS}, {(n % NB)*PAGE + sp*1024}")
    def x0_go(n, sp):
        p.vmem(f"buffer_load_dwordx4 v{vXS+sp}, s[20:23], s{sT0X+n} offen lds", ("x0", n))
    for sp in range(4):
        x0_pre(0, sp)
        if sp == 0:
            A("v_and_b32 v5, 1, v4"); A("v_lshlrev_b32 v5, 2, v5"); A("v_xor_b32 v5, v5, v3"); A("v_lshl_add_u32 v5, v5, 4, s44")
        elif sp == 1:
            A(f"s_lshr_b32 s42, s{sWV}, 1"); A("s_lshl_b32 s42, s42, 4"); A(f"s_and_b32 s40, s{sWV}, 1"); A("s_lshl_b32 s40, s40, 2")
            A("s_add_u32 s42, s42, s40")
            A("v_lshrrev_b32 v7, 5, v1")
        elif sp == 2:
            A("v_and_b32 v6, 3, v2"); A("v_lshl_add_u32 v6, v7, 3, v6"); A("v_add_u32 v6, s42, v6")
            A("v_mul_u32_u24 v6, 1664, v6"); A(f"v_add_u32 v{vW}, v5, v6")
        else:
            A(f"v_add_u32 v{vW+1}, 128, v{vW}"); A(f"v_add_u32 v{vW+2}, {KSW}, v{vW}"); A(f"v_add_u32 v{vW+3}, {KSW+128}, v{vW}")
        x0_go(0, sp)
    for i in range(P.PREW): w_dma()
    A(f"s_lshl_b32 s40, s{sWV}, 3")
    A("v_add_u32 v6, s40, v2"); A("v_mul_u32_u24 v6, 1664, v6"); A("v_add_u32 v6, v5, v6")
    A(f"v_sub_u32 v{vDELTA}, v6, v{vW}")
    A("s_lshl_b32 s44, s43, 7"); A(f"s_add_u32 s44, s44, {FLAG_BASE}")
    A(f"v_lshl_add_u32 v{vFLAG}, v3, 3, s44")
    A("v_min_u32 v5, 5, v1"); A("v_lshl_add_u32 v5, v5, 14, s44")
    p.vmem(f"buffer_load_dwordx2 v[{vNON}:{vNON+1}], v5, s[24:27], 0 offen sc1".replace(f"v[{vNON}:{vNON+1}]", f"v[{Y+8}:{Y+9}]"), ("non",))
    for n in range(1, P.PREX):
        for sp in range(4):
            x0_pre(n, sp); A("s_nop 0"); x0_go(n, sp)
    tables(p)
    A("s_lshl_b32 s45, s45, 9"); A(f"s_add_u32 s45, s45, {MISC}")
    A(f"v_lshl_add_u32 v{Y+4}, v1, 3, s45")
    A(f"v_lshlrev_b32 v{vBIAS}, 4, v7"); A(f"v_add_u32 v{vBIAS}, {MISC}, v{vBIAS}")
    A(f"s_lshl_b32 s45, s{sJ}, 3"); A("s_add_u32 s45, s45, s44")
    A("v_mov_b32 v5, 0x80000000"); A("v_mov_b32 v6, s45")
    A("v_cmp_eq_u32 vcc, 0, v1")
    A(f"v_lshl_add_u32 v{vXL}, v1, 4, s46")
    A("v_and_b32 v2, 31, v1")
    A(f"v_cndmask_b32 v{vFST}, v5, v6, vcc")
    A(f"v_bfe_u32 v{vZ}, v1, 1, 3"); A(f"v_lshl_add_u32 v2, v2, 7, s{sXS}")
    for s4 in range(4):
        A(f"v_add_u32 v6, {2*s4}, v7"); A(f"v_xor_b32 v6, v6, v{vZ}"); A(f"v_lshl_add_u32 v{vXR+s4}, v6, 4, v2")
    A(f"v_lshl_add_u32 v{vCB}, v7, 3, v2")
    A("v_bfe_u32 v3, v1, 2, 2")
    A("v_lshl_add_u32 v4, v7, 2, v3"); A("v_lshlrev_b32 v4, 7, v4")
    A("v_bfe_u32 v6, v1, 4, 1"); A("v_lshl_add_u32 v4, v6, 5, v4")
    A("v_and_b32 v6, 3, v1"); A("v_lshl_add_u32 v4, v6, 3, v4")
    A("v_lshrrev_b32 v3, 1, v3")
    for t in range(2):
        A(f"v_xor_b32 v6, {t}, v3"); A(f"v_lshl_add_u32 v{vTR+t}, v6, 6, v4")
        A(f"v_add_u32 v{vTR+2+t}, 0x10000, v{vTR+t}"); A(f"v_add_u32 v{vTR+4+t}, 0x20000, v{vTR+t}")
    A(f"s_cmp_eq_u32 s{sWV}, 0"); A("s_cselect_b32 s45, 1.0, 0")
    A(f"s_lshl_b32 s{sOWN}, s{sJ}, 8")
    A(f"s_getreg_b32 s{sHEL}, hwreg(HW_REG_XCC_ID, 0, 4)")
    A(f"s_mov_b32 s{sBASE}, s46")
    A("s_mov_b32 s46, 0x40000")
    if P.stamps:
        A("s_waitcnt lgkmcnt(0)"); A(f"v_writelane_b32 v{vST}, s96, 0")
    p.wait(vm=lambda t: t == ("bias",))
    A(f"v_lshlrev_b32 v{Y+2}, 16, v{Y}"); A(f"v_and_b32 v{Y+3}, 0xffff0000, v{Y}")
    A(f"v_add_f32 v{Y+2}, s45, v{Y+2}"); A(f"v_add_f32 v{Y+3}, s45, v{Y+3}")
    p.lds(f"ds_write_b64 v{Y+4}, v[{Y+2}:{Y+3}]", ("bw",))

    first_use = {}; last_use = {}; last_unit = {}; first_unit = {}
    for v, (l, pos, ks, H) in enumerate(U):
        first_use.setdefault((l, pos), v); last_use[(l, pos)] = v; last_unit[(l, H)] = v; first_unit.setdefault((l, H), v)
    def f():
        p.wait(vm=lambda t: t == ("non",))
        A(f"v_readlane_b32 s{sNON}, v{Y+8}, 3"); A(f"v_readlane_b32 s{sNON+1}, v{Y+9}, 3")
        A("s_nop 3")
        A(f"s_or_b32 s{sNON}, s{sNON}, 1"); A(f"s_add_u32 s{sNON}, s{sNON}, 2"); A(f"s_add_u32 s{sNON+1}, s{sNON+1}, 1")
        A(f"s_add_u32 s{sHEL}, s{sHEL}, s{sNON+1}"); A(f"s_add_u32 s{sHEL}, s{sHEL}, 16")
        A(f"v_mov_b32 v{vNON}, s{sNON}"); A(f"v_mov_b32 v{vNON+1}, s{sHEL}")
        A(f"s_mov_b32 s44, {4*16384}")
        p.vmem(f"buffer_store_dwordx2 v[{vNON}:{vNON+1}], v{vFST}, s[24:27], s44 offen sc1", ("hello",))
        A("s_nop 0")
        A(f"v_mov_b32 v{vNON+1}, s{sNON+1}")
    p.add("vmemh", f, give=[("hello",)], at=0, name="hello")
    for n, pos in enumerate(order0):
        for sp in range(4):
            if n < P.PREX:
                p.tokens.add(("x0d", n, sp)); continue
            def pre(n=n, sp=sp):
                if n >= NB:
                    p.wait(lg=lambda t: t[0] == "x" and t[1] == 0 and t[2] == order0[n-NB])
                x0_pre(n, sp)
            def f(n=n, sp=sp):
                x0_go(n, sp); st[("x0at", n)] = st["now"]
            p.add("vmem", f, pre=pre, req=([("x0rd", n-NB)] if n >= NB else []) + [("x0d", n, sp-1) if sp else ("x0d", n-1, 3)],
                  give=[("x0d", n, sp)], name=f"x0dma{n}").dl = first_use[(0, pos)] - P.XLAT - 1
        for s4 in range(4):
            def f(n=n, pos=pos, s4=s4):
                p.wait(vm=lambda t: t == ("x0", n))
                txt, _ = xreg(m6, pos, s4 // 2, s4 % 2)
                p.lds(f"ds_read_b128 {txt}, v{vXR+s4} offset:{(n % NB)*PAGE}", ("x", 0, pos, s4))
            give = [("x0f", n, s4)]
            if s4 == 3: give.append(("xi", 0, pos))
            o = p.add("lds", f, req=[("x0d", n, 3)] + ([("x0f", n, s4-1)] if s4 else []), give=give, name=f"x0rd{n}")
            o.x0n = n
        def f(n=n):
            for H in halves:
                lab = f"L_{tag}_nc{n}{H}"
                if H == 0: A(f"s_cmp_eq_u32 s{sT0X+n}, s{sOWN}")
                else:
                    A(f"s_sub_u32 s44, s{sT0X+n}, 128"); A(f"s_cmp_eq_u32 s44, s{sOWN}")
                A(f"s_cbranch_scc0 {lab}")
                e.A(f"v_add_u32 v3, {(n % NB)*PAGE}, v{vCB}")
                e.A(f"s_call_b64 s[{sRET}:{sRET+1}], L_{tag}_cap{H}")
                e.A(f"{lab}:")
        p.add("chk", f, req=[("xi", 0, pos), ("hello",)] + ([("x0rd", n-1)] if n else []), give=[("x0rd", n)], cost=3, name="capchk")
    def poll_load(off, key):
        A(f"s_mov_b32 s45, {off}")
        p.vmem(f"buffer_load_dwordx2 v[{vFL}:{vFL+1}], v{vFLAG}, s[24:27], s45 offen sc1", ("poll",) + key)
        st[("pollat",) + key] = st["now"]
    def poll_check(key, cmp_, mask):
        lab = f"L_{tag}_ok{key[0]}{key[1]}"; lp = f"L_{tag}_sp{key[0]}{key[1]}"
        if P.fine: p.stamp(f"chk{key}<")
        p.wait(vm=lambda t: t == ("poll",) + key)
        e.A(f"{lp}:")
        if cmp_ == "hello":
            A(f"v_subrev_u32 v2, s{sNON+1}, v{vFL+1}")
            A("v_lshrrev_b32 v2, 4, v2")
            A(f"v_xor_b32 v3, s{sNON}, v{vFL}")
            A("v_xor_b32 v2, 1, v2")
            A("v_or_b32 v2, v2, v3")
            A("v_cmp_eq_u32 vcc, 0, v2")
        else:
            A(cmp_)
        A("s_nop 1")
        A(f"s_and_b32 s44, vcc_lo, {mask}")
        A(f"s_cmp_eq_u32 s44, {mask}")
        A(f"s_cbranch_scc1 {lab}")
        e.A("s_sleep 1")
        e.A(f"buffer_load_dwordx2 v[{vFL}:{vFL+1}], v{vFLAG}, s[24:27], s45 offen sc1")
        e.A("s_sub_u32 s46, s46, 1")
        e.A("s_waitcnt vmcnt(0)")
        e.A(f"s_cbranch_scc0 {lp}")
        e.A(f"{lab}:")
        if P.fine: p.stamp(f"chk{key}>")
    p.add("vmemh", lambda: poll_load(4*16384, (9, 9)), req=[("hello",)], give=[("pi", 9, 9)], at=P.HELLO*UL/52.0, name="hpoll")
    def f():
        poll_check((9, 9), "hello", 0x7f)
        A(f"v_cmp_eq_u32 vcc, s{sHEL}, v{vFL+1}")
        A("s_nop 1")
        A("s_and_b32 s44, s44, vcc_lo")
        A("s_cmp_eq_u32 s44, 0x7f")
        A(f"s_cselect_b32 s{sMODE}, {1 if P.fast else 0}, 0")
        A(f"s_cselect_b32 s{sX2}, {0 if P.fast else XREG_STRIDE}, {XREG_STRIDE}")
    o = p.add("chk", f, req=[("pi", 9, 9)], give=[("mode",)], cost=3, name="hchk"); o.bh = (9, 9)

    def flag_store(idx, slow_touch):
        lab = f"L_{tag}_fl{idx}"
        A(f"s_mov_b32 s44, {idx*16384}")
        A(f"s_cmp_lg_u32 s{sMODE}, 0")
        A(f"s_cbranch_scc1 {lab}f")
        e.A(f"buffer_store_dwordx2 v[{vNON}:{vNON+1}], v{vFST}, s[24:27], s44 offen sc1")
        if slow_touch and P.touch:
            e.A(f"v_subrev_u32 v2, s{sBASE}, v{vXL}")
            e.A("v_and_b32 v2, 0x1f0, v2")
            e.A(f"v_lshl_add_u32 v2, v2, 3, s{sBASE}")
            e.A(f"s_add_u32 s40, s{sBX+own_pos[idx & 1]}, {XREG0 + XREG_STRIDE}")
            e.A("buffer_load_dword a224, v2, s[24:27], s40 offen sc1")
        e.A(f"s_branch {lab}j")
        e.A(f"{lab}f:")
        p.vmem(f"buffer_store_dwordx2 v[{vNON}:{vNON+1}], v{vFST}, s[24:27], s44 offen", ("fl", idx))
        e.A(f"{lab}j:")
    def f():
        p.wait(vm=lambda t: t == ("x", 1, 6, 3))
        flag_store(5, False)
    p.add("vmemh", f, req=[("udone", first_use[(1, 6)])], give=[("cons",)], name="cons")
    p.add("vmemh", lambda: poll_load(5*16384, (8, 8)), req=[("cons",), ("ok", 0, 1)], give=[("pi", 8, 8)], at=UL + P.CONS*UL/52.0, name="cpoll")
    o = p.add("chk", lambda: poll_check((8, 8), f"v_cmp_eq_u64 vcc, s[{sNON}:{sNON+1}], v[{vFL}:{vFL+1}]", 0x7f),
              req=[("pi", 8, 8)], give=[("ok", 8, 8)], cost=3, name="cchk"); o.bh = (8, 8)
    prev_crit = None
    prev_bc = None
    for l in range(3):
        for H in halves:
            lu = last_unit[(l, H)]
            if (l, H) != (0, 0):
                for q in range(8):
                    def f(l=l, H=H, q=q):
                        p.lds(f"ds_read_b128 v[{BC+4*q}:{BC+4*q+3}], v{vBIAS} offset:{l*512 + (64*H + 8*q)*4}", ("bc", l, H, q // 4))
                    p.add("lds", f, req=[("udone", prev_bc)] + ([("bcr", l, H, q-1)] if q else []), give=[("bcr", l, H, q)],
                          at=max(0, first_unit[(l, H)] - 8), name="bc")
            prev_bc = first_unit[(l, H)]
            if l > 0:
                for q in range(32):
                    def f(H=H, q=q):
                        if q % 2 == 0: A(f"v_lshlrev_b32 v{Y+q}, 16, v{PX+16*H+q//2}")
                        else: A(f"v_and_b32 v{Y+q}, 0xffff0000, v{PX+16*H+q//2}")
                    p.add("valu", f, req=[prev_crit, ("wswitch",)] + ([("yp", l, H, q-1)] if q else []), give=[("yp", l, H, q)], name="yprep")
            for q in range(48):
                g3, k = q // 3, q % 3
                def f(l=l, H=H, g3=g3, k=k):
                    a, b, c_ = X0F + 32*H + 2*g3, Y + 2*g3, ACC + 32*H + 2*g3
                    tile = 2*H + g3 // 8
                    if k == 2:
                        d = PX + 16*H + g3
                        p.valu(f"v_cvt_pk_bf16_f32 v{d}, v{c_}, v{c_+1}", writes=[d])
                    elif l == 0:
                        p.valu(f"v_mul_f32 v{c_+k}, v{a+k}, v{c_+k}", acc_tile=tile)
                    else:
                        p.valu(f"v_fma_f32 v{c_+k}, v{a+k}, v{c_+k}, v{b+k}", acc_tile=tile)
                give = [("cr", l, H, q)] + ([("crit", l, H)] if q == 47 else [])
                req = [("udone", lu), ("udone", last_use[(l, own_pos[H])])]
                req += [("yp", l, H, 31)] if l else [("x0rd", 12)]
                if prev_crit: req.append(prev_crit)
                p.add("crit", f, req=req + ([("cr", l, H, q-1)] if q else []), give=give, at=lu+1.25, name="crit")
            prev_crit = ("crit", l, H)
            src = PX + 16*H
            if l < 2:
                for q in range(4):
                    def f(l=l, H=H, q=q, src=src):
                        lab = f"L_{tag}_st{l}{H}{q}"
                        ins = f"buffer_store_dwordx4 v[{src+4*q}:{src+4*q+3}], v{vXL}, s[24:27], s43 offen offset:{q*1024}"
                        if q == 0:
                            A(f"s_add_u32 s43, s{sBX+own_pos[H]}, {XREG0}")
                            if l == 1: A(f"s_add_u32 s43, s43, s{sX2}")
                        if l == 0:
                            p.vmem(ins + " sc1", ("st", l, H))
                        else:
                            A(f"s_cmp_lg_u32 s{sMODE}, 0")
                            A(f"s_cbranch_scc1 {lab}f")
                            e.A(ins + " sc1")
                            e.A(f"s_branch {lab}j")
                            e.A(f"{lab}f:")
                            p.vmem(ins, ("st", l, H))
                            e.A(f"{lab}j:")
                        if q == 3: st[("stat", l, H)] = st["now"]
                    req = [("cr", l, H, 12*q+11)] + ([("st", l, H, q-1)] if q else [])
                    if l == 1: req += [("mode",), ("ok", 8, 8) if H == 0 else ("ok", 1, 0)]
                    p.add("vmemh", f, req=req, give=[("st", l, H, q)], name="store")
                def touch(H):
                    A(f"v_subrev_u32 v2, s{sBASE}, v{vXL}")
                    A("v_and_b32 v2, 0x1f0, v2")
                    A(f"v_lshl_add_u32 v2, v2, 3, s{sBASE}")
                    A(f"s_add_u32 s40, s{sBX+own_pos[H]}, {XREG0}")
                    return "buffer_load_dword a224, v2, s[24:27], s40 offen sc1"
                if l == 0 and P.T0 == 2:
                    def f(l=l, H=H):
                        p.wait(vm=lambda t: t == ("st", l, H))
                        p.vmem(touch(H), ("tch", l, H))
                        st[("tat", l, H)] = st["now"]
                    o = p.add("vmemh", f, req=[("st", l, H, 3)], give=[("tch", l, H)], name="touch"); o.lh = (l, H)
                def f(l=l, H=H):
                    p.wait(vm=lambda t: t == ("st", l, H) or t == ("tch", l, H))
                    if l == 0 and P.T0 == 1:
                        p.vmem(touch(H), ("tch", l, H))
                    flag_store(2*l+H, l == 1)
                if l == 0 and P.T0 == 2:
                    o = p.add("vmemh", f, req=[("tch", l, H), ("mode",)], give=[("sent", l, H)], name="flag"); o.th = (l, H)
                else:
                    o = p.add("vmemh", f, req=[("st", l, H, 3), ("mode",)], give=[("sent", l, H)], name="flag"); o.lh = (l, H)
            else:
                for ch in range(8):
                    def f(H=H, ch=ch, src=src):
                        if ch == 0:
                            p.wait(lg=lambda t: t[0] == "or")
                            if H == 0:
                                A(f"v_subrev_u32 v{vOR}, s{sBASE}, v{vXL}"); A(f"v_add_u32 v{vOR}, s{sXS}, v{vOR}")
                        A(f"v_xor_b32 v2, {ch}, v{vZ}"); A(f"v_lshl_add_u32 v2, v2, 4, v{vCB}")
                        p.lds(f"ds_write_b64 v2, v[{src+2*ch}:{src+2*ch+1}]", ("ow", H, ch))
                    p.add("lds", f, req=[("cr", 2, H, 6*ch+5)] + ([("ow", H, ch-1)] if ch else []), give=[("ow", H, ch)], cost=3, name="ow")
                dst = BC + 16*H
                for q in range(4):
                    def f(H=H, q=q, dst=dst):
                        p.wait(lg=lambda t: t[0] == "ow")
                        p.lds(f"ds_read_b128 v[{dst+4*q}:{dst+4*q+3}], v{vOR} offset:{q*1024}", ("or", H, q))
                    p.add("lds", f, req=[("ow", H, 7)] + ([("or", H, q-1)] if q else []), give=[("or", H, q)], name="or")
                for q in range(4):
                    def f(H=H, q=q, dst=dst):
                        p.wait(lg=lambda t: t == ("or", H, q))
                        if q == 0:
                            if H: A(f"s_add_u32 s43, s{sOWN}, 128")
                            else: A(f"s_mov_b32 s43, s{sOWN}")
                        p.vmem(f"buffer_store_dwordx4 v[{dst+4*q}:{dst+4*q+3}], v{vXS+q}, s[28:31], s43 offen{('', ' sc1', ' nt', ' sc0 sc1')[P.OF]}", ("ost", H))
                    p.add("vmemh", f, req=[("or", H, 3)] + ([("ost", H, q-1)] if q else []), give=[("ost", H, q)], name="ostore")
    prev = None
    for l in (1, 2):
        for H in (0, 1):
            b = l - 1
            poss = list(range(1, 7) if H == 0 else range(7 if m6 else 8, 13))
            scale = UL / 52.0
            at = (l-1)*UL + (P.POLL_E0 if l == 1 else P.POLL_E)*scale if H == 0 else l*UL + (P.POLL_L0 if l == 1 else P.POLL_L)*scale
            sent = [("sent", b, h) for h in halves if h <= H]
            p.add("vmemh", lambda b=b, H=H: poll_load((2*b+H)*16384, (b, H)),
                  req=sent + ([("ok", b, 0)] if H else []), give=[("pi", b, H)], at=at, name="poll")
            o = p.add("chk", lambda b=b, H=H: poll_check((b, H), f"v_cmp_eq_u64 vcc, s[{sNON}:{sNON+1}], v[{vFL}:{vFL+1}]", 0x7f if H == 0 else 0x3f),
                      req=[("pi", b, H)], give=[("ok", b, H)], cost=3, name="chk"); o.bh = (b, H)
            for pos in poss:
                for q in range(4):
                    def f(l=l, pos=pos, q=q, first=(l == 2 and H == 0 and pos == 1 and q == 0)):
                        if first:
                            A(f"s_add_u32 s{sXL}, s{sXL}, s{sX2}"); A(f"s_addc_u32 s{sXL+1}, s{sXL+1}, 0")
                        txt, _ = xreg(m6, pos, q // 2, q % 2)
                        p.vmem(f"buffer_load_dwordx4 {txt}, v{vXL}, s[{sXL}:{sXL+3}], s{sBX+pos} offen offset:{q*1024}{(' sc1', '', ' nt')[P.XF]}", ("x", l, pos, q))
                    give = [("xl", l, pos, q)] + ([("xi", l, pos)] if q == 3 else [])
                    p.add("vmem", f, req=[("ok", b, H), ("udone", last_use[(l-1, pos)])] + ([prev] if prev else []), give=give, name="xld").dl = first_use[(l, pos)] + q // 2 - 1
                    prev = ("xl", l, pos, q)

    def gates():
        for o in p.ops:
            if o.done: continue
            if hasattr(o, "lh"): o.at = st.get(("stat",) + o.lh, 1e9) + (P.ACK0 if o.lh[0] == 0 else P.ACK)
            elif hasattr(o, "th"): o.at = st.get(("tat",) + o.th, 1e9) + P.TW
            elif hasattr(o, "bh"): o.at = st.get(("pollat",) + o.bh, 1e9) + P.POLLW
            elif hasattr(o, "x0n"): o.at = st.get(("x0at", o.x0n), -2) + P.XLAT
    p.wait(lg=lambda t: t == ("bw",))
    p.stamp("setup")
    p.wait(vm=lambda t: t[0] == "w" and t[1] <= 1)
    A("s_barrier")
    st["landed"] = 1
    p.stamp("w01")
    for q in range(8):
        p.lds(f"ds_read_b128 v[{BC+4*q}:{BC+4*q+3}], v{vBIAS} offset:{32*q}", ("bc", 0, 0, q // 4))
        p.tokens.add(("bcr", 0, 0, q))
    for i in range(4):
        w_rd(0, i, 0); w_rd(0, i, 1)
    donated = False
    seen = set()
    plan = None
    for u, (l, pos, ks, H) in enumerate(U):
        e.c(f"---- unit {u}: layer {l} pos {pos} ks {ks} H {H}")
        st["now"] = u
        if u % UL == 0: p.stamp(f"L{l}")
        elif not m6 and u == last_unit[(l, 0)] + 1: p.stamp(f"L{l}C")
        elif P.fine and u % UL in (8, 20): p.stamp(f"u{u}")
        own = pos == 0 or (pos == 7 and not m6)
        if l == 0 or not own: p.ensure(("xi", l, pos))
        else: p.ensure(("crit", l-1, 0 if pos == 0 else 1))
        first = (l, H) not in seen
        seen.add((l, H))
        if first:
            if l > 0: p.ensure(("crit", l-1, H))
            p.ensure(("bcr", l, H, 7))
        need_bar = u + 1 < NU and u + 1 > st["landed"]
        upto = -1
        if need_bar:
            upto = min(u + (2 if u < 4 else P.GB), NU - 1)
            assert plan is None
            while st["next_w"] <= upto: w_dma()
        xs = {("x", l, pos, 2*ks), ("x", l, pos, 2*ks+1)}
        p.wait(vm=lambda t: (t[0] == "w" and t[1] <= upto) or (l > 0 and t in xs),
               lg=lambda t: (t[0] == "w" and t[1] == u) or (l == 0 and t in xs) or (first and t[:3] == ("bc", l, H)))
        if need_bar:
            A("s_barrier")
            st["landed"] = upto
            for it in list(pending):
                if it[1] <= u - 1:
                    free_pages.append(it[0]); pending.remove(it)
        if not donated and ("x0rd", 12) in p.tokens:
            p.wait(lg=lambda t: t[0] == "x" and t[1] == 0)
            for w in range(4):
                for i in range(1, NB): pending.append((XS0 + w*NB + i, u))
            donated = True
        for i in range(4):
            s, t = i // 2, i % 2
            now = u + i/4.0
            tile = 2*H + t
            txt, (kind, r) = xreg(m6, pos, ks, s)
            if kind == "v":
                p.pad(max(p.last_valu.get(x, -99) for x in range(r, r+4)), 2)
            a0 = WB + (u & 1)*16 + i*4
            acc = f"v[{ACC+16*tile}:{ACC+16*tile+15}]"
            cin = f"v[{BC+16*t}:{BC+16*t+15}]" if (first and s == 0) else acc
            A(f"v_mfma_f32_32x32x16_bf16 {acc}, a[{a0}:{a0+3}], {txt}, {cin}")
            p.last_mfma[tile] = p.icount
            p.used = 0
            if i == 3: p.tokens.add(("udone", u))
            gates()
            if plan is not None:
                if plan == "w": w_go()
                else: p.run(plan)
                plan = None
            if u + 1 < NU and i < 2:
                for k in range(2): w_rd(u+1, 2*i+k, 0); w_rd(u+1, 2*i+k, 1)
            bud = P.BUD - (1 if i == 3 else 0)
            third = False
            if i == 0:
                o = p.pick(now + 0.25, "vmem")
                dls = ([o.dl] if o is not None else []) + ([st["next_w"] - P.GB - P.WDL] if w_can() else [])
                third = bool(dls) and min(dls) - u < P.SL3
            if i in (1, 2) or third:
                nxt = now + 0.25
                la = st["next_w"] - u
                o = p.pick(nxt, "vmemh")
                urgent = p.pick(now, "crit") is not None
                if o is None:
                    o = p.pick(nxt, "vmem")
                    if w_can():
                        wdl = st["next_w"] - P.GB - P.WDL
                        if o is not None:
                            if wdl < o.dl: o = "w"
                        elif la < P.MINLA: o = "w"
                        elif not urgent:
                            backlog = p.pick(now, "valu") is not None or p.pick(now, "lds") is not None
                            if not (backlog and la >= P.HILA and i == 2): o = "w"
                plan = o
                bud -= 1 if (o == "w" or (o is not None and o.pre)) else 0
            while True:
                rem = bud - p.used
                o = p.pick(now, "crit")
                if o is not None and rem + P.CRITX >= 1:
                    p.run(o); continue
                got = False
                for kind_ in ("chk", "lds", "valu"):
                    o = p.pick(now, kind_)
                    if o is not None and rem >= 1 and o.cost <= rem + 2:
                        p.run(o); got = True; break
                if not got: break
            if plan == "w": w_pre()
            elif plan is not None and plan.pre:
                plan.pre(); plan.predone = True
    st["now"] = NU
    p.stamp("end")
    for o in p.ops:
        if not o.done: p.run(o)
    p.stamp("flush")
    if P.stamps:
        A("s_waitcnt vmcnt(0)")
        p.stamp("drain")
        while p.nstamp < NSTAMP:
            e.A(f"v_writelane_b32 v{vST}, s{sSTM}, {p.nstamp}"); p.nstamp += 1
        stamp_store(e)
    if P.dbg and not m6:
        A("s_waitcnt vmcnt(0)")
        A("s_memtime s[40:41]"); A("s_memrealtime s[42:43]"); A("s_waitcnt lgkmcnt(0)")
        A("s_sub_u32 s40, s40, s96"); A("s_sub_u32 s42, s42, s100")
        A("s_and_b32 s44, s2, 0xf8"); A(f"s_or_b32 s44, s44, s{sWV}"); A("s_cmp_lg_u32 s44, 0"); A("s_cbranch_scc1 L_end")
        A("s_lshl_b32 s44, s2, 3")
        A("v_mov_b32 v2, s40"); A("v_mov_b32 v3, s42"); A("v_mov_b32 v4, s44")
        A("global_store_dwordx2 v4, v[2:3], s[98:99]")
    A("s_endpgm")
    for H in halves:
        e.A(f"L_{tag}_cap{H}:")
        for ch in range(8):
            e.A(f"v_xor_b32 v2, {ch}, v{vZ}"); e.A("v_lshl_add_u32 v2, v2, 4, v3")
            e.A(f"ds_read_b64 v[{Y+2*ch}:{Y+2*ch+1}], v2")
        for q in range(16):
            if q % 2 == 0: e.A(f"s_waitcnt lgkmcnt({7 - q//2})")
            e.A(f"v_lshlrev_b32 v{X0F+32*H+2*q}, 16, v{Y+q}")
            e.A(f"v_and_b32 v{X0F+32*H+2*q+1}, 0xffff0000, v{Y+q}")
        e.A(f"s_setpc_b64 s[{sRET}:{sRET+1}]")
    return e.text(), p.names

def stamp_store(e):
    A = e.A
    A(f"s_cmp_lg_u32 s{sWV}, 0"); A("s_cbranch_scc1 L_end")
    A("v_mbcnt_lo_u32_b32 v2, -1, 0"); A("v_mbcnt_hi_u32_b32 v2, -1, v2")
    A("v_lshlrev_b32 v2, 2, v2"); A("s_lshl_b32 s44, s2, 8")
    A(f"buffer_store_dword v{vST}, v2, s[24:27], s44 offen")

def gen_helper():
    e = Em(); A = e.A
    A("L_helper:")
    n = [0]
    def stamp():
        if P.stamps:
            A(f"s_mem{'real' if P.rt else ''}time s[{sSTM}:{sSTM+1}]"); A("s_waitcnt lgkmcnt(0)")
            A(f"v_writelane_b32 v{vST}, s{sSTM}, {n[0]}"); n[0] += 1
    stamp()
    def item_loop(name, first, last, stride, start_expr, depth):
        for x in start_expr: A(x)
        A(f"s_add_u32 s50, s50, {first}")
        A(f"L_{name}:")
        A(f"s_cmp_ge_u32 s50, {last}"); A(f"s_cbranch_scc1 L_{name}_done")
        A("s_mul_i32 s51, s50, 5042"); A("s_lshr_b32 s51, s51, 16")
        A("s_mul_i32 s52, s51, 13"); A("s_sub_u32 s52, s50, s52")
        A("s_mul_i32 s53, s51, 5042"); A("s_lshr_b32 s53, s53, 16")
        A("s_mul_i32 s54, s53, 13"); A("s_sub_u32 s54, s51, s54")
        A("s_lshr_b32 s55, s52, 1")
        A("s_sub_u32 s56, s54, 1"); A("s_max_i32 s56, s56, 0")
        A("s_add_u32 s56, s56, s55")
        A("s_cmp_ge_u32 s56, 7"); A("s_cselect_b32 s57, 7, 0"); A("s_sub_u32 s56, s56, s57")
        A("s_lshl_b32 s56, s56, 1")
        A("s_sub_u32 s57, s54, 7"); A("s_max_i32 s57, s57, 0")
        A("s_cmp_eq_u32 s55, 6"); A("s_cselect_b32 s58, 0, s55")
        A("s_add_u32 s57, s57, s58")
        A("s_cmp_ge_u32 s57, 6"); A("s_cselect_b32 s58, 6, 0"); A("s_sub_u32 s57, s57, s58")
        A("s_lshl_b32 s57, s57, 1"); A("s_add_u32 s57, s57, 1")
        A("s_cmp_eq_u32 s54, 1"); A("s_cselect_b32 s56, s57, s56")
        A("s_cmp_ge_u32 s54, 8"); A("s_cselect_b32 s56, s57, s56")
        A(f"s_mul_i32 s56, s56, {BLKW}")
        A(f"s_mul_i32 s53, s53, {WLAYER}")
        A("s_lshl_b32 s52, s52, 7")
        A("s_add_u32 s40, s56, s53"); A("s_add_u32 s40, s40, s52")
        A("buffer_load_dword v8, v2, s[16:19], s40 offen")
        A(f"s_waitcnt vmcnt({depth})")
        A(f"s_add_u32 s50, s50, {stride}")
        A(f"s_branch L_{name}")
        A(f"L_{name}_done:")
    if P.CPF:
        A("s_getpc_b64 s[40:41]")
        A("L_pc:")
        A(f"s_sub_u32 s40, s40, L_pc-{NAME}_kernel"); A("s_subb_u32 s41, s41, 0")
        A(f"s_lshl_b32 s42, s{sCQ}, 2"); A(f"s_add_u32 s42, s42, s{sWV}"); A("s_lshl_b32 s42, s42, 13")
        A(f"s_cmp_ge_u32 s42, L_pc-{NAME}_kernel"); A("s_cbranch_scc1 L_cpf_done")
        A("v_lshl_add_u32 v3, v1, 7, s42")
        A(f"v_min_u32 v3, L_pc-{NAME}_kernel, v3")
        A("global_load_dword v9, v3, s[40:41]")
        A("L_cpf_done:")
    if P.helper:
        A("v_mul_u32_u24 v2, 1664, v1")
        if P.HX0:
            A(f"s_and_b32 s44, s{sWV}, 1"); A(f"s_lshl_b32 s45, s{sC}, 1"); A("s_add_u32 s44, s44, s45")
            A(f"s_mul_i32 s44, s44, {64*ROWB}")
            for r in range(3):
                A(f"s_cmp_ge_u32 s{sWV}, 2")
                A(f"s_cselect_b32 s45, s{sT0X+2*r+1}, s{sT0X+2*r}")
                A("s_add_u32 s40, s44, s45")
                A("buffer_load_dword v8, v2, s[20:23], s40 offen")
        if P.HP1:
            item_loop("hp1", 13*P.H0, 507, 128, [f"s_lshl_b32 s50, s{sC}, 2", f"s_add_u32 s50, s50, s{sWV}"], 1)
        if P.stamps: A("s_waitcnt vmcnt(0)")
        stamp()
        item_loop("hp2", 13*P.H2, 507, 16, [f"s_lshl_b32 s50, s{sCQ}, 2", f"s_add_u32 s50, s50, s{sWV}"], 1)
        A("s_waitcnt vmcnt(0)")
    stamp()
    if P.stamps:
        while n[0] < NSTAMP:
            A(f"v_writelane_b32 v{vST}, s{sSTM}, {n[0]}"); n[0] += 1
        stamp_store(e)
    A("s_endpgm")
    return e.text()

def main():
    out = sys.argv[1]
    for a in sys.argv[2:]:
        a = a.lstrip("-")
        if "=" in a:
            k, v = a.split("="); assert hasattr(P, k), k; setattr(P, k, type(getattr(P, k))(int(v)))
        else:
            assert hasattr(P, a), a; setattr(P, a, True)
    k = NAME + "_kernel"
    T = []
    A = T.append
    A('.amdgcn_target "amdgcn-amd-amdhsa--gfx950"')
    A(".text"); A(f".globl {k}"); A(".p2align 8"); A(f".type {k},@function"); A(f"{k}:")
    A("s_cmp_ge_u32 s2, 256"); A("s_cbranch_scc1 L_end")
    A("s_load_dwordx8 s[4:11], s[0:1], 0")
    A("s_load_dwordx2 s[14:15], s[0:1], 40")
    if P.dbg:
        A("s_load_dwordx2 s[98:99], s[0:1], 32"); A("s_memtime s[96:97]"); A("s_memrealtime s[100:101]")
    A("s_and_b32 s44, s2, 7")
    A(f"s_lshr_b32 s{sCQ}, s2, 6")
    A(f"s_bfe_u32 s{sJ}, s2, 0x30003")
    A(f"s_lshl_b32 s{sC}, s{sCQ}, 3"); A(f"s_add_u32 s{sC}, s{sC}, s44")
    A("v_and_b32 v1, 63, v0"); A("v_lshrrev_b32 v2, 6, v0"); A("s_nop 0")
    A(f"v_readfirstlane_b32 s{sWV}, v2")
    for d, size in ((16, 3*WLAYER), (20, 4096*ROWB), (24, WS_BYTES), (28, 4096*ROWB), (32, 3*ROWB), (sXL, XREG_STRIDE)):
        A(f"s_mov_b32 s{d+2}, {size}"); A(f"s_mov_b32 s{d+3}, 0x20000")
    A(f"s_mul_i32 s45, s{sCQ}, 3"); A(f"s_add_u32 s45, s45, s{sJ}")
    if P.XSH: A("s_add_u32 s45, s45, s44")
    A("s_lshl_b32 s45, s45, 1")
    A("s_mul_i32 s46, s45, 5042"); A("s_lshr_b32 s46, s46, 16"); A("s_mul_i32 s46, s46, 13")
    A("s_sub_u32 s45, s45, s46"); A(f"s_lshl_b32 s{sT0X}, s45, 7")
    for n in range(1, 13):
        A(f"s_add_u32 s45, s{sT0X+n-1}, 256"); A(f"s_sub_u32 s46, s45, {13*128}"); A(f"s_min_u32 s{sT0X+n}, s45, s46")
    A("s_waitcnt lgkmcnt(0)")
    for d, b in ((16, 6), (20, 4), (24, 14), (28, 10), (32, 8)):
        A(f"s_mov_b32 s{d}, s{b}"); A(f"s_mov_b32 s{d+1}, s{b+1}")
    A(f"s_add_u32 s{sXL}, s14, {XREG0}"); A(f"s_addc_u32 s{sXL+1}, s15, 0")
    A(f"s_cmp_eq_u32 s{sJ}, 7"); A("s_cbranch_scc1 L_helper")
    for n in range(13): A(f"s_mul_i32 s{sT0W+n}, s{sT0X+n}, 832")
    A(f"s_cmp_eq_u32 s{sJ}, 6"); A("s_cbranch_scc1 L_m6")
    t1, n1 = gen_member(False)
    t2, n2 = gen_member(True)
    T.append(t1); T.append(t2)
    T.append(gen_helper())
    A("L_end:"); A("s_endpgm")
    A('.section .rodata,"a"'); A(".p2align 6")
    A(f""".amdhsa_kernel {k}
  .amdhsa_next_free_vgpr 488
  .amdhsa_next_free_sgpr 102
  .amdhsa_accum_offset 256
  .amdhsa_group_segment_fixed_size 0
  .amdhsa_kernarg_size 48
  .amdhsa_user_sgpr_count 2
  .amdhsa_user_sgpr_kernarg_segment_ptr 1
  .amdhsa_system_sgpr_workgroup_id_x 1
  .amdhsa_float_denorm_mode_32 3
.end_amdhsa_kernel
""")
    H = [f"; @launch grid=(256,1,1) block=(256,1,1) lds={LDS_BYTES}"]
    if P.stamps:
        H.append("; @st32" + (" @rt" if P.rt else ""))
        H.append("; @names_reg " + " ".join(x.replace(" ", "") for x in n1))
        H.append("; @names_m6 " + " ".join(x.replace(" ", "") for x in n2))
    open(out, "w").write("\n".join(H + T))

main()
```

```python
import sys
from emit import Em

NAME = "standalone__cross_network_dcn__recsys"
ROWB = 1664
WLAYER = 832 * ROWB
BLKW = 64 * ROWB
KSW = 32 * ROWB
PAGE = 4096
NPAGES = 39
MISC = NPAGES * PAGE
LDS_BYTES = 163840
FLAG_BASE = 8 << 20
XREG0 = 16 << 20
XREG_STRIDE = 8 << 20
WS_BYTES = 32 << 20
ACC, X0F, PX, Y, BC = 32, 96, 160, 192, 224
vFL = 0
vST = 5
vNON = 6
vW = 8
vXS = 12
vXR = 16
vTR = 20
vXL, vZ, vCB, vBIAS, vFLAG, vFST = 26, 27, 28, 29, 30, 31
vDELTA = Y + 31
vOR = vXR
WB = 192
sRET = 0
sT0W = 3
sMODE, sHEL, sOWN, sBASE = 32, 33, 34, 35
sJ, sC, sWV, sCQ = 36, 37, 38, 39
sW1K, sXS = 41, 47
sNON = 48
sBW, sBX = 50, 63
sXL = 76
sT0X = 80
sSTM = 94
sX2 = 93
NSTAMP = 32

class P:
    stamps = False; rt = False
    GB = 4; NB = 3; YP = 4; ORD = 2
    BUD = 6; CRITX = 1
    MINLA = 10; HILA = 18
    XLAT = 4; ACK = 4
    POLL_E0 = 56; POLL_L0 = 19; ORD0 = 0; POLL_E = 46; POLL_L = 12; POLLW = 3
    helper = True; touch = True; fast = True
    XSH = 1; HX0 = True; HELLO = 20
    HP1 = True; H2 = 13; H0 = 13
    PREW = 4; PREX = 2; L0B = 7; WDL = 2; SL3 = 5; XF = 0; SF = 0; T0 = 1; ACK0 = 10; TW = 5; CONS = 28; XNT = 1; WNT = 0; CPF = True; OF = 1; dbg = False
    VC = 4
    fine = False

class Op:
    def __init__(self, kind, fn, req=(), give=(), at=0.0, cost=1, pre=None, name=""):
        self.kind, self.fn, self.req, self.give, self.at, self.cost, self.pre = kind, fn, set(req), set(give), at, cost, pre
        self.done = False; self.name = name; self.predone = False

class Prog:
    def __init__(self, m6, tag):
        self.m6 = m6; self.tag = tag
        self.e = Em(); self.ops = []; self.tokens = set()
        self.icount = 0; self.used = 0
        self.last_mfma = {}; self.last_valu = {}
        self.nstamp = 0; self.names = []
    def A(self, s):
        self.e.A(s); self.icount += 1; self.used += 1
    def vmem(self, s, tag=None):
        self.e.vmem(s, tag); self.icount += 1; self.used += P.VC
    def lds(self, s, tag=None):
        self.e.lds(s, tag); self.icount += 1; self.used += 1
    def wait(self, vm=None, lg=None):
        if self.e.wait(vm, lg): self.icount += 1; self.used += 1
    def pad(self, since, need):
        n = need - (self.icount - since)
        while n > 0:
            k = min(n, 16)
            self.e.A(f"s_nop {k-1}"); self.icount += k; self.used += k; n -= k
    def valu(self, s, writes=(), acc_tile=None):
        if acc_tile is not None and acc_tile in self.last_mfma:
            self.pad(self.last_mfma[acc_tile], 12)
        self.A(s)
        for r in writes: self.last_valu[r] = self.icount
    def stamp(self, name):
        if P.stamps and self.nstamp < NSTAMP:
            i = self.nstamp; self.nstamp += 1; self.names.append(name)
            self.e.A(f"s_mem{'real' if P.rt else ''}time s[{sSTM}:{sSTM+1}]")
            self.e.wait_lg_all()
            self.e.A(f"v_writelane_b32 v{vST}, s{sSTM}, {i}")
            self.icount += 3
    def add(self, *a, **k):
        o = Op(*a, **k); self.ops.append(o); return o
    def run(self, o):
        assert not o.done
        for t in o.req: self.ensure(t)
        if o.pre and not o.predone:
            o.pre(); self.A("s_nop 0")
        o.done = True
        o.fn()
        self.tokens |= o.give
    def ensure(self, tok):
        if tok in self.tokens: return
        cand = [o for o in self.ops if tok in o.give and not o.done]
        assert cand, f"no producer for {tok}"
        self.run(cand[0])
    def pick(self, now, kind):
        for o in self.ops:
            if not o.done and o.kind == kind and o.at <= now and o.req <= self.tokens:
                return o
        return None

def xreg(m6, pos, ks, s):
    o = 8*ks + 4*s
    if pos == 0:
        r = PX + o; return f"v[{r}:{r+3}]", ("v", r)
    if pos == 7 and not m6:
        r = PX + 16 + o; return f"v[{r}:{r+3}]", ("v", r)
    idx = pos - 1 if (m6 or pos < 7) else pos - 2
    r = 16*idx + o
    return f"a[{r}:{r+3}]", ("a", r)

def unit_list(m6):
    U = []
    for l in range(3):
        L = []
        B = lambda pos, H: [(l, pos, 0, H), (l, pos, 1, H)]
        if m6:
            for pos in range(13): L += B(pos, 0)
        elif l == 0:
            for pos in range(P.L0B): L += B(pos, 0) + B(pos, 1)
            for pos in range(P.L0B, 13): L += B(pos, 0)
            for pos in range(P.L0B, 13): L += B(pos, 1)
        else:
            ORD = P.ORD0 if l == 1 else P.ORD
            L += B(0, 0)
            for pos in range(1, 1 + ORD): L += B(pos, 0)
            L += B(0, 1) + B(7, 0) + B(7, 1)
            e1 = []
            for pos in range(1, 7): e1 += B(pos, 1)
            for pos in range(1 + ORD, 7): L += B(pos, 0)
            L += e1[:P.YP]
            for pos in range(8, 13): L += B(pos, 0)
            L += e1[P.YP:]
            for pos in range(8, 13): L += B(pos, 1)
        U += L
    return U

def tables(p):
    A = p.A
    for q in range(7):
        A(f"s_add_u32 s40, s{sJ}, {q}")
        A("s_sub_u32 s42, s40, 7"); A("s_min_u32 s40, s40, s42")
        A(f"s_mul_i32 s{sBW+q}, s40, {2*BLKW}")
        A(f"s_lshl_b32 s{sBX+q}, s40, 13")
    for q in range(6):
        if p.m6:
            A(f"s_mov_b32 s{sBW+7+q}, {(2*q+1)*BLKW}")
            A(f"s_mov_b32 s{sBX+7+q}, {(2*q+1)*4096}")
        else:
            A(f"s_add_u32 s40, s{sJ}, {q}")
            A("s_sub_u32 s42, s40, 6"); A("s_min_u32 s40, s40, s42")
            A("s_lshl_b32 s40, s40, 1"); A("s_or_b32 s40, s40, 1")
            A(f"s_mul_i32 s{sBW+7+q}, s40, {BLKW}")
            A(f"s_lshl_b32 s{sBX+7+q}, s40, 12")

def gen_member(m6):
    tag = "m6" if m6 else "mr"
    p = Prog(m6, tag); A = p.A; e = p.e
    U = unit_list(m6); NU = len(U); UL = NU // 3
    NB = P.NB
    XS0 = NPAGES - 4*NB
    halves = (0,) if m6 else (0, 1)
    own_pos = {0: 0, 1: 7}
    e.A(f"L_{tag}:")
    if P.stamps:
        e.A(f"s_mem{'real' if P.rt else ''}time s[96:97]"); p.nstamp = 1; p.names.append("start")
    A(f"s_lshl_b32 s{sW1K}, s{sWV}, 10")
    A(f"s_mul_i32 s{sXS}, s{sWV}, {NB*PAGE}")
    A(f"s_add_u32 s{sXS}, s{sXS}, {XS0*PAGE}")
    A(f"s_lshl_b32 s43, s{sC}, 2"); A(f"s_add_u32 s43, s43, s{sWV}")
    A(f"s_mul_i32 s46, s43, {32*ROWB}")
    A(f"s_min_u32 s45, s{sWV}, 2")
    A(f"s_mul_i32 s40, s45, {ROWB}")
    A(f"s_lshl_b32 s44, s{sJ}, 8"); A("s_add_u32 s40, s40, s44")
    A("v_lshlrev_b32 v6, 2, v1")
    p.vmem(f"buffer_load_dword v{Y}, v6, s[32:35], s40 offen", ("bias",))
    A("v_lshrrev_b32 v2, 3, v1"); A("v_and_b32 v3, 7, v1"); A("v_lshrrev_b32 v4, 4, v1")
    A("v_mul_u32_u24 v6, 1664, v2"); A("v_add_u32 v6, s46, v6")
    A("v_xor_b32 v7, v4, v3"); A(f"v_lshl_add_u32 v{vXS}, v7, 4, v6")
    A("v_xor_b32 v7, 4, v7"); A(f"v_lshl_add_u32 v{vXS+1}, v7, 4, v6"); A(f"v_add_u32 v{vXS+1}, {8*ROWB}, v{vXS+1}")
    A(f"v_add_u32 v{vXS+2}, {16*ROWB}, v{vXS}"); A(f"v_add_u32 v{vXS+3}, {16*ROWB}, v{vXS+1}")

    order0 = []
    for (l, pos, ks, H) in U[:UL]:
        if pos not in order0: order0.append(pos)
    n0 = {pos: n for n, pos in enumerate(order0)}
    free_pages = list(range(XS0))
    pending = []; page_of = {}
    st = {"next_w": 0, "landed": -1, "now": -1, "wl": 0}
    def w_can():
        return st["next_w"] < NU and bool(free_pages)
    def w_pre():
        v = st["next_w"]
        l = U[v][0]
        if l != st["wl"]:
            st["wl"] = l
            A(f"s_add_u32 s16, s16, {WLAYER}"); A("s_addc_u32 s17, s17, 0"); A(f"s_sub_u32 s18, s18, {WLAYER}")
            if l == 1:
                for i in range(4): A(f"v_add_u32 v{vW+i}, v{vDELTA}, v{vW+i}")
                p.tokens.add(("wswitch",))
        pg = free_pages.pop(0); page_of[v] = pg
        pending.append((pg, v))
        A(f"s_add_u32 m0, s{sW1K}, {pg*PAGE}")
    def w_go():
        v = st["next_w"]
        l, pos, ks, H = U[v]
        so = sT0W + n0[pos] if l == 0 else sBW + pos
        p.vmem(f"buffer_load_dwordx4 v{vW+2*ks+H}, s[16:19], s{so} offen{' nt' if (P.WNT == 2 or (P.WNT == 1 and l == 0)) else ''} lds", ("w", v))
        st["next_w"] += 1
    def w_dma():
        assert w_can(), "no free page"
        w_pre(); A("s_nop 0"); w_go()
    def w_rd(v, i, u):
        s, t = i // 2, i % 2
        off = page_of[v]*PAGE + s*2048 + u*1024
        d = WB + (v & 1)*16 + i*4 + 2*u
        p.lds(f"ds_read_b64_tr_b16 a[{d}:{d+1}], v{vTR+2*(off >> 16)+t} offset:{off & 0xffff}", ("w", v, i))
    def x0_pre(n, sp):
        A(f"s_add_u32 m0, s{sXS}, {(n % NB)*PAGE + sp*1024}")
    def x0_go(n, sp):
        p.vmem(f"buffer_load_dwordx4 v{vXS+sp}, s[20:23], s{sT0X+n} offen{' nt' if P.XNT else ''} lds", ("x0", n))
    for sp in range(4):
        x0_pre(0, sp)
        if sp == 0:
            A("v_and_b32 v5, 1, v4"); A("v_lshlrev_b32 v5, 2, v5"); A("v_xor_b32 v5, v5, v3"); A("v_lshl_add_u32 v5, v5, 4, s44")
        elif sp == 1:
            A(f"s_lshr_b32 s42, s{sWV}, 1"); A("s_lshl_b32 s42, s42, 4"); A(f"s_and_b32 s40, s{sWV}, 1"); A("s_lshl_b32 s40, s40, 2")
            A("s_add_u32 s42, s42, s40")
            A("v_lshrrev_b32 v7, 5, v1")
        elif sp == 2:
            A("v_and_b32 v6, 3, v2"); A("v_lshl_add_u32 v6, v7, 3, v6"); A("v_add_u32 v6, s42, v6")
            A("v_mul_u32_u24 v6, 1664, v6"); A(f"v_add_u32 v{vW}, v5, v6")
        else:
            A(f"v_add_u32 v{vW+1}, 128, v{vW}"); A(f"v_add_u32 v{vW+2}, {KSW}, v{vW}"); A(f"v_add_u32 v{vW+3}, {KSW+128}, v{vW}")
        x0_go(0, sp)
    for i in range(P.PREW): w_dma()
    A(f"s_lshl_b32 s40, s{sWV}, 3")
    A("v_add_u32 v6, s40, v2"); A("v_mul_u32_u24 v6, 1664, v6"); A("v_add_u32 v6, v5, v6")
    A(f"v_sub_u32 v{vDELTA}, v6, v{vW}")
    A("s_lshl_b32 s44, s43, 7"); A(f"s_add_u32 s44, s44, {FLAG_BASE}")
    A(f"v_lshl_add_u32 v{vFLAG}, v3, 3, s44")
    A("v_min_u32 v5, 5, v1"); A("v_lshl_add_u32 v5, v5, 14, s44")
    p.vmem(f"buffer_load_dwordx2 v[{vNON}:{vNON+1}], v5, s[24:27], 0 offen sc1".replace(f"v[{vNON}:{vNON+1}]", f"v[{Y+8}:{Y+9}]"), ("non",))
    for n in range(1, P.PREX):
        for sp in range(4):
            x0_pre(n, sp); A("s_nop 0"); x0_go(n, sp)
    tables(p)
    A("s_lshl_b32 s45, s45, 9"); A(f"s_add_u32 s45, s45, {MISC}")
    A(f"v_lshl_add_u32 v{Y+4}, v1, 3, s45")
    A(f"v_lshlrev_b32 v{vBIAS}, 4, v7"); A(f"v_add_u32 v{vBIAS}, {MISC}, v{vBIAS}")
    A(f"s_lshl_b32 s45, s{sJ}, 3"); A("s_add_u32 s45, s45, s44")
    A("v_mov_b32 v5, 0x80000000"); A("v_mov_b32 v6, s45")
    A("v_cmp_eq_u32 vcc, 0, v1")
    A(f"v_lshl_add_u32 v{vXL}, v1, 4, s46")
    A("v_and_b32 v2, 31, v1")
    A(f"v_cndmask_b32 v{vFST}, v5, v6, vcc")
    A(f"v_bfe_u32 v{vZ}, v1, 1, 3"); A(f"v_lshl_add_u32 v2, v2, 7, s{sXS}")
    for s4 in range(4):
        A(f"v_add_u32 v6, {2*s4}, v7"); A(f"v_xor_b32 v6, v6, v{vZ}"); A(f"v_lshl_add_u32 v{vXR+s4}, v6, 4, v2")
    A(f"v_lshl_add_u32 v{vCB}, v7, 3, v2")
    A("v_bfe_u32 v3, v1, 2, 2")
    A("v_lshl_add_u32 v4, v7, 2, v3"); A("v_lshlrev_b32 v4, 7, v4")
    A("v_bfe_u32 v6, v1, 4, 1"); A("v_lshl_add_u32 v4, v6, 5, v4")
    A("v_and_b32 v6, 3, v1"); A("v_lshl_add_u32 v4, v6, 3, v4")
    A("v_lshrrev_b32 v3, 1, v3")
    for t in range(2):
        A(f"v_xor_b32 v6, {t}, v3"); A(f"v_lshl_add_u32 v{vTR+t}, v6, 6, v4")
        A(f"v_add_u32 v{vTR+2+t}, 0x10000, v{vTR+t}"); A(f"v_add_u32 v{vTR+4+t}, 0x20000, v{vTR+t}")
    A(f"s_cmp_eq_u32 s{sWV}, 0"); A("s_cselect_b32 s45, 1.0, 0")
    A(f"s_lshl_b32 s{sOWN}, s{sJ}, 8")
    A(f"s_getreg_b32 s{sHEL}, hwreg(HW_REG_XCC_ID, 0, 4)")
    A(f"s_mov_b32 s{sBASE}, s46")
    A("s_mov_b32 s46, 0x40000")
    if P.stamps:
        A("s_waitcnt lgkmcnt(0)"); A(f"v_writelane_b32 v{vST}, s96, 0")
    p.wait(vm=lambda t: t == ("bias",))
    A(f"v_lshlrev_b32 v{Y+2}, 16, v{Y}"); A(f"v_and_b32 v{Y+3}, 0xffff0000, v{Y}")
    A(f"v_add_f32 v{Y+2}, s45, v{Y+2}"); A(f"v_add_f32 v{Y+3}, s45, v{Y+3}")
    p.lds(f"ds_write_b64 v{Y+4}, v[{Y+2}:{Y+3}]", ("bw",))

    first_use = {}; last_use = {}; last_unit = {}; first_unit = {}
    for v, (l, pos, ks, H) in enumerate(U):
        first_use.setdefault((l, pos), v); last_use[(l, pos)] = v; last_unit[(l, H)] = v; first_unit.setdefault((l, H), v)
    def f():
        p.wait(vm=lambda t: t == ("non",))
        A(f"v_readlane_b32 s{sNON}, v{Y+8}, 3"); A(f"v_readlane_b32 s{sNON+1}, v{Y+9}, 3")
        A("s_nop 3")
        A(f"s_or_b32 s{sNON}, s{sNON}, 1"); A(f"s_add_u32 s{sNON}, s{sNON}, 2"); A(f"s_add_u32 s{sNON+1}, s{sNON+1}, 1")
        A(f"s_add_u32 s{sHEL}, s{sHEL}, s{sNON+1}"); A(f"s_add_u32 s{sHEL}, s{sHEL}, 16")
        A(f"v_mov_b32 v{vNON}, s{sNON}"); A(f"v_mov_b32 v{vNON+1}, s{sHEL}")
        A(f"s_mov_b32 s44, {4*16384}")
        p.vmem(f"buffer_store_dwordx2 v[{vNON}:{vNON+1}], v{vFST}, s[24:27], s44 offen sc1", ("hello",))
        A("s_nop 0")
        A(f"v_mov_b32 v{vNON+1}, s{sNON+1}")
    p.add("vmemh", f, give=[("hello",)], at=0, name="hello")
    for n, pos in enumerate(order0):
        for sp in range(4):
            if n < P.PREX:
                p.tokens.add(("x0d", n, sp)); continue
            def pre(n=n, sp=sp):
                if n >= NB:
                    p.wait(lg=lambda t: t[0] == "x" and t[1] == 0 and t[2] == order0[n-NB])
                x0_pre(n, sp)
            def f(n=n, sp=sp):
                x0_go(n, sp); st[("x0at", n)] = st["now"]
            p.add("vmem", f, pre=pre, req=([("x0rd", n-NB)] if n >= NB else []) + [("x0d", n, sp-1) if sp else ("x0d", n-1, 3)],
                  give=[("x0d", n, sp)], name=f"x0dma{n}").dl = first_use[(0, pos)] - P.XLAT - 1
        for s4 in range(4):
            def f(n=n, pos=pos, s4=s4):
                p.wait(vm=lambda t: t == ("x0", n))
                txt, _ = xreg(m6, pos, s4 // 2, s4 % 2)
                p.lds(f"ds_read_b128 {txt}, v{vXR+s4} offset:{(n % NB)*PAGE}", ("x", 0, pos, s4))
            give = [("x0f", n, s4)]
            if s4 == 3: give.append(("xi", 0, pos))
            o = p.add("lds", f, req=[("x0d", n, 3)] + ([("x0f", n, s4-1)] if s4 else []), give=give, name=f"x0rd{n}")
            o.x0n = n
        def f(n=n):
            for H in halves:
                lab = f"L_{tag}_nc{n}{H}"
                if H == 0: A(f"s_cmp_eq_u32 s{sT0X+n}, s{sOWN}")
                else:
                    A(f"s_sub_u32 s44, s{sT0X+n}, 128"); A(f"s_cmp_eq_u32 s44, s{sOWN}")
                A(f"s_cbranch_scc0 {lab}")
                e.A(f"v_add_u32 v3, {(n % NB)*PAGE}, v{vCB}")
                e.A(f"s_call_b64 s[{sRET}:{sRET+1}], L_{tag}_cap{H}")
                e.A(f"{lab}:")
        p.add("chk", f, req=[("xi", 0, pos), ("hello",)] + ([("x0rd", n-1)] if n else []), give=[("x0rd", n)], cost=3, name="capchk")
    def poll_load(off, key):
        A(f"s_mov_b32 s45, {off}")
        p.vmem(f"buffer_load_dwordx2 v[{vFL}:{vFL+1}], v{vFLAG}, s[24:27], s45 offen sc1", ("poll",) + key)
        st[("pollat",) + key] = st["now"]
    def poll_check(key, cmp_, mask):
        lab = f"L_{tag}_ok{key[0]}{key[1]}"; lp = f"L_{tag}_sp{key[0]}{key[1]}"
        if P.fine: p.stamp(f"chk{key}<")
        p.wait(vm=lambda t: t == ("poll",) + key)
        e.A(f"{lp}:")
        if cmp_ == "hello":
            A(f"v_subrev_u32 v2, s{sNON+1}, v{vFL+1}")
            A("v_lshrrev_b32 v2, 4, v2")
            A(f"v_xor_b32 v3, s{sNON}, v{vFL}")
            A("v_xor_b32 v2, 1, v2")
            A("v_or_b32 v2, v2, v3")
            A("v_cmp_eq_u32 vcc, 0, v2")
        else:
            A(cmp_)
        A("s_nop 1")
        A(f"s_and_b32 s44, vcc_lo, {mask}")
        A(f"s_cmp_eq_u32 s44, {mask}")
        A(f"s_cbranch_scc1 {lab}")
        e.A("s_sleep 1")
        e.A(f"buffer_load_dwordx2 v[{vFL}:{vFL+1}], v{vFLAG}, s[24:27], s45 offen sc1")
        e.A("s_sub_u32 s46, s46, 1")
        e.A("s_waitcnt vmcnt(0)")
        e.A(f"s_cbranch_scc0 {lp}")
        e.A(f"{lab}:")
        if P.fine: p.stamp(f"chk{key}>")
    p.add("vmemh", lambda: poll_load(4*16384, (9, 9)), req=[("hello",)], give=[("pi", 9, 9)], at=P.HELLO*UL/52.0, name="hpoll")
    def f():
        poll_check((9, 9), "hello", 0x7f)
        A(f"v_cmp_eq_u32 vcc, s{sHEL}, v{vFL+1}")
        A("s_nop 1")
        A("s_and_b32 s44, s44, vcc_lo")
        A("s_cmp_eq_u32 s44, 0x7f")
        A(f"s_cselect_b32 s{sMODE}, {1 if P.fast else 0}, 0")
        A(f"s_cselect_b32 s{sX2}, {0 if P.fast else XREG_STRIDE}, {XREG_STRIDE}")
    o = p.add("chk", f, req=[("pi", 9, 9)], give=[("mode",)], cost=3, name="hchk"); o.bh = (9, 9)

    def flag_store(idx, slow_touch):
        lab = f"L_{tag}_fl{idx}"
        A(f"s_mov_b32 s44, {idx*16384}")
        A(f"s_cmp_lg_u32 s{sMODE}, 0")
        A(f"s_cbranch_scc1 {lab}f")
        e.A(f"buffer_store_dwordx2 v[{vNON}:{vNON+1}], v{vFST}, s[24:27], s44 offen sc1")
        if slow_touch and P.touch:
            e.A(f"v_subrev_u32 v2, s{sBASE}, v{vXL}")
            e.A("v_and_b32 v2, 0x1f0, v2")
            e.A(f"v_lshl_add_u32 v2, v2, 3, s{sBASE}")
            e.A(f"s_add_u32 s40, s{sBX+own_pos[idx & 1]}, {XREG0 + XREG_STRIDE}")
            e.A("buffer_load_dword a224, v2, s[24:27], s40 offen sc1")
        e.A(f"s_branch {lab}j")
        e.A(f"{lab}f:")
        p.vmem(f"buffer_store_dwordx2 v[{vNON}:{vNON+1}], v{vFST}, s[24:27], s44 offen", ("fl", idx))
        e.A(f"{lab}j:")
    def f():
        p.wait(vm=lambda t: t == ("x", 1, 6, 3))
        flag_store(5, False)
    p.add("vmemh", f, req=[("udone", first_use[(1, 6)])], give=[("cons",)], name="cons")
    p.add("vmemh", lambda: poll_load(5*16384, (8, 8)), req=[("cons",), ("ok", 0, 1)], give=[("pi", 8, 8)], at=UL + P.CONS*UL/52.0, name="cpoll")
    o = p.add("chk", lambda: poll_check((8, 8), f"v_cmp_eq_u64 vcc, s[{sNON}:{sNON+1}], v[{vFL}:{vFL+1}]", 0x7f),
              req=[("pi", 8, 8)], give=[("ok", 8, 8)], cost=3, name="cchk"); o.bh = (8, 8)
    prev_crit = None
    prev_bc = None
    for l in range(3):
        for H in halves:
            lu = last_unit[(l, H)]
            if (l, H) != (0, 0):
                for q in range(8):
                    def f(l=l, H=H, q=q):
                        p.lds(f"ds_read_b128 v[{BC+4*q}:{BC+4*q+3}], v{vBIAS} offset:{l*512 + (64*H + 8*q)*4}", ("bc", l, H, q // 4))
                    p.add("lds", f, req=[("udone", prev_bc)] + ([("bcr", l, H, q-1)] if q else []), give=[("bcr", l, H, q)],
                          at=max(0, first_unit[(l, H)] - 8), name="bc")
            prev_bc = first_unit[(l, H)]
            if l > 0:
                for q in range(32):
                    def f(H=H, q=q):
                        if q % 2 == 0: A(f"v_lshlrev_b32 v{Y+q}, 16, v{PX+16*H+q//2}")
                        else: A(f"v_and_b32 v{Y+q}, 0xffff0000, v{PX+16*H+q//2}")
                    p.add("valu", f, req=[prev_crit, ("wswitch",)] + ([("yp", l, H, q-1)] if q else []), give=[("yp", l, H, q)], name="yprep")
            for q in range(48):
                g3, k = q // 3, q % 3
                def f(l=l, H=H, g3=g3, k=k):
                    a, b, c_ = X0F + 32*H + 2*g3, Y + 2*g3, ACC + 32*H + 2*g3
                    tile = 2*H + g3 // 8
                    if k == 2:
                        d = PX + 16*H + g3
                        p.valu(f"v_cvt_pk_bf16_f32 v{d}, v{c_}, v{c_+1}", writes=[d])
                    elif l == 0:
                        p.valu(f"v_mul_f32 v{c_+k}, v{a+k}, v{c_+k}", acc_tile=tile)
                    else:
                        p.valu(f"v_fma_f32 v{c_+k}, v{a+k}, v{c_+k}, v{b+k}", acc_tile=tile)
                give = [("cr", l, H, q)] + ([("crit", l, H)] if q == 47 else [])
                req = [("udone", lu), ("udone", last_use[(l, own_pos[H])])]
                req += [("yp", l, H, 31)] if l else [("x0rd", 12)]
                if prev_crit: req.append(prev_crit)
                p.add("crit", f, req=req + ([("cr", l, H, q-1)] if q else []), give=give, at=lu+1.25, name="crit")
            prev_crit = ("crit", l, H)
            src = PX + 16*H
            if l < 2:
                for q in range(4):
                    def f(l=l, H=H, q=q, src=src):
                        lab = f"L_{tag}_st{l}{H}{q}"
                        ins = f"buffer_store_dwordx4 v[{src+4*q}:{src+4*q+3}], v{vXL}, s[24:27], s43 offen offset:{q*1024}"
                        if q == 0:
                            A(f"s_add_u32 s43, s{sBX+own_pos[H]}, {XREG0}")
                            if l == 1: A(f"s_add_u32 s43, s43, s{sX2}")
                        if l == 0:
                            p.vmem(ins + " sc1", ("st", l, H))
                        else:
                            A(f"s_cmp_lg_u32 s{sMODE}, 0")
                            A(f"s_cbranch_scc1 {lab}f")
                            e.A(ins + " sc1")
                            e.A(f"s_branch {lab}j")
                            e.A(f"{lab}f:")
                            p.vmem(ins, ("st", l, H))
                            e.A(f"{lab}j:")
                        if q == 3: st[("stat", l, H)] = st["now"]
                    req = [("cr", l, H, 12*q+11)] + ([("st", l, H, q-1)] if q else [])
                    if l == 1: req += [("mode",), ("ok", 8, 8) if H == 0 else ("ok", 1, 0)]
                    p.add("vmemh", f, req=req, give=[("st", l, H, q)], name="store")
                def touch(H):
                    A(f"v_subrev_u32 v2, s{sBASE}, v{vXL}")
                    A("v_and_b32 v2, 0x1f0, v2")
                    A(f"v_lshl_add_u32 v2, v2, 3, s{sBASE}")
                    A(f"s_add_u32 s40, s{sBX+own_pos[H]}, {XREG0}")
                    return "buffer_load_dword a224, v2, s[24:27], s40 offen sc1"
                if l == 0 and P.T0 == 2:
                    def f(l=l, H=H):
                        p.wait(vm=lambda t: t == ("st", l, H))
                        p.vmem(touch(H), ("tch", l, H))
                        st[("tat", l, H)] = st["now"]
                    o = p.add("vmemh", f, req=[("st", l, H, 3)], give=[("tch", l, H)], name="touch"); o.lh = (l, H)
                def f(l=l, H=H):
                    p.wait(vm=lambda t: t == ("st", l, H) or t == ("tch", l, H))
                    if l == 0 and P.T0 == 1:
                        p.vmem(touch(H), ("tch", l, H))
                    flag_store(2*l+H, l == 1)
                if l == 0 and P.T0 == 2:
                    o = p.add("vmemh", f, req=[("tch", l, H), ("mode",)], give=[("sent", l, H)], name="flag"); o.th = (l, H)
                else:
                    o = p.add("vmemh", f, req=[("st", l, H, 3), ("mode",)], give=[("sent", l, H)], name="flag"); o.lh = (l, H)
            else:
                for ch in range(8):
                    def f(H=H, ch=ch, src=src):
                        if ch == 0:
                            p.wait(lg=lambda t: t[0] == "or")
                            if H == 0:
                                A(f"v_subrev_u32 v{vOR}, s{sBASE}, v{vXL}"); A(f"v_add_u32 v{vOR}, s{sXS}, v{vOR}")
                        A(f"v_xor_b32 v2, {ch}, v{vZ}"); A(f"v_lshl_add_u32 v2, v2, 4, v{vCB}")
                        p.lds(f"ds_write_b64 v2, v[{src+2*ch}:{src+2*ch+1}]", ("ow", H, ch))
                    p.add("lds", f, req=[("cr", 2, H, 6*ch+5)] + ([("ow", H, ch-1)] if ch else []), give=[("ow", H, ch)], cost=3, name="ow")
                dst = BC + 16*H
                for q in range(4):
                    def f(H=H, q=q, dst=dst):
                        p.wait(lg=lambda t: t[0] == "ow")
                        p.lds(f"ds_read_b128 v[{dst+4*q}:{dst+4*q+3}], v{vOR} offset:{q*1024}", ("or", H, q))
                    p.add("lds", f, req=[("ow", H, 7)] + ([("or", H, q-1)] if q else []), give=[("or", H, q)], name="or")
                for q in range(4):
                    def f(H=H, q=q, dst=dst):
                        p.wait(lg=lambda t: t == ("or", H, q))
                        if q == 0:
                            if H: A(f"s_add_u32 s43, s{sOWN}, 128")
                            else: A(f"s_mov_b32 s43, s{sOWN}")
                        p.vmem(f"buffer_store_dwordx4 v[{dst+4*q}:{dst+4*q+3}], v{vXS+q}, s[28:31], s43 offen{('', ' sc1', ' nt', ' sc0 sc1')[P.OF]}", ("ost", H))
                    p.add("vmemh", f, req=[("or", H, 3)] + ([("ost", H, q-1)] if q else []), give=[("ost", H, q)], name="ostore")
    prev = None
    for l in (1, 2):
        for H in (0, 1):
            b = l - 1
            poss = list(range(1, 7) if H == 0 else range(7 if m6 else 8, 13))
            scale = UL / 52.0
            at = (l-1)*UL + (P.POLL_E0 if l == 1 else P.POLL_E)*scale if H == 0 else l*UL + (P.POLL_L0 if l == 1 else P.POLL_L)*scale
            sent = [("sent", b, h) for h in halves if h <= H]
            p.add("vmemh", lambda b=b, H=H: poll_load((2*b+H)*16384, (b, H)),
                  req=sent + ([("ok", b, 0)] if H else []), give=[("pi", b, H)], at=at, name="poll")
            o = p.add("chk", lambda b=b, H=H: poll_check((b, H), f"v_cmp_eq_u64 vcc, s[{sNON}:{sNON+1}], v[{vFL}:{vFL+1}]", 0x7f if H == 0 else 0x3f),
                      req=[("pi", b, H)], give=[("ok", b, H)], cost=3, name="chk"); o.bh = (b, H)
            for pos in poss:
                for q in range(4):
                    def f(l=l, pos=pos, q=q, first=(l == 2 and H == 0 and pos == 1 and q == 0)):
                        if first:
                            A(f"s_add_u32 s{sXL}, s{sXL}, s{sX2}"); A(f"s_addc_u32 s{sXL+1}, s{sXL+1}, 0")
                        txt, _ = xreg(m6, pos, q // 2, q % 2)
                        p.vmem(f"buffer_load_dwordx4 {txt}, v{vXL}, s[{sXL}:{sXL+3}], s{sBX+pos} offen offset:{q*1024}{(' sc1', '', ' nt')[P.XF]}", ("x", l, pos, q))
                    give = [("xl", l, pos, q)] + ([("xi", l, pos)] if q == 3 else [])
                    p.add("vmem", f, req=[("ok", b, H), ("udone", last_use[(l-1, pos)])] + ([prev] if prev else []), give=give, name="xld").dl = first_use[(l, pos)] + q // 2 - 1
                    prev = ("xl", l, pos, q)

    def gates():
        for o in p.ops:
            if o.done: continue
            if hasattr(o, "lh"): o.at = st.get(("stat",) + o.lh, 1e9) + (P.ACK0 if o.lh[0] == 0 else P.ACK)
            elif hasattr(o, "th"): o.at = st.get(("tat",) + o.th, 1e9) + P.TW
            elif hasattr(o, "bh"): o.at = st.get(("pollat",) + o.bh, 1e9) + P.POLLW
            elif hasattr(o, "x0n"): o.at = st.get(("x0at", o.x0n), -2) + P.XLAT
    p.wait(lg=lambda t: t == ("bw",))
    p.stamp("setup")
    p.wait(vm=lambda t: t[0] == "w" and t[1] <= 1)
    A("s_barrier")
    st["landed"] = 1
    p.stamp("w01")
    for q in range(8):
        p.lds(f"ds_read_b128 v[{BC+4*q}:{BC+4*q+3}], v{vBIAS} offset:{32*q}", ("bc", 0, 0, q // 4))
        p.tokens.add(("bcr", 0, 0, q))
    for i in range(4):
        w_rd(0, i, 0); w_rd(0, i, 1)
    donated = False
    seen = set()
    plan = None
    for u, (l, pos, ks, H) in enumerate(U):
        e.c(f"---- unit {u}: layer {l} pos {pos} ks {ks} H {H}")
        st["now"] = u
        if u % UL == 0: p.stamp(f"L{l}")
        elif not m6 and u == last_unit[(l, 0)] + 1: p.stamp(f"L{l}C")
        elif P.fine and u % UL in (8, 20): p.stamp(f"u{u}")
        own = pos == 0 or (pos == 7 and not m6)
        if l == 0 or not own: p.ensure(("xi", l, pos))
        else: p.ensure(("crit", l-1, 0 if pos == 0 else 1))
        first = (l, H) not in seen
        seen.add((l, H))
        if first:
            if l > 0: p.ensure(("crit", l-1, H))
            p.ensure(("bcr", l, H, 7))
        need_bar = u + 1 < NU and u + 1 > st["landed"]
        upto = -1
        if need_bar:
            upto = min(u + (2 if u < 4 else P.GB), NU - 1)
            assert plan is None
            while st["next_w"] <= upto: w_dma()
        xs = {("x", l, pos, 2*ks), ("x", l, pos, 2*ks+1)}
        p.wait(vm=lambda t: (t[0] == "w" and t[1] <= upto) or (l > 0 and t in xs),
               lg=lambda t: (t[0] == "w" and t[1] == u) or (l == 0 and t in xs) or (first and t[:3] == ("bc", l, H)))
        if need_bar:
            A("s_barrier")
            st["landed"] = upto
            for it in list(pending):
                if it[1] <= u - 1:
                    free_pages.append(it[0]); pending.remove(it)
        if not donated and ("x0rd", 12) in p.tokens:
            p.wait(lg=lambda t: t[0] == "x" and t[1] == 0)
            for w in range(4):
                for i in range(1, NB): pending.append((XS0 + w*NB + i, u))
            donated = True
        for i in range(4):
            s, t = i // 2, i % 2
            now = u + i/4.0
            tile = 2*H + t
            txt, (kind, r) = xreg(m6, pos, ks, s)
            if kind == "v":
                p.pad(max(p.last_valu.get(x, -99) for x in range(r, r+4)), 2)
            a0 = WB + (u & 1)*16 + i*4
            acc = f"v[{ACC+16*tile}:{ACC+16*tile+15}]"
            cin = f"v[{BC+16*t}:{BC+16*t+15}]" if (first and s == 0) else acc
            A(f"v_mfma_f32_32x32x16_bf16 {acc}, a[{a0}:{a0+3}], {txt}, {cin}")
            p.last_mfma[tile] = p.icount
            p.used = 0
            if i == 3: p.tokens.add(("udone", u))
            gates()
            if plan is not None:
                if plan == "w": w_go()
                else: p.run(plan)
                plan = None
            if u + 1 < NU and i < 2:
                for k in range(2): w_rd(u+1, 2*i+k, 0); w_rd(u+1, 2*i+k, 1)
            bud = P.BUD - (1 if i == 3 else 0)
            third = False
            if i == 0:
                o = p.pick(now + 0.25, "vmem")
                dls = ([o.dl] if o is not None else []) + ([st["next_w"] - P.GB - P.WDL] if w_can() else [])
                third = bool(dls) and min(dls) - u < P.SL3
            if i in (1, 2) or third:
                nxt = now + 0.25
                la = st["next_w"] - u
                o = p.pick(nxt, "vmemh")
                urgent = p.pick(now, "crit") is not None
                if o is None:
                    o = p.pick(nxt, "vmem")
                    if w_can():
                        wdl = st["next_w"] - P.GB - P.WDL
                        if o is not None:
                            if wdl < o.dl: o = "w"
                        elif la < P.MINLA: o = "w"
                        elif not urgent:
                            backlog = p.pick(now, "valu") is not None or p.pick(now, "lds") is not None
                            if not (backlog and la >= P.HILA and i == 2): o = "w"
                plan = o
                bud -= 1 if (o == "w" or (o is not None and o.pre)) else 0
            while True:
                rem = bud - p.used
                o = p.pick(now, "crit")
                if o is not None and rem + P.CRITX >= 1:
                    p.run(o); continue
                got = False
                for kind_ in ("chk", "lds", "valu"):
                    o = p.pick(now, kind_)
                    if o is not None and rem >= 1 and o.cost <= rem + 2:
                        p.run(o); got = True; break
                if not got: break
            if plan == "w": w_pre()
            elif plan is not None and plan.pre:
                plan.pre(); plan.predone = True
    st["now"] = NU
    p.stamp("end")
    for o in p.ops:
        if not o.done: p.run(o)
    p.stamp("flush")
    if P.stamps:
        A("s_waitcnt vmcnt(0)")
        p.stamp("drain")
        while p.nstamp < NSTAMP:
            e.A(f"v_writelane_b32 v{vST}, s{sSTM}, {p.nstamp}"); p.nstamp += 1
        stamp_store(e)
    if P.dbg and not m6:
        A("s_waitcnt vmcnt(0)")
        A("s_memtime s[40:41]"); A("s_memrealtime s[42:43]"); A("s_waitcnt lgkmcnt(0)")
        A("s_sub_u32 s40, s40, s96"); A("s_sub_u32 s42, s42, s100")
        A("s_and_b32 s44, s2, 0xf8"); A(f"s_or_b32 s44, s44, s{sWV}"); A("s_cmp_lg_u32 s44, 0"); A("s_cbranch_scc1 L_end")
        A("s_lshl_b32 s44, s2, 3")
        A("v_mov_b32 v2, s40"); A("v_mov_b32 v3, s42"); A("v_mov_b32 v4, s44")
        A("global_store_dwordx2 v4, v[2:3], s[98:99]")
    A("s_endpgm")
    for H in halves:
        e.A(f"L_{tag}_cap{H}:")
        for ch in range(8):
            e.A(f"v_xor_b32 v2, {ch}, v{vZ}"); e.A("v_lshl_add_u32 v2, v2, 4, v3")
            e.A(f"ds_read_b64 v[{Y+2*ch}:{Y+2*ch+1}], v2")
        for q in range(16):
            if q % 2 == 0: e.A(f"s_waitcnt lgkmcnt({7 - q//2})")
            e.A(f"v_lshlrev_b32 v{X0F+32*H+2*q}, 16, v{Y+q}")
            e.A(f"v_and_b32 v{X0F+32*H+2*q+1}, 0xffff0000, v{Y+q}")
        e.A(f"s_setpc_b64 s[{sRET}:{sRET+1}]")
    return e.text(), p.names

def stamp_store(e):
    A = e.A
    A(f"s_cmp_lg_u32 s{sWV}, 0"); A("s_cbranch_scc1 L_end")
    A("v_mbcnt_lo_u32_b32 v2, -1, 0"); A("v_mbcnt_hi_u32_b32 v2, -1, v2")
    A("v_lshlrev_b32 v2, 2, v2"); A("s_lshl_b32 s44, s2, 8")
    A(f"buffer_store_dword v{vST}, v2, s[24:27], s44 offen")

def gen_helper():
    e = Em(); A = e.A
    A("L_helper:")
    n = [0]
    def stamp():
        if P.stamps:
            A(f"s_mem{'real' if P.rt else ''}time s[{sSTM}:{sSTM+1}]"); A("s_waitcnt lgkmcnt(0)")
            A(f"v_writelane_b32 v{vST}, s{sSTM}, {n[0]}"); n[0] += 1
    stamp()
    def item_loop(name, first, last, stride, start_expr, depth):
        for x in start_expr: A(x)
        A(f"s_add_u32 s50, s50, {first}")
        A(f"L_{name}:")
        A(f"s_cmp_ge_u32 s50, {last}"); A(f"s_cbranch_scc1 L_{name}_done")
        A("s_mul_i32 s51, s50, 5042"); A("s_lshr_b32 s51, s51, 16")
        A("s_mul_i32 s52, s51, 13"); A("s_sub_u32 s52, s50, s52")
        A("s_mul_i32 s53, s51, 5042"); A("s_lshr_b32 s53, s53, 16")
        A("s_mul_i32 s54, s53, 13"); A("s_sub_u32 s54, s51, s54")
        A("s_lshr_b32 s55, s52, 1")
        A("s_sub_u32 s56, s54, 1"); A("s_max_i32 s56, s56, 0")
        A("s_add_u32 s56, s56, s55")
        A("s_cmp_ge_u32 s56, 7"); A("s_cselect_b32 s57, 7, 0"); A("s_sub_u32 s56, s56, s57")
        A("s_lshl_b32 s56, s56, 1")
        A("s_sub_u32 s57, s54, 7"); A("s_max_i32 s57, s57, 0")
        A("s_cmp_eq_u32 s55, 6"); A("s_cselect_b32 s58, 0, s55")
        A("s_add_u32 s57, s57, s58")
        A("s_cmp_ge_u32 s57, 6"); A("s_cselect_b32 s58, 6, 0"); A("s_sub_u32 s57, s57, s58")
        A("s_lshl_b32 s57, s57, 1"); A("s_add_u32 s57, s57, 1")
        A("s_cmp_eq_u32 s54, 1"); A("s_cselect_b32 s56, s57, s56")
        A("s_cmp_ge_u32 s54, 8"); A("s_cselect_b32 s56, s57, s56")
        A(f"s_mul_i32 s56, s56, {BLKW}")
        A(f"s_mul_i32 s53, s53, {WLAYER}")
        A("s_lshl_b32 s52, s52, 7")
        A("s_add_u32 s40, s56, s53"); A("s_add_u32 s40, s40, s52")
        A("buffer_load_dword v8, v2, s[16:19], s40 offen" + (" nt" if (P.WNT == 2 or (P.WNT == 3 and name == "hp2")) else ""))
        A(f"s_waitcnt vmcnt({depth})")
        A(f"s_add_u32 s50, s50, {stride}")
        A(f"s_branch L_{name}")
        A(f"L_{name}_done:")
    if P.CPF:
        A("s_getpc_b64 s[40:41]")
        A("L_pc:")
        A(f"s_sub_u32 s40, s40, L_pc-{NAME}_kernel"); A("s_subb_u32 s41, s41, 0")
        A(f"s_lshl_b32 s42, s{sCQ}, 2"); A(f"s_add_u32 s42, s42, s{sWV}"); A("s_lshl_b32 s42, s42, 13")
        A(f"s_cmp_ge_u32 s42, L_pc-{NAME}_kernel"); A("s_cbranch_scc1 L_cpf_done")
        A("v_lshl_add_u32 v3, v1, 7, s42")
        A(f"v_min_u32 v3, L_pc-{NAME}_kernel, v3")
        A("global_load_dword v9, v3, s[40:41]")
        A("L_cpf_done:")
    if P.helper:
        A("v_mul_u32_u24 v2, 1664, v1")
        if P.HX0:
            A(f"s_and_b32 s44, s{sWV}, 1"); A(f"s_lshl_b32 s45, s{sC}, 1"); A("s_add_u32 s44, s44, s45")
            A(f"s_mul_i32 s44, s44, {64*ROWB}")
            for r in range(3):
                A(f"s_cmp_ge_u32 s{sWV}, 2")
                A(f"s_cselect_b32 s45, s{sT0X+2*r+1}, s{sT0X+2*r}")
                A("s_add_u32 s40, s44, s45")
                A("buffer_load_dword v8, v2, s[20:23], s40 offen" + (" nt" if P.XNT else ""))
        if P.HP1:
            item_loop("hp1", 13*P.H0, 507, 128, [f"s_lshl_b32 s50, s{sC}, 2", f"s_add_u32 s50, s50, s{sWV}"], 1)
        if P.stamps: A("s_waitcnt vmcnt(0)")
        stamp()
        item_loop("hp2", 13*P.H2, 507, 16, [f"s_lshl_b32 s50, s{sCQ}, 2", f"s_add_u32 s50, s50, s{sWV}"], 1)
        A("s_waitcnt vmcnt(0)")
    stamp()
    if P.stamps:
        while n[0] < NSTAMP:
            A(f"v_writelane_b32 v{vST}, s{sSTM}, {n[0]}"); n[0] += 1
        stamp_store(e)
    A("s_endpgm")
    return e.text()

def main():
    out = sys.argv[1]
    for a in sys.argv[2:]:
        a = a.lstrip("-")
        if "=" in a:
            k, v = a.split("="); assert hasattr(P, k), k; setattr(P, k, type(getattr(P, k))(int(v)))
        else:
            assert hasattr(P, a), a; setattr(P, a, True)
    k = NAME + "_kernel"
    T = []
    A = T.append
    A('.amdgcn_target "amdgcn-amd-amdhsa--gfx950"')
    A(".text"); A(f".globl {k}"); A(".p2align 8"); A(f".type {k},@function"); A(f"{k}:")
    A("s_cmp_ge_u32 s2, 256"); A("s_cbranch_scc1 L_end")
    A("s_load_dwordx8 s[4:11], s[0:1], 0")
    A("s_load_dwordx2 s[14:15], s[0:1], 40")
    if P.dbg:
        A("s_load_dwordx2 s[98:99], s[0:1], 32"); A("s_memtime s[96:97]"); A("s_memrealtime s[100:101]")
    A("s_and_b32 s44, s2, 7")
    A(f"s_lshr_b32 s{sCQ}, s2, 6")
    A(f"s_bfe_u32 s{sJ}, s2, 0x30003")
    A(f"s_lshl_b32 s{sC}, s{sCQ}, 3"); A(f"s_add_u32 s{sC}, s{sC}, s44")
    A("v_and_b32 v1, 63, v0"); A("v_lshrrev_b32 v2, 6, v0"); A("s_nop 0")
    A(f"v_readfirstlane_b32 s{sWV}, v2")
    for d, size in ((16, 3*WLAYER), (20, 4096*ROWB), (24, WS_BYTES), (28, 4096*ROWB), (32, 3*ROWB), (sXL, XREG_STRIDE)):
        A(f"s_mov_b32 s{d+2}, {size}"); A(f"s_mov_b32 s{d+3}, 0x20000")
    A(f"s_mul_i32 s45, s{sCQ}, 3"); A(f"s_add_u32 s45, s45, s{sJ}")
    if P.XSH: A("s_add_u32 s45, s45, s44")
    A("s_lshl_b32 s45, s45, 1")
    A("s_mul_i32 s46, s45, 5042"); A("s_lshr_b32 s46, s46, 16"); A("s_mul_i32 s46, s46, 13")
    A("s_sub_u32 s45, s45, s46"); A(f"s_lshl_b32 s{sT0X}, s45, 7")
    for n in range(1, 13):
        A(f"s_add_u32 s45, s{sT0X+n-1}, 256"); A(f"s_sub_u32 s46, s45, {13*128}"); A(f"s_min_u32 s{sT0X+n}, s45, s46")
    A("s_waitcnt lgkmcnt(0)")
    for d, b in ((16, 6), (20, 4), (24, 14), (28, 10), (32, 8)):
        A(f"s_mov_b32 s{d}, s{b}"); A(f"s_mov_b32 s{d+1}, s{b+1}")
    A(f"s_add_u32 s{sXL}, s14, {XREG0}"); A(f"s_addc_u32 s{sXL+1}, s15, 0")
    A(f"s_cmp_eq_u32 s{sJ}, 7"); A("s_cbranch_scc1 L_helper")
    for n in range(13): A(f"s_mul_i32 s{sT0W+n}, s{sT0X+n}, 832")
    A(f"s_cmp_eq_u32 s{sJ}, 6"); A("s_cbranch_scc1 L_m6")
    t1, n1 = gen_member(False)
    t2, n2 = gen_member(True)
    T.append(t1); T.append(t2)
    T.append(gen_helper())
    A("L_end:"); A("s_endpgm")
    A('.section .rodata,"a"'); A(".p2align 6")
    A(f""".amdhsa_kernel {k}
  .amdhsa_next_free_vgpr 488
  .amdhsa_next_free_sgpr 102
  .amdhsa_accum_offset 256
  .amdhsa_group_segment_fixed_size 0
  .amdhsa_kernarg_size 48
  .amdhsa_user_sgpr_count 2
  .amdhsa_user_sgpr_kernarg_segment_ptr 1
  .amdhsa_system_sgpr_workgroup_id_x 1
  .amdhsa_float_denorm_mode_32 3
.end_amdhsa_kernel
""")
    H = [f"; @launch grid=(256,1,1) block=(256,1,1) lds={LDS_BYTES}"]
    if P.stamps:
        H.append("; @st32" + (" @rt" if P.rt else ""))
        H.append("; @names_reg " + " ".join(x.replace(" ", "") for x in n1))
        H.append("; @names_m6 " + " ".join(x.replace(" ", "") for x in n2))
    open(out, "w").write("\n".join(H + T))

main()
```

```python
B = lambda k: 7 + k
T = [
    [0, 1, 2, 4, 6, B(1), 3, 5, B(0), B(5), B(2), B(3), B(4)],
    [2, 4, 3, 6, 0, 1, B(2), 5, B(0), B(1), B(3), B(4), B(5)],
    [4, 6, 0, 5, 2, 1, 3, B(3), B(0), B(1), B(2), B(4), B(5)],
    [6, 0, 2, 4, B(0), 1, 3, 5, B(4), B(1), B(2), B(3), B(5)],
]
for t in T: assert sorted(t) == list(range(13))
def pack(vals):
    x = 0
    for i, v in enumerate(vals): x |= v << (4*i)
    return x
def emit_table(A, sT0X, sJ, sCQ, sBASE2, t0, t1, t2, t3, helper=False, first=0):
    rows = [[v for v in t if v >= 7] for t in T] if helper else T
    n_ent = len(rows[0])
    for w, dst in ((0, t0), (1, t1)):
        vals = [(pack(r) >> (32*w)) & 0xffffffff for r in rows]
        if w == 1 and n_ent <= 8: continue
        A(f"s_mov_b32 s{dst}, {vals[0]:#x}")
        for c in range(1, 4):
            A(f"s_cmp_eq_u32 s{sCQ}, {c}"); A(f"s_cselect_b32 s{dst}, {vals[c]:#x}, s{dst}")
    for n in range(first, n_ent):
        src = t0 if n < 8 else t1
        A(f"s_bfe_u32 s{t2}, s{src}, {(4 << 16) | (4*(n % 8)):#x}")
        if not helper:
            A(f"s_add_u32 s{t3}, s{t2}, s{sJ}"); A(f"s_sub_u32 s{sT0X+n}, s{t3}, 7"); A(f"s_min_u32 s{t3}, s{t3}, s{sT0X+n}")
            A(f"s_cmp_lt_u32 s{t2}, 7"); A(f"s_cselect_b32 s{t2}, s{t3}, s{t2}")
        A(f"s_lshl_b32 s{t2}, s{t2}, 1"); A(f"s_add_u32 s{t2}, s{t2}, s{sBASE2}")
        A(f"s_sub_u32 s{t3}, s{t2}, 13"); A(f"s_min_u32 s{t2}, s{t2}, s{t3}")
        A(f"s_sub_u32 s{t3}, s{t2}, 13"); A(f"s_min_u32 s{t2}, s{t2}, s{t3}")
        A(f"s_lshl_b32 s{sT0X+n}, s{t2}, 7")
```

```python
import sys
from emit import Em
import order

NAME = "standalone__cross_network_dcn__recsys"
ROWB = 1664
WLAYER = 832 * ROWB
BLKW = 64 * ROWB
KSW = 32 * ROWB
PAGE = 4096
NPAGES = 39
MISC = NPAGES * PAGE
LDS_BYTES = 163840
FLAG_BASE = 8 << 20
XREG0 = 16 << 20
XREG_STRIDE = 8 << 20
WS_BYTES = 32 << 20
ACC, X0F, PX, Y, BC = 32, 96, 160, 192, 224
vFL = 0
vST = 5
vNON = 6
vW = 8
vXS = 12
vXR = 16
vTR = 20
vXL, vZ, vCB, vBIAS, vFLAG, vFST = 26, 27, 28, 29, 30, 31
vDELTA = Y + 31
vOR = vXR
WB = 192
sRET = 0
sT0W = 3
sMODE, sHEL, sOWN, sBASE = 32, 33, 34, 35
sJ, sC, sWV, sCQ = 36, 37, 38, 39
sW1K, sXS = 41, 47
sNON = 48
sBW, sBX = 50, 63
sXL = 76
sT0X = 80
sSTM = 94
sX2 = 93
NSTAMP = 32

class P:
    stamps = False; rt = False
    GB = 4; NB = 3; YP = 6; ORD = 2
    BUD = 5; CRITX = 1
    MINLA = 10; HILA = 18
    XLAT = 4; ACK = 4
    POLL_E0 = 56; POLL_L0 = 19; ORD0 = 0; POLL_E = 46; POLL_L = 12; POLLW = 3
    helper = True; touch = True; fast = True
    XSH = 1; HX0 = True; HELLO = 20
    HP1 = False; H2 = 13; H0 = 13
    PREW = 4; PREX = 2; L0B = 4; WDL = 2; SL3 = 5; XF = 0; SF = 0; T0 = 0; ACK0 = 10; TW = 5; CONS = 28; XNT = 0; WNT = 0; OT = 1; HW = 0; TBAT = 8; OD = 1; OF1 = 1; STU = 999; STN = 1; TD = 3320; VC10 = 35; MS = 1; CPF = True; OF = 1; dbg = False
    VC = 4
    fine = False

class Op:
    def __init__(self, kind, fn, req=(), give=(), at=0.0, cost=1, pre=None, name=""):
        self.kind, self.fn, self.req, self.give, self.at, self.cost, self.pre = kind, fn, set(req), set(give), at, cost, pre
        self.done = False; self.name = name; self.predone = False

class Prog:
    def __init__(self, m6, tag):
        self.m6 = m6; self.tag = tag
        self.e = Em(); self.ops = []; self.tokens = set()
        self.icount = 0; self.used = 0
        self.last_mfma = {}; self.last_valu = {}
        self.nstamp = 0; self.names = []
    def A(self, s):
        self.e.A(s); self.icount += 1; self.used += 1
    def vmem(self, s, tag=None):
        self.e.vmem(s, tag); self.icount += 1; self.used += P.VC10/10.0
    def lds(self, s, tag=None):
        self.e.lds(s, tag); self.icount += 1; self.used += 1
    def wait(self, vm=None, lg=None):
        if self.e.wait(vm, lg): self.icount += 1; self.used += 1
    def pad(self, since, need):
        n = need - (self.icount - since)
        while n > 0:
            k = min(n, 16)
            self.e.A(f"s_nop {k-1}"); self.icount += k; self.used += k; n -= k
    def valu(self, s, writes=(), acc_tile=None):
        if acc_tile is not None and acc_tile in self.last_mfma:
            self.pad(self.last_mfma[acc_tile], 12)
        self.A(s)
        for r in writes: self.last_valu[r] = self.icount
    def stamp(self, name):
        if P.stamps and self.nstamp < NSTAMP:
            i = self.nstamp; self.nstamp += 1; self.names.append(name)
            self.e.A(f"s_mem{'real' if P.rt else ''}time s[{sSTM}:{sSTM+1}]")
            self.e.wait_lg_all()
            self.e.A(f"v_writelane_b32 v{vST}, s{sSTM}, {i}")
            self.icount += 3
    def add(self, *a, **k):
        o = Op(*a, **k); self.ops.append(o); return o
    def run(self, o):
        assert not o.done
        for t in o.req: self.ensure(t)
        if o.pre and not o.predone:
            o.pre(); self.A("s_nop 0")
        o.done = True
        o.fn()
        self.tokens |= o.give
    def ensure(self, tok):
        if tok in self.tokens: return
        cand = [o for o in self.ops if tok in o.give and not o.done]
        assert cand, f"no producer for {tok}"
        self.run(cand[0])
    def pick(self, now, kind):
        for o in self.ops:
            if not o.done and o.kind == kind and o.at <= now and o.req <= self.tokens:
                return o
        return None

def xreg(m6, pos, ks, s):
    o = 8*ks + 4*s
    if pos == 0:
        r = PX + o; return f"v[{r}:{r+3}]", ("v", r)
    if pos == 7 and not m6:
        r = PX + 16 + o; return f"v[{r}:{r+3}]", ("v", r)
    idx = pos - 1 if (m6 or pos < 7) else pos - 2
    r = 16*idx + o
    return f"a[{r}:{r+3}]", ("a", r)

def unit_list(m6):
    U = []
    for l in range(3):
        L = []
        B = lambda pos, H: [(l, pos, 0, H), (l, pos, 1, H)]
        if m6:
            for pos in range(13): L += B(pos, 0)
        elif l == 0:
            for pos in range(P.L0B): L += B(pos, 0) + B(pos, 1)
            for pos in range(P.L0B, 13): L += B(pos, 0)
            for pos in range(P.L0B, 13): L += B(pos, 1)
        else:
            ORD = P.ORD0 if l == 1 else P.ORD
            L += B(0, 0)
            for pos in range(1, 1 + ORD): L += B(pos, 0)
            L += B(0, 1) + B(7, 0) + B(7, 1)
            e1 = []
            for pos in range(1, 7): e1 += B(pos, 1)
            for pos in range(1 + ORD, 7): L += B(pos, 0)
            L += e1[:P.YP]
            for pos in range(8, 13): L += B(pos, 0)
            L += e1[P.YP:]
            for pos in range(8, 13): L += B(pos, 1)
        U += L
    return U

def tables(p):
    A = p.A
    for q in range(7):
        A(f"s_add_u32 s40, s{sJ}, {q}")
        A("s_sub_u32 s42, s40, 7"); A("s_min_u32 s40, s40, s42")
        A(f"s_mul_i32 s{sBW+q}, s40, {2*BLKW}")
        A(f"s_lshl_b32 s{sBX+q}, s40, 13")
    for q in range(6):
        if p.m6:
            A(f"s_mov_b32 s{sBW+7+q}, {(2*q+1)*BLKW}")
            A(f"s_mov_b32 s{sBX+7+q}, {(2*q+1)*4096}")
        else:
            A(f"s_add_u32 s40, s{sJ}, {q}")
            A("s_sub_u32 s42, s40, 6"); A("s_min_u32 s40, s40, s42")
            A("s_lshl_b32 s40, s40, 1"); A("s_or_b32 s40, s40, 1")
            A(f"s_mul_i32 s{sBW+7+q}, s40, {BLKW}")
            A(f"s_lshl_b32 s{sBX+7+q}, s40, 12")

def gen_member(m6):
    tag = "m6" if m6 else "mr"
    p = Prog(m6, tag); A = p.A; e = p.e
    U = unit_list(m6); NU = len(U); UL = NU // 3
    NB = P.NB
    XS0 = NPAGES - 4*NB
    halves = (0,) if m6 else (0, 1)
    own_pos = {0: 0, 1: 7}
    e.A(f"L_{tag}:")
    if P.stamps:
        p.nstamp = 3; p.names += ["start", "prew", "karg"]
    order0 = []
    for (l, pos, ks, H) in U[:UL]:
        if pos not in order0: order0.append(pos)
    n0 = {pos: n for n, pos in enumerate(order0)}
    free_pages = list(range(XS0))
    pending = []; page_of = {}
    st = {"next_w": 0, "landed": -1, "now": -1, "wl": 0}
    def w_can():
        return st["next_w"] < NU and bool(free_pages)
    def w_pre():
        v = st["next_w"]
        l = U[v][0]
        if l != st["wl"]:
            st["wl"] = l
            p.ensure(("tab", 25))
            A(f"s_add_u32 s16, s16, {WLAYER}"); A("s_addc_u32 s17, s17, 0"); A(f"s_sub_u32 s18, s18, {WLAYER}")
            if l == 1:
                for i in range(4): A(f"v_add_u32 v{vW+i}, v{vDELTA}, v{vW+i}")
                p.tokens.add(("wswitch",))
        pg = free_pages.pop(0); page_of[v] = pg
        pending.append((pg, v))
        A(f"s_add_u32 m0, s{sW1K}, {pg*PAGE}")
        st["m0"] = ("w", v)
    def w_go():
        v = st["next_w"]
        l, pos, ks, H = U[v]
        so = sT0W + n0[pos] if l == 0 else sBW + pos
        p.vmem(f"buffer_load_dwordx4 v{vW+2*ks+H}, s[16:19], s{so} offen{' nt' if (P.WNT == 2 or (P.WNT == 1 and l == 0)) else ''} lds", ("w", v))
        st["next_w"] += 1
    def w_dma():
        assert w_can(), "no free page"
        w_pre(); A("s_nop 0"); w_go()
    def w_rd(v, i, u):
        s, t = i // 2, i % 2
        off = page_of[v]*PAGE + s*2048 + u*1024
        d = WB + (v & 1)*16 + i*4 + 2*u
        p.lds(f"ds_read_b64_tr_b16 a[{d}:{d+1}], v{vTR+2*(off >> 16)+t} offset:{off & 0xffff}", ("w", v, i))
    def x0_pre(n, sp):
        if P.MS:
            if st.get("m0") == ("x", n): return
            st["m0"] = ("x", n)
            A(f"s_add_u32 m0, s{sXS}, {(n % NB)*PAGE}")
        else:
            A(f"s_add_u32 m0, s{sXS}, {(n % NB)*PAGE + sp*1024}")
    def x0_go(n, sp):
        p.vmem(f"buffer_load_dwordx4 v{vXS+sp}, s[20:23], s{sT0X+n} offen{(' offset:%d' % (1024*sp)) if P.MS else ''}{' nt' if P.XNT else ''} lds", ("x0", n))
    e.vm.append(("bias",))
    for sp in range(4): e.vm.append(("x0", 0))
    for v in range(2):
        pg = free_pages.pop(0); page_of[v] = pg; pending.append((pg, v)); e.vm.append(("w", v))
        assert pg == v and U[v][1:] == (0, v, 0)
    st["next_w"] = 2
    e.vm.append(("non",))
    if P.stamps:
        A("s_waitcnt lgkmcnt(0)"); A(f"v_writelane_b32 v{vST}, s96, 0"); A(f"v_writelane_b32 v{vST}, s100, 1"); A(f"v_writelane_b32 v{vST}, s98, 2")
    p.stamp("prebias")
    p.wait(vm=lambda t: t == ("bias",))
    A(f"v_lshlrev_b32 v{Y+2}, 16, v{Y}"); A(f"v_and_b32 v{Y+3}, 0xffff0000, v{Y}")
    A(f"v_add_f32 v{Y+2}, s45, v{Y+2}"); A(f"v_add_f32 v{Y+3}, s45, v{Y+3}")
    p.lds(f"ds_write_b64 v{Y+4}, v[{Y+2}:{Y+3}]", ("bw",))
    while st["next_w"] < P.PREW: w_dma()
    for n in range(1, P.PREX):
        for sp in range(4):
            x0_pre(n, sp)
            if sp == 0: A("s_nop 0")
            x0_go(n, sp)
    for q in range(26):
        def f(q=q):
            A(f"v_readlane_b32 s{sBW+q}, v{Y+20+q//13}, {q % 13}")
        p.add("valu", f, req=([("tab", q-1)] if q else []), give=[("tab", q)], at=P.TBAT, name="tab")

    first_use = {}; last_use = {}; last_unit = {}; first_unit = {}
    for v, (l, pos, ks, H) in enumerate(U):
        first_use.setdefault((l, pos), v); last_use[(l, pos)] = v; last_unit[(l, H)] = v; first_unit.setdefault((l, H), v)
    def f():
        p.wait(vm=lambda t: t == ("non",))
        A(f"v_readlane_b32 s{sNON}, v{Y+8}, 3"); A(f"v_readlane_b32 s{sNON+1}, v{Y+9}, 3")
        A("s_nop 3")
        A(f"s_or_b32 s{sNON}, s{sNON}, 1"); A(f"s_add_u32 s{sNON}, s{sNON}, 2"); A(f"s_add_u32 s{sNON+1}, s{sNON+1}, 1")
        A(f"s_add_u32 s{sHEL}, s{sHEL}, s{sNON+1}"); A(f"s_add_u32 s{sHEL}, s{sHEL}, 16")
        A(f"v_mov_b32 v{vNON}, s{sNON}"); A(f"v_mov_b32 v{vNON+1}, s{sHEL}")
        A(f"s_mov_b32 s44, {4*16384}")
        p.vmem(f"buffer_store_dwordx2 v[{vNON}:{vNON+1}], v{vFST}, s[24:27], s44 offen sc1", ("hello",))
        A("s_nop 0")
        A(f"v_mov_b32 v{vNON+1}, s{sNON+1}")
    p.add("vmemh", f, give=[("hello",)], at=0, name="hello")
    for n, pos in enumerate(order0):
        for sp in range(4):
            if n < P.PREX:
                p.tokens.add(("x0d", n, sp)); continue
            def pre(n=n, sp=sp):
                if n >= NB:
                    p.wait(lg=lambda t: t[0] == "x" and t[1] == 0 and t[2] == order0[n-NB])
                x0_pre(n, sp)
            def f(n=n, sp=sp):
                x0_go(n, sp); st[("x0at", n)] = st["now"]
            p.add("vmem", f, pre=pre, req=([("x0rd", n-NB)] if n >= NB else []) + [("x0d", n, sp-1) if sp else ("x0d", n-1, 3)],
                  give=[("x0d", n, sp)], name=f"x0dma{n}").dl = first_use[(0, pos)] - P.XLAT - 1
        for s4 in range(4):
            def f(n=n, pos=pos, s4=s4):
                p.wait(vm=lambda t: t == ("x0", n))
                txt, _ = xreg(m6, pos, s4 // 2, s4 % 2)
                p.lds(f"ds_read_b128 {txt}, v{vXR+s4} offset:{(n % NB)*PAGE}", ("x", 0, pos, s4))
            give = [("x0f", n, s4)]
            if s4 == 3: give.append(("xi", 0, pos))
            o = p.add("lds", f, req=[("x0d", n, 3)] + ([("x0f", n, s4-1)] if s4 else []), give=give, name=f"x0rd{n}")
            o.x0n = n
        def f(n=n):
            lab = f"L_{tag}_nc{n}"
            A(f"s_sub_u32 s44, s{sT0X+n}, s{sOWN}")
            A(f"s_cmp_le_u32 s44, {0 if m6 else 128}")
            A(f"s_cbranch_scc0 {lab}")
            e.A(f"v_add_u32 v3, {(n % NB)*PAGE}, v{vCB}")
            e.A(f"s_call_b64 s[{sRET}:{sRET+1}], L_{tag}_cap0")
            e.A(f"{lab}:")
        p.add("chk", f, req=[("xi", 0, pos), ("hello",)] + ([("x0rd", n-1)] if n else []), give=[("x0rd", n)], cost=3, name="capchk")
    def poll_load(off, key):
        A(f"s_mov_b32 s45, {off}")
        p.vmem(f"buffer_load_dwordx2 v[{vFL}:{vFL+1}], v{vFLAG}, s[24:27], s45 offen sc1", ("poll",) + key)
        st[("pollat",) + key] = st["now"]
    def poll_check(key, cmp_, mask):
        lab = f"L_{tag}_ok{key[0]}{key[1]}"; lp = f"L_{tag}_sp{key[0]}{key[1]}"
        if P.fine: p.stamp(f"chk{key}<")
        p.wait(vm=lambda t: t == ("poll",) + key)
        e.A(f"{lp}:")
        if cmp_ == "hello":
            A(f"v_subrev_u32 v2, s{sNON+1}, v{vFL+1}")
            A("v_lshrrev_b32 v2, 4, v2")
            A(f"v_xor_b32 v3, s{sNON}, v{vFL}")
            A("v_xor_b32 v2, 1, v2")
            A("v_or_b32 v2, v2, v3")
            A("v_cmp_eq_u32 vcc, 0, v2")
        else:
            A(cmp_)
        A("s_nop 1")
        A(f"s_and_b32 s44, vcc_lo, {mask}")
        A(f"s_cmp_eq_u32 s44, {mask}")
        A(f"s_cbranch_scc1 {lab}")
        e.A("s_sleep 1")
        e.A(f"buffer_load_dwordx2 v[{vFL}:{vFL+1}], v{vFLAG}, s[24:27], s45 offen sc1")
        e.A("s_sub_u32 s46, s46, 1")
        e.A("s_waitcnt vmcnt(0)")
        e.A(f"s_cbranch_scc0 {lp}")
        e.A(f"{lab}:")
        if P.fine: p.stamp(f"chk{key}>")
    p.add("vmemh", lambda: poll_load(4*16384, (9, 9)), req=[("hello",)], give=[("pi", 9, 9)], at=P.HELLO*UL/52.0, name="hpoll")
    def f():
        poll_check((9, 9), "hello", 0x7f)
        A(f"v_cmp_eq_u32 vcc, s{sHEL}, v{vFL+1}")
        A("s_nop 1")
        A("s_and_b32 s44, s44, vcc_lo")
        A("s_cmp_eq_u32 s44, 0x7f")
        A(f"s_cselect_b32 s{sMODE}, {1 if P.fast else 0}, 0")
        A(f"s_cselect_b32 s{sX2}, {0 if P.fast else XREG_STRIDE}, {XREG_STRIDE}")
    o = p.add("chk", f, req=[("pi", 9, 9)], give=[("mode",)], cost=3, name="hchk"); o.bh = (9, 9)

    def flag_store(idx, slow_touch):
        lab = f"L_{tag}_fl{idx}"
        A(f"s_mov_b32 s44, {idx*16384}")
        A(f"s_cmp_lg_u32 s{sMODE}, 0")
        A(f"s_cbranch_scc1 {lab}f")
        e.A(f"buffer_store_dwordx2 v[{vNON}:{vNON+1}], v{vFST}, s[24:27], s44 offen sc1")
        if slow_touch and P.touch:
            e.A(f"v_subrev_u32 v2, s{sBASE}, v{vXL}")
            e.A("v_and_b32 v2, 0x1f0, v2")
            e.A(f"v_lshl_add_u32 v2, v2, 3, s{sBASE}")
            e.A(f"s_add_u32 s40, s{sBX+own_pos[idx & 1]}, {XREG0 + XREG_STRIDE}")
            e.A("buffer_load_dword a224, v2, s[24:27], s40 offen sc1")
        e.A(f"s_branch {lab}j")
        e.A(f"{lab}f:")
        p.vmem(f"buffer_store_dwordx2 v[{vNON}:{vNON+1}], v{vFST}, s[24:27], s44 offen", ("fl", idx))
        e.A(f"{lab}j:")
    def f():
        p.wait(vm=lambda t: t == ("x", 1, 6, 3))
        flag_store(5, False)
    p.add("vmemh", f, req=[("udone", first_use[(1, 6)])], give=[("cons",)], name="cons")
    p.add("vmemh", lambda: poll_load(5*16384, (8, 8)), req=[("cons",), ("ok", 0, 1)], give=[("pi", 8, 8)], at=UL + P.CONS*UL/52.0, name="cpoll")
    o = p.add("chk", lambda: poll_check((8, 8), f"v_cmp_eq_u64 vcc, s[{sNON}:{sNON+1}], v[{vFL}:{vFL+1}]", 0x7f),
              req=[("pi", 8, 8)], give=[("ok", 8, 8)], cost=3, name="cchk"); o.bh = (8, 8)
    prev_crit = None
    prev_bc = None
    for l in range(3):
        for H in halves:
            lu = last_unit[(l, H)]
            if (l, H) != (0, 0):
                for q in range(8):
                    def f(l=l, H=H, q=q):
                        p.lds(f"ds_read_b128 v[{BC+4*q}:{BC+4*q+3}], v{vBIAS} offset:{l*512 + (64*H + 8*q)*4}", ("bc", l, H, q // 4))
                    p.add("lds", f, req=[("udone", prev_bc)] + ([("bcr", l, H, q-1)] if q else []), give=[("bcr", l, H, q)],
                          at=max(0, first_unit[(l, H)] - 8), name="bc")
            prev_bc = first_unit[(l, H)]
            if l > 0:
                for q in range(32):
                    def f(H=H, q=q):
                        if q % 2 == 0: A(f"v_lshlrev_b32 v{Y+q}, 16, v{PX+16*H+q//2}")
                        else: A(f"v_and_b32 v{Y+q}, 0xffff0000, v{PX+16*H+q//2}")
                    p.add("valu", f, req=[prev_crit, ("wswitch",)] + ([("yp", l, H, q-1)] if q else []), give=[("yp", l, H, q)], name="yprep")
            for q in range(48):
                g3, k = q // 3, q % 3
                def f(l=l, H=H, g3=g3, k=k):
                    a, b, c_ = X0F + 32*H + 2*g3, Y + 2*g3, ACC + 32*H + 2*g3
                    tile = 2*H + g3 // 8
                    if k == 2:
                        d = PX + 16*H + g3
                        p.valu(f"v_cvt_pk_bf16_f32 v{d}, v{c_}, v{c_+1}", writes=[d])
                    elif l == 0:
                        p.valu(f"v_mul_f32 v{c_+k}, v{a+k}, v{c_+k}", acc_tile=tile)
                    else:
                        p.valu(f"v_fma_f32 v{c_+k}, v{a+k}, v{c_+k}, v{b+k}", acc_tile=tile)
                give = [("cr", l, H, q)] + ([("crit", l, H)] if q == 47 else [])
                req = [("udone", lu), ("udone", last_use[(l, own_pos[H])])]
                req += [("yp", l, H, 31)] if l else [("x0rd", 12)]
                if prev_crit: req.append(prev_crit)
                p.add("crit", f, req=req + ([("cr", l, H, q-1)] if q else []), give=give, at=lu+1.25, name="crit")
            prev_crit = ("crit", l, H)
            src = PX + 16*H
            if l < 2:
                for q in range(4):
                    def f(l=l, H=H, q=q, src=src):
                        lab = f"L_{tag}_st{l}{H}{q}"
                        ins = f"buffer_store_dwordx4 v[{src+4*q}:{src+4*q+3}], v{vXL}, s[24:27], s43 offen offset:{q*1024}"
                        if q == 0:
                            A(f"s_add_u32 s43, s{sBX+own_pos[H]}, {XREG0}")
                            if l == 1: A(f"s_add_u32 s43, s43, s{sX2}")
                        if l == 0:
                            p.vmem(ins + " sc1", ("st", l, H))
                        else:
                            A(f"s_cmp_lg_u32 s{sMODE}, 0")
                            A(f"s_cbranch_scc1 {lab}f")
                            e.A(ins + " sc1")
                            e.A(f"s_branch {lab}j")
                            e.A(f"{lab}f:")
                            p.vmem(ins, ("st", l, H))
                            e.A(f"{lab}j:")
                        if q == 3: st[("stat", l, H)] = st["now"]
                    req = [("cr", l, H, 12*q+11), ("tab", 25)] + ([("st", l, H, q-1)] if q else [])
                    if l == 1: req += [("mode",), ("ok", 8, 8) if H == 0 else ("ok", 1, 0)]
                    p.add("vmemh", f, req=req, give=[("st", l, H, q)], name="store")
                def touch(H):
                    A(f"v_subrev_u32 v2, s{sBASE}, v{vXL}")
                    A("v_and_b32 v2, 0x1f0, v2")
                    A(f"v_lshl_add_u32 v2, v2, 3, s{sBASE}")
                    A(f"s_add_u32 s40, s{sBX+own_pos[H]}, {XREG0}")
                    return "buffer_load_dword a224, v2, s[24:27], s40 offen sc1"
                if l == 0 and P.T0 == 2:
                    def f(l=l, H=H):
                        p.wait(vm=lambda t: t == ("st", l, H))
                        p.vmem(touch(H), ("tch", l, H))
                        st[("tat", l, H)] = st["now"]
                    o = p.add("vmemh", f, req=[("st", l, H, 3)], give=[("tch", l, H)], name="touch"); o.lh = (l, H)
                def f(l=l, H=H):
                    p.wait(vm=lambda t: t == ("st", l, H) or t == ("tch", l, H))
                    if l == 0 and P.T0 == 1:
                        p.vmem(touch(H), ("tch", l, H))
                    flag_store(2*l+H, l == 1)
                if l == 0 and P.T0 == 2:
                    o = p.add("vmemh", f, req=[("tch", l, H), ("mode",)], give=[("sent", l, H)], name="flag"); o.th = (l, H)
                else:
                    o = p.add("vmemh", f, req=[("st", l, H, 3), ("mode",)], give=[("sent", l, H)], name="flag"); o.lh = (l, H)
            else:
                for ch in range(8):
                    def f(H=H, ch=ch, src=src):
                        if ch == 0:
                            p.wait(lg=lambda t: t[0] == "or")
                            if H == 0:
                                A(f"v_subrev_u32 v{vOR}, s{sBASE}, v{vXL}"); A(f"v_add_u32 v{vOR}, s{sXS}, v{vOR}")
                        A(f"v_xor_b32 v2, {ch}, v{vZ}"); A(f"v_lshl_add_u32 v2, v2, 4, v{vCB}")
                        p.lds(f"ds_write_b64 v2, v[{src+2*ch}:{src+2*ch+1}]", ("ow", H, ch))
                        st[("owat", H)] = st["now"]
                    p.add("lds", f, req=[("cr", 2, H, 6*ch+5)] + ([("ow", H, ch-1)] if ch else []), give=[("ow", H, ch)], cost=3, name="ow")
                dst = BC + 16*H
                for q in range(4):
                    def f(H=H, q=q, dst=dst):
                        p.wait(lg=lambda t: t[0] == "ow")
                        p.lds(f"ds_read_b128 v[{dst+4*q}:{dst+4*q+3}], v{vOR} offset:{q*1024}", ("or", H, q))
                        st[("orat", H)] = st["now"]
                    p.add("lds", f, req=[("ow", H, 7)] + ([("or", H, q-1)] if q else []), give=[("or", H, q)], name="or").oh = ("owat", H)
                for q in range(4):
                    def f(H=H, q=q, dst=dst):
                        p.wait(lg=lambda t: t == ("or", H, q))
                        if q == 0:
                            if H: A(f"s_add_u32 s43, s{sOWN}, 128")
                            else: A(f"s_mov_b32 s43, s{sOWN}")
                        p.vmem(f"buffer_store_dwordx4 v[{dst+4*q}:{dst+4*q+3}], v{vXS+q}, s[28:31], s43 offen offset:{1024*q*P.MS}{('', ' sc1', ' nt', ' sc0 sc1')[P.OF1 if H else P.OF]}", ("ost", H))
                    p.add("vmemh", f, req=[("or", H, 3)] + ([("ost", H, q-1)] if q else []), give=[("ost", H, q)], name="ostore").oh = ("orat", H)
    prev = None
    for l in (1, 2):
        for H in (0, 1):
            b = l - 1
            poss = list(range(1, 7) if H == 0 else range(7 if m6 else 8, 13))
            scale = UL / 52.0
            at = (l-1)*UL + (P.POLL_E0 if l == 1 else P.POLL_E)*scale if H == 0 else l*UL + (P.POLL_L0 if l == 1 else P.POLL_L)*scale
            sent = [("sent", b, h) for h in halves if h <= H]
            p.add("vmemh", lambda b=b, H=H: poll_load((2*b+H)*16384, (b, H)),
                  req=sent + ([("ok", b, 0)] if H else []), give=[("pi", b, H)], at=at, name="poll")
            o = p.add("chk", lambda b=b, H=H: poll_check((b, H), f"v_cmp_eq_u64 vcc, s[{sNON}:{sNON+1}], v[{vFL}:{vFL+1}]", 0x7f if H == 0 else 0x3f),
                      req=[("pi", b, H)], give=[("ok", b, H)], cost=3, name="chk"); o.bh = (b, H)
            for pos in poss:
                for q in range(4):
                    def f(l=l, pos=pos, q=q, first=(l == 2 and H == 0 and pos == 1 and q == 0)):
                        if first:
                            A(f"s_add_u32 s{sXL}, s{sXL}, s{sX2}"); A(f"s_addc_u32 s{sXL+1}, s{sXL+1}, 0")
                        txt, _ = xreg(m6, pos, q // 2, q % 2)
                        p.vmem(f"buffer_load_dwordx4 {txt}, v{vXL}, s[{sXL}:{sXL+3}], s{sBX+pos} offen offset:{q*1024}{(' sc1', '', ' nt')[P.XF]}", ("x", l, pos, q))
                    give = [("xl", l, pos, q)] + ([("xi", l, pos)] if q == 3 else [])
                    p.add("vmem", f, req=[("ok", b, H), ("udone", last_use[(l-1, pos)])] + ([prev] if prev else []), give=give, name="xld").dl = first_use[(l, pos)] + q // 2 - 1
                    prev = ("xl", l, pos, q)

    def gates():
        for o in p.ops:
            if o.done: continue
            if hasattr(o, "lh"): o.at = st.get(("stat",) + o.lh, 1e9) + (P.ACK0 if o.lh[0] == 0 else P.ACK)
            elif hasattr(o, "oh"): o.at = st.get(o.oh, 1e9) + 1 + P.OD
            elif hasattr(o, "th"): o.at = st.get(("tat",) + o.th, 1e9) + P.TW
            elif hasattr(o, "bh"): o.at = st.get(("pollat",) + o.bh, 1e9) + P.POLLW
            elif hasattr(o, "x0n"): o.at = st.get(("x0at", o.x0n), -2) + P.XLAT
    p.wait(lg=lambda t: t == ("bw",))
    p.stamp("setup")
    p.wait(vm=lambda t: t[0] == "w" and t[1] <= 1)
    A("s_barrier")
    st["landed"] = 1
    p.stamp("w01")
    for q in range(8):
        p.lds(f"ds_read_b128 v[{BC+4*q}:{BC+4*q+3}], v{vBIAS} offset:{32*q}", ("bc", 0, 0, q // 4))
        p.tokens.add(("bcr", 0, 0, q))
    for i in range(4):
        w_rd(0, i, 0); w_rd(0, i, 1)
    donated = False
    seen = set()
    plan = None
    for u, (l, pos, ks, H) in enumerate(U):
        e.c(f"---- unit {u}: layer {l} pos {pos} ks {ks} H {H}")
        st["now"] = u
        if u % UL == 0: p.stamp(f"L{l}")
        elif not m6 and u == last_unit[(l, 0)] + 1: p.stamp(f"L{l}C")
        elif P.fine and u % UL in (8, 20): p.stamp(f"u{u}")
        elif u >= P.STU and (u - P.STU) % P.STN == 0 and not m6: p.stamp(f"u{u}")
        own = pos == 0 or (pos == 7 and not m6)
        if l == 0 or not own: p.ensure(("xi", l, pos))
        else: p.ensure(("crit", l-1, 0 if pos == 0 else 1))
        first = (l, H) not in seen
        seen.add((l, H))
        if first:
            if l > 0: p.ensure(("crit", l-1, H))
            p.ensure(("bcr", l, H, 7))
        need_bar = u + 1 < NU and u + 1 > st["landed"]
        upto = -1
        if need_bar:
            upto = min(u + (2 if u < 4 else P.GB), NU - 1)
            assert plan is None
            while st["next_w"] <= upto: w_dma()
        xs = {("x", l, pos, 2*ks), ("x", l, pos, 2*ks+1)}
        p.wait(vm=lambda t: (t[0] == "w" and t[1] <= upto) or (l > 0 and t in xs),
               lg=lambda t: (t[0] == "w" and t[1] == u) or (l == 0 and t in xs) or (first and t[:3] == ("bc", l, H)))
        if need_bar:
            A("s_barrier")
            st["landed"] = upto
            for it in list(pending):
                if it[1] <= u - 1:
                    free_pages.append(it[0]); pending.remove(it)
        if not donated and ("x0rd", 12) in p.tokens:
            p.wait(lg=lambda t: t[0] == "x" and t[1] == 0)
            for w in range(4):
                for i in range(1, NB): pending.append((XS0 + w*NB + i, u))
            donated = True
        for i in range(4):
            s, t = i // 2, i % 2
            now = u + i/4.0
            tile = 2*H + t
            txt, (kind, r) = xreg(m6, pos, ks, s)
            if kind == "v":
                p.pad(max(p.last_valu.get(x, -99) for x in range(r, r+4)), 2)
            a0 = WB + (u & 1)*16 + i*4
            acc = f"v[{ACC+16*tile}:{ACC+16*tile+15}]"
            cin = f"v[{BC+16*t}:{BC+16*t+15}]" if (first and s == 0) else acc
            A(f"v_mfma_f32_32x32x16_bf16 {acc}, a[{a0}:{a0+3}], {txt}, {cin}")
            p.last_mfma[tile] = p.icount
            p.used = 0
            if i == 3: p.tokens.add(("udone", u))
            gates()
            if plan is not None:
                if plan == "w": w_go()
                else: p.run(plan)
                plan = None
            if u + 1 < NU:
                td = [int(c) for c in str(P.TD).zfill(4)]
                for k in range(sum(td[:i]), sum(td[:i+1])): w_rd(u+1, k // 2, k % 2)
            bud = P.BUD - (1 if i == 3 else 0)
            third = False
            if i == 0:
                o = p.pick(now + 0.25, "vmem")
                dls = ([o.dl] if o is not None else []) + ([st["next_w"] - P.GB - P.WDL] if w_can() else [])
                third = bool(dls) and min(dls) - u < P.SL3
            if i in (1, 2) or third:
                nxt = now + 0.25
                la = st["next_w"] - u
                o = p.pick(nxt, "vmemh")
                urgent = p.pick(now, "crit") is not None
                if o is None:
                    o = p.pick(nxt, "vmem")
                    if w_can():
                        wdl = st["next_w"] - P.GB - P.WDL
                        if o is not None:
                            if wdl < o.dl: o = "w"
                        elif la < P.MINLA: o = "w"
                        elif not urgent:
                            backlog = p.pick(now, "valu") is not None or p.pick(now, "lds") is not None
                            if not (backlog and la >= P.HILA and i == 2): o = "w"
                plan = o
                bud -= 1 if (o == "w" or (o is not None and o.pre)) else 0
            while True:
                rem = bud - p.used
                o = p.pick(now, "crit")
                if o is not None and rem + P.CRITX >= 1:
                    p.run(o); continue
                got = False
                for kind_ in ("chk", "lds", "valu"):
                    o = p.pick(now, kind_)
                    if o is not None and rem >= 1 and o.cost <= rem + 2:
                        p.run(o); got = True; break
                if not got: break
            if plan == "w": w_pre()
            elif plan is not None and plan.pre:
                plan.pre(); plan.predone = True
    st["now"] = NU
    p.stamp("end")
    for o in p.ops:
        if not o.done: p.run(o)
    p.stamp("flush")
    if P.stamps:
        A("s_waitcnt vmcnt(0)")
        p.stamp("drain")
        while p.nstamp < NSTAMP:
            e.A(f"v_writelane_b32 v{vST}, s{sSTM}, {p.nstamp}"); p.nstamp += 1
        stamp_store(e)
    if P.dbg and not m6:
        A("s_waitcnt vmcnt(0)")
        A("s_memtime s[40:41]"); A("s_memrealtime s[42:43]"); A("s_waitcnt lgkmcnt(0)")
        A("s_sub_u32 s40, s40, s96"); A("s_sub_u32 s42, s42, s100")
        A("s_and_b32 s44, s2, 0xf8"); A(f"s_or_b32 s44, s44, s{sWV}"); A("s_cmp_lg_u32 s44, 0"); A("s_cbranch_scc1 L_end")
        A("s_lshl_b32 s44, s2, 3")
        A("v_mov_b32 v2, s40"); A("v_mov_b32 v3, s42"); A("v_mov_b32 v4, s44")
        A("global_store_dwordx2 v4, v[2:3], s[98:99]")
    A("s_endpgm")
    for H in halves:
        e.A(f"L_{tag}_cap{H}:")
        if H == 0 and not m6:
            e.A("s_cmp_lg_u32 s44, 0"); e.A(f"s_cbranch_scc1 L_{tag}_cap1")
        for ch in range(8):
            e.A(f"v_xor_b32 v2, {ch}, v{vZ}"); e.A("v_lshl_add_u32 v2, v2, 4, v3")
            e.A(f"ds_read_b64 v[{Y+2*ch}:{Y+2*ch+1}], v2")
        for q in range(16):
            if q % 2 == 0: e.A(f"s_waitcnt lgkmcnt({7 - q//2})")
            e.A(f"v_lshlrev_b32 v{X0F+32*H+2*q}, 16, v{Y+q}")
            e.A(f"v_and_b32 v{X0F+32*H+2*q+1}, 0xffff0000, v{Y+q}")
        e.A(f"s_setpc_b64 s[{sRET}:{sRET+1}]")
    return e.text(), p.names

def stamp_store(e):
    A = e.A
    A(f"s_cmp_lg_u32 s{sWV}, 0"); A("s_cbranch_scc1 L_end")
    A("v_mbcnt_lo_u32_b32 v2, -1, 0"); A("v_mbcnt_hi_u32_b32 v2, -1, v2")
    A("v_lshlrev_b32 v2, 2, v2"); A("s_lshl_b32 s44, s2, 8")
    A(f"buffer_store_dword v{vST}, v2, s[24:27], s44 offen")

def gen_helper():
    e = Em(); A = e.A
    A("L_helper:")
    A("s_waitcnt lgkmcnt(0)")
    A("s_mov_b32 s20, s4"); A("s_mov_b32 s21, s5"); A("s_mov_b32 s16, s6"); A("s_mov_b32 s17, s7")
    A("s_mov_b32 s24, s14"); A("s_mov_b32 s25, s15"); A(f"s_mov_b32 s26, {WS_BYTES}"); A("s_mov_b32 s27, 0x20000")
    n = [0]
    def stamp():
        if P.stamps:
            A(f"s_mem{'real' if P.rt else ''}time s[{sSTM}:{sSTM+1}]"); A("s_waitcnt lgkmcnt(0)")
            A(f"v_writelane_b32 v{vST}, s{sSTM}, {n[0]}"); n[0] += 1
    stamp()
    def item_loop(name, first, last, stride, start_expr, depth):
        for x in start_expr: A(x)
        A(f"s_add_u32 s50, s50, {first}")
        A(f"L_{name}:")
        A(f"s_cmp_ge_u32 s50, {last}"); A(f"s_cbranch_scc1 L_{name}_done")
        A("s_mul_i32 s51, s50, 5042"); A("s_lshr_b32 s51, s51, 16")
        A("s_mul_i32 s52, s51, 13"); A("s_sub_u32 s52, s50, s52")
        A("s_mul_i32 s53, s51, 5042"); A("s_lshr_b32 s53, s53, 16")
        A("s_mul_i32 s54, s53, 13"); A("s_sub_u32 s54, s51, s54")
        A("s_lshr_b32 s55, s52, 1")
        A("s_sub_u32 s56, s54, 1"); A("s_max_i32 s56, s56, 0")
        A("s_add_u32 s56, s56, s55")
        A("s_cmp_ge_u32 s56, 7"); A("s_cselect_b32 s57, 7, 0"); A("s_sub_u32 s56, s56, s57")
        A("s_lshl_b32 s56, s56, 1")
        A("s_sub_u32 s57, s54, 7"); A("s_max_i32 s57, s57, 0")
        A("s_cmp_eq_u32 s55, 6"); A("s_cselect_b32 s58, 0, s55")
        A("s_add_u32 s57, s57, s58")
        A("s_cmp_ge_u32 s57, 6"); A("s_cselect_b32 s58, 6, 0"); A("s_sub_u32 s57, s57, s58")
        A("s_lshl_b32 s57, s57, 1"); A("s_add_u32 s57, s57, 1")
        A("s_cmp_eq_u32 s54, 1"); A("s_cselect_b32 s56, s57, s56")
        A("s_cmp_ge_u32 s54, 8"); A("s_cselect_b32 s56, s57, s56")
        A(f"s_mul_i32 s56, s56, {BLKW}")
        A(f"s_mul_i32 s53, s53, {WLAYER}")
        A("s_lshl_b32 s52, s52, 7")
        A("s_add_u32 s40, s56, s53"); A("s_add_u32 s40, s40, s52")
        A("buffer_load_dword v8, v2, s[16:19], s40 offen" + (" nt" if (P.WNT == 2 or (P.WNT == 3 and name == "hp2")) else ""))
        A(f"s_waitcnt vmcnt({depth})")
        A(f"s_add_u32 s50, s50, {stride}")
        A(f"s_branch L_{name}")
        A(f"L_{name}_done:")
    if P.CPF:
        A("s_getpc_b64 s[40:41]")
        A("L_pc:")
        A(f"s_sub_u32 s40, s40, L_pc-{NAME}_kernel"); A("s_subb_u32 s41, s41, 0")
        A(f"s_lshl_b32 s42, s{sCQ}, 2"); A(f"s_add_u32 s42, s42, s{sWV}"); A("s_lshl_b32 s42, s42, 13")
        A(f"s_cmp_ge_u32 s42, L_pc-{NAME}_kernel"); A("s_cbranch_scc1 L_cpf_done")
        A("v_lshl_add_u32 v3, v1, 7, s42")
        A(f"v_min_u32 v3, L_pc-{NAME}_kernel, v3")
        A("global_load_dword v9, v3, s[40:41]")
        A("L_cpf_done:")
    if P.helper:
        A("v_mul_u32_u24 v2, 1664, v1")
        if P.HX0:
            if P.HW: A("s_waitcnt vmcnt(0)")
            if P.OT: order.emit_table(A, sT0X, sJ, sCQ, sX2, 40, 41, 42, 43, helper=True)
            A(f"s_and_b32 s44, s{sWV}, 1"); A(f"s_lshl_b32 s45, s{sC}, 1"); A("s_add_u32 s44, s44, s45")
            A(f"s_mul_i32 s44, s44, {64*ROWB}")
            for r in range(3):
                A(f"s_cmp_ge_u32 s{sWV}, 2")
                A(f"s_cselect_b32 s45, s{sT0X+2*r+1}, s{sT0X+2*r}")
                A("s_add_u32 s40, s44, s45")
                A("buffer_load_dword v8, v2, s[20:23], s40 offen" + (" nt" if P.XNT else ""))
        if P.HP1:
            item_loop("hp1", 13*P.H0, 507, 128, [f"s_lshl_b32 s50, s{sC}, 2", f"s_add_u32 s50, s50, s{sWV}"], 1)
        if P.stamps: A("s_waitcnt vmcnt(0)")
        stamp()
        item_loop("hp2", 13*P.H2, 507, 16, [f"s_lshl_b32 s50, s{sCQ}, 2", f"s_add_u32 s50, s50, s{sWV}"], 1)
        A("s_waitcnt vmcnt(0)")
    stamp()
    if P.stamps:
        while n[0] < NSTAMP:
            A(f"v_writelane_b32 v{vST}, s{sSTM}, {n[0]}"); n[0] += 1
        stamp_store(e)
    A("s_endpgm")
    return e.text()

def main():
    out = sys.argv[1]
    for a in sys.argv[2:]:
        a = a.lstrip("-")
        if "=" in a:
            k, v = a.split("="); assert hasattr(P, k), k; setattr(P, k, type(getattr(P, k))(int(v)))
        else:
            assert hasattr(P, a), a; setattr(P, a, True)
    k = NAME + "_kernel"
    T = []
    A = T.append
    A('.amdgcn_target "amdgcn-amd-amdhsa--gfx950"')
    A(".text"); A(f".globl {k}"); A(".p2align 8"); A(f".type {k},@function"); A(f"{k}:")
    NB = P.NB; XS0 = NPAGES - 4*NB
    A("s_load_dwordx8 s[4:11], s[0:1], 0")
    A("s_load_dwordx2 s[14:15], s[0:1], 40")
    if P.stamps: A(f"s_mem{'real' if P.rt else ''}time s[96:97]")
    if P.dbg:
        A("s_load_dwordx2 s[98:99], s[0:1], 32"); A("s_memtime s[96:97]"); A("s_memrealtime s[100:101]")
    A("s_cmp_ge_u32 s2, 256"); A("s_cbranch_scc1 L_end")
    A("v_lshrrev_b32 v2, 6, v0"); A("v_and_b32 v1, 63, v0")
    A("s_and_b32 s44, s2, 7")
    A(f"v_readfirstlane_b32 s{sWV}, v2")
    A(f"s_lshr_b32 s{sCQ}, s2, 6")
    A(f"s_bfe_u32 s{sJ}, s2, 0x30003")
    A(f"s_lshl_b32 s{sC}, s{sCQ}, 3"); A(f"s_add_u32 s{sC}, s{sC}, s44")
    A(f"s_lshl_b32 s{sX2}, s44, 1" if P.XSH else f"s_mov_b32 s{sX2}, 0")
    A(f"s_lshl_b32 s45, s{sCQ}, 1"); A(f"s_add_u32 s45, s45, s{sJ}"); A("s_sub_u32 s46, s45, 7"); A("s_min_u32 s45, s45, s46")
    A("s_lshl_b32 s45, s45, 1"); A(f"s_add_u32 s45, s45, s{sX2}")
    A("s_sub_u32 s46, s45, 13"); A("s_min_u32 s45, s45, s46"); A("s_sub_u32 s46, s45, 13"); A("s_min_u32 s45, s45, s46")
    A(f"s_lshl_b32 s{sT0X}, s45, 7")
    A(f"s_mov_b32 s18, {3*WLAYER}"); A("s_mov_b32 s19, 0x20000"); A(f"s_mov_b32 s22, {4096*ROWB}"); A("s_mov_b32 s23, 0x20000")
    A(f"s_cmp_eq_u32 s{sJ}, 7"); A("s_cbranch_scc1 L_helper")
    A(f"s_lshl_b32 s43, s{sC}, 2"); A(f"s_add_u32 s43, s43, s{sWV}"); A(f"s_mul_i32 s46, s43, {32*ROWB}")
    A("v_lshrrev_b32 v2, 3, v1"); A("v_and_b32 v3, 7, v1"); A("v_lshrrev_b32 v4, 4, v1")
    A("v_mul_u32_u24 v6, 1664, v2"); A("v_add_u32 v6, s46, v6")
    A("v_xor_b32 v7, v4, v3"); A(f"v_lshl_add_u32 v{vXS}, v7, 4, v6")
    A("v_xor_b32 v7, 4, v7"); A(f"v_lshl_add_u32 v{vXS+1}, v7, 4, v6"); A(f"v_add_u32 v{vXS+1}, {8*ROWB - 1024}, v{vXS+1}")
    A(f"v_add_u32 v{vXS+2}, {16*ROWB - 2048}, v{vXS}"); A(f"v_add_u32 v{vXS+3}, {16*ROWB - 2048}, v{vXS+1}")
    A(f"s_mul_i32 s{sXS}, s{sWV}, {NB*PAGE}"); A(f"s_add_u32 s{sXS}, s{sXS}, {XS0*PAGE}")
    A(f"s_mov_b32 m0, s{sXS}")
    A(f"s_lshl_b32 s{sOWN+10}, s{sJ}, 8")
    A(f"s_min_u32 s45, s{sWV}, 2")
    A(f"s_mul_i32 s40, s45, {ROWB}"); A("s_add_u32 s40, s40, s44")
    A("v_lshlrev_b32 v6, 2, v1")
    A(f"s_mov_b32 s34, {3*ROWB}"); A("s_mov_b32 s35, 0x20000")
    if P.stamps: A(f"s_mem{'real' if P.rt else ''}time s[100:101]")
    A("s_waitcnt lgkmcnt(0)")
    if P.stamps: A(f"s_mem{'real' if P.rt else ''}time s[98:99]")
    A("s_mov_b32 s20, s4"); A("s_mov_b32 s21, s5"); A("s_mov_b32 s32, s8"); A("s_mov_b32 s33, s9")
    A(f"buffer_load_dword v{Y}, v6, s[32:35], s40 offen")
    for sp in range(4):
        A(f"buffer_load_dwordx4 v{vXS+sp}, s[20:23], s{sT0X} offen offset:{1024*sp} lds")
    A("s_mov_b32 s16, s6"); A("s_mov_b32 s17, s7")
    for d, b_, size in ((24, 14, WS_BYTES), (28, 10, 4096*ROWB)):
        A(f"s_mov_b32 s{d}, s{b_}"); A(f"s_mov_b32 s{d+1}, s{b_+1}"); A(f"s_mov_b32 s{d+2}, {size}"); A(f"s_mov_b32 s{d+3}, 0x20000")
    A(f"s_add_u32 s{sXL}, s14, {XREG0}"); A(f"s_addc_u32 s{sXL+1}, s15, 0"); A(f"s_mov_b32 s{sXL+2}, {XREG_STRIDE}"); A(f"s_mov_b32 s{sXL+3}, 0x20000")
    A(f"s_lshl_b32 s{sW1K}, s{sWV}, 10")
    A("v_and_b32 v5, 1, v4"); A("v_lshlrev_b32 v5, 2, v5"); A("v_xor_b32 v5, v5, v3")
    A("v_lshl_add_u32 v5, v5, 4, s44")
    A(f"s_lshr_b32 s42, s{sWV}, 1"); A("s_lshl_b32 s42, s42, 4"); A(f"s_and_b32 s40, s{sWV}, 1"); A("s_lshl_b32 s48, s40, 2")
    A("s_add_u32 s42, s42, s48")
    A("v_lshrrev_b32 v7, 5, v1")
    A("v_and_b32 v6, 3, v2"); A("v_lshl_add_u32 v6, v7, 3, v6"); A("v_add_u32 v6, s42, v6")
    A("v_mul_u32_u24 v6, 1664, v6"); A(f"v_add_u32 v{vW}, v5, v6")
    A(f"v_add_u32 v{vW+1}, 128, v{vW}"); A(f"v_add_u32 v{vW+2}, {KSW}, v{vW}"); A(f"v_add_u32 v{vW+3}, {KSW+128}, v{vW}")
    A(f"v_mul_i32_i24 v{vDELTA}, 0xffffe600, v7"); A("s_mul_i32 s40, s40, 6656"); A(f"v_add_u32 v{vDELTA}, s40, v{vDELTA}")
    vals = [order.pack(r) for r in order.T]
    for w_, dst in ((0, 48), (1, 49)):
        A(f"s_mov_b32 s{dst}, {(vals[0] >> (32*w_)) & 0xffffffff:#x}")
    for c in range(1, 4):
        A(f"s_cmp_eq_u32 s{sCQ}, {c}")
        for w_, dst in ((0, 48), (1, 49)):
            A(f"s_cselect_b32 s{dst}, {(vals[c] >> (32*w_)) & 0xffffffff:#x}, s{dst}")
    t = Y + 16
    A(f"v_lshlrev_b32 v{t}, 2, v1"); A(f"v_lshrrev_b64 v[{t}:{t+1}], v{t}, s[48:49]"); A(f"v_and_b32 v{t}, 15, v{t}")
    A(f"v_add_u32 v{t+1}, s{sJ}, v{t}"); A(f"v_subrev_u32 v{t+2}, 7, v{t+1}"); A(f"v_min_u32 v{t+1}, v{t+1}, v{t+2}")
    A(f"v_cmp_gt_u32 vcc, 7, v{t}")
    A(f"s_cmp_eq_u32 s{sJ}, 6"); A(f"s_cselect_b32 s40, 0, s{sJ}")
    A(f"v_cndmask_b32 v{t}, v{t}, v{t+1}, vcc")
    A(f"v_lshl_add_u32 v{t}, v{t}, 1, s{sX2}")
    for _ in range(2):
        A(f"v_subrev_u32 v{t+1}, 13, v{t}"); A(f"v_min_u32 v{t}, v{t}, v{t+1}")
    A(f"v_lshlrev_b32 v{t}, 7, v{t}"); A(f"v_mul_u32_u24 v{t+1}, 832, v{t}")
    A(f"v_add_u32 v{t+2}, s{sJ}, v1"); A(f"v_subrev_u32 v{t+3}, 7, v{t+2}"); A(f"v_min_u32 v{t+2}, v{t+2}, v{t+3}"); A(f"v_lshlrev_b32 v{t+2}, 1, v{t+2}")
    A(f"v_add3_u32 v{t+3}, v1, s40, -7"); A(f"v_subrev_u32 v{t+4}, 6, v{t+3}"); A(f"v_min_u32 v{t+3}, v{t+3}, v{t+4}"); A(f"v_lshl_or_b32 v{t+3}, v{t+3}, 1, 1")
    A("v_cmp_gt_u32 vcc, 7, v1")
    for n in range(13): A(f"v_readlane_b32 s{sT0W+n}, v{t+1}, {n}")
    A(f"v_cndmask_b32 v{t+2}, v{t+3}, v{t+2}, vcc")
    A(f"v_mul_u32_u24 v{t+4}, {BLKW}, v{t+2}"); A(f"v_lshlrev_b32 v{t+5}, 12, v{t+2}")
    for n in range(1, 13): A(f"v_readlane_b32 s{sT0X+n}, v{t}, {n}")
    A("s_lshl_b32 s45, s45, 9"); A(f"s_add_u32 s45, s45, {MISC}")
    A(f"v_lshl_add_u32 v{Y+4}, v1, 3, s45")
    A(f"s_mov_b32 s{sOWN}, s44")
    A("s_lshl_b32 s44, s43, 7"); A(f"s_add_u32 s44, s44, {FLAG_BASE}")
    A(f"v_lshl_add_u32 v{vFLAG}, v3, 3, s44")
    A(f"v_lshlrev_b32 v{vBIAS}, 4, v7"); A(f"v_add_u32 v{vBIAS}, {MISC}, v{vBIAS}")
    A(f"s_lshl_b32 s45, s{sJ}, 3"); A("s_add_u32 s45, s45, s44")
    A("v_mov_b32 v5, 0x80000000"); A("v_mov_b32 v6, s45")
    A("v_cmp_eq_u32 vcc, 0, v1")
    A(f"v_lshl_add_u32 v{vXL}, v1, 4, s46")
    A("v_and_b32 v2, 31, v1")
    A(f"v_cndmask_b32 v{vFST}, v5, v6, vcc")
    A(f"v_bfe_u32 v{vZ}, v1, 1, 3"); A(f"v_lshl_add_u32 v2, v2, 7, s{sXS}")
    for s4 in range(4):
        A(f"v_add_u32 v6, {2*s4}, v7"); A(f"v_xor_b32 v6, v6, v{vZ}"); A(f"v_lshl_add_u32 v{vXR+s4}, v6, 4, v2")
    A(f"v_lshl_add_u32 v{vCB}, v7, 3, v2")
    A("v_bfe_u32 v3, v1, 2, 2")
    A("v_lshl_add_u32 v4, v7, 2, v3"); A("v_lshlrev_b32 v4, 7, v4")
    A("v_bfe_u32 v6, v1, 4, 1"); A("v_lshl_add_u32 v4, v6, 5, v4")
    A("v_and_b32 v6, 3, v1"); A("v_lshl_add_u32 v4, v6, 3, v4")
    A("v_lshrrev_b32 v3, 1, v3")
    for t_ in range(2):
        A(f"v_xor_b32 v6, {t_}, v3"); A(f"v_lshl_add_u32 v{vTR+t_}, v6, 6, v4")
        A(f"v_add_u32 v{vTR+2+t_}, 0x10000, v{vTR+t_}"); A(f"v_add_u32 v{vTR+4+t_}, 0x20000, v{vTR+t_}")
    A("v_min_u32 v5, 5, v1"); A("v_lshl_add_u32 v5, v5, 14, s44")
    A(f"s_cmp_eq_u32 s{sWV}, 0"); A("s_cselect_b32 s45, 1.0, 0")
    A(f"s_getreg_b32 s{sHEL}, hwreg(HW_REG_XCC_ID, 0, 4)")
    A(f"s_mov_b32 s{sBASE}, s46")
    A("s_mov_b32 s46, 0x40000")
    for v in range(2):
        A(f"s_add_u32 m0, s{sW1K}, {v*PAGE}"); A("s_nop 0")
        A(f"buffer_load_dwordx4 v{vW+2*v}, s[16:19], s{sT0W} offen lds")
    A(f"buffer_load_dwordx2 v[{Y+8}:{Y+9}], v5, s[24:27], 0 offen sc1")
    A(f"s_cmp_eq_u32 s{sJ}, 6"); A("s_cbranch_scc1 L_m6")
    t1, n1 = gen_member(False)
    t2, n2 = gen_member(True)
    T.append(t1); T.append(t2)
    T.append(gen_helper())
    A("L_end:"); A("s_endpgm")
    A('.section .rodata,"a"'); A(".p2align 6")
    A(f""".amdhsa_kernel {k}
  .amdhsa_next_free_vgpr 488
  .amdhsa_next_free_sgpr 102
  .amdhsa_accum_offset 256
  .amdhsa_group_segment_fixed_size 0
  .amdhsa_kernarg_size 48
  .amdhsa_user_sgpr_count 2
  .amdhsa_user_sgpr_kernarg_segment_ptr 1
  .amdhsa_system_sgpr_workgroup_id_x 1
  .amdhsa_float_denorm_mode_32 3
.end_amdhsa_kernel
""")
    H = [f"; @launch grid=(256,1,1) block=(256,1,1) lds={LDS_BYTES}"]
    if P.stamps:
        H.append("; @st32" + (" @rt" if P.rt else ""))
        H.append("; @names_reg " + " ".join(x.replace(" ", "") for x in n1))
        H.append("; @names_m6 " + " ".join(x.replace(" ", "") for x in n2))
    open(out, "w").write("\n".join(H + T))

main()
```

```python
B = lambda k: 7 + k
T = [
    [0, 1, 2, 4, 6, B(1), 3, 5, B(0), B(5), B(2), B(3), B(4)],
    [2, 4, 3, 6, 0, 1, B(2), 5, B(0), B(1), B(3), B(4), B(5)],
    [4, 6, 0, 5, 2, 1, 3, B(3), B(0), B(1), B(2), B(4), B(5)],
    [6, 0, 2, 4, B(0), 1, 3, 5, B(4), B(1), B(2), B(3), B(5)],
]
T7 = T
C = lambda k: 4 + k
T4 = [
    [0, 1, 2, 3, C(0), C(4), C(1), C(2), C(3), C(8), C(5), C(6), C(7)],
    [1, 2, 3, 0, C(1), C(0), C(5), C(2), C(3), C(4), C(6), C(7), C(8)],
    [2, 3, 0, 1, C(2), C(0), C(1), C(6), C(3), C(4), C(5), C(7), C(8)],
    [3, 0, 1, 2, C(3), C(0), C(1), C(2), C(7), C(4), C(5), C(6), C(8)],
]
NA = 7
def select(na):
    global T, NA
    NA = na
    T = T7 if na == 7 else T4
for t in T7 + T4: assert sorted(t) == list(range(13))
def pack(vals):
    x = 0
    for i, v in enumerate(vals): x |= v << (4*i)
    return x
def emit_table(A, sT0X, sJ, sCQ, sBASE2, t0, t1, t2, t3, helper=False, first=0):
    rows = [[v for v in t if v >= NA] for t in T] if helper else T
    n_ent = len(rows[0])
    for w, dst in ((0, t0), (1, t1)):
        vals = [(pack(r) >> (32*w)) & 0xffffffff for r in rows]
        if w == 1 and n_ent <= 8: continue
        A(f"s_mov_b32 s{dst}, {vals[0]:#x}")
        for c in range(1, 4):
            A(f"s_cmp_eq_u32 s{sCQ}, {c}"); A(f"s_cselect_b32 s{dst}, {vals[c]:#x}, s{dst}")
    for n in range(first, n_ent):
        src = t0 if n < 8 else t1
        A(f"s_bfe_u32 s{t2}, s{src}, {(4 << 16) | (4*(n % 8)):#x}")
        if not helper:
            A(f"s_add_u32 s{t3}, s{t2}, s{sJ}"); A(f"s_sub_u32 s{sT0X+n}, s{t3}, 7"); A(f"s_min_u32 s{t3}, s{t3}, s{sT0X+n}")
            A(f"s_cmp_lt_u32 s{t2}, 7"); A(f"s_cselect_b32 s{t2}, s{t3}, s{t2}")
        A(f"s_lshl_b32 s{t2}, s{t2}, 1"); A(f"s_add_u32 s{t2}, s{t2}, s{sBASE2}")
        A(f"s_sub_u32 s{t3}, s{t2}, 13"); A(f"s_min_u32 s{t2}, s{t2}, s{t3}")
        A(f"s_sub_u32 s{t3}, s{t2}, 13"); A(f"s_min_u32 s{t2}, s{t2}, s{t3}")
        A(f"s_lshl_b32 s{sT0X+n}, s{t2}, 7")
```

```python
import sys
from emit import Em
import order

NAME = "standalone__cross_network_dcn__recsys"
ROWB = 1664
WLAYER = 832 * ROWB
BLKW = 64 * ROWB
KSW = 32 * ROWB
PAGE = 4096
NPAGES = 39
MISC = NPAGES * PAGE
LDS_BYTES = 163840
FLAG_BASE = 8 << 20
XREG0 = 16 << 20
XREG_STRIDE = 8 << 20
WS_BYTES = 32 << 20
ACC, X0F, PX, Y, BC = 32, 96, 160, 192, 224
vFL = 0
vST = 5
vNON = 6
vW = 8
vXS = 12
vXR = 16
vTR = 20
vXL, vZ, vCB, vBIAS, vFLAG, vFST = 26, 27, 28, 29, 30, 31
vDELTA = Y + 31
vOR = vXR
WB = 192
sRET = 0
sT0W = 3
sMODE, sHEL, sOWN, sBASE = 32, 33, 34, 35
sJ, sC, sWV, sCQ = 36, 37, 38, 39
sW1K, sXS = 41, 47
sNON = 48
sBW, sBX = 50, 63
sXL = 76
sT0X = 80
sSTM = 94
sX2 = 93
NSTAMP = 32

class P:
    stamps = False; rt = False
    GB = 6; NB = 3; YP = 6; ORD = 2
    BUD = 5; CRITX = 1
    MINLA = 10; HILA = 18
    XLAT = 4; ACK = 4
    POLL_E0 = 53; POLL_L0 = 17; ORD0 = 0; POLL_E = 46; POLL_L = 12; POLLW = 3
    helper = True; touch = True; fast = True
    XSH = 1; HX0 = True; HELLO = 20
    HP1 = False; H2 = 13; H0 = 13
    PREW = 8; PREX = 2; L0B = 4; WDL = 2; SL3 = 5; XF = 0; SF = 0; T0 = 0; ACK0 = 10; TW = 5; CONS = 28; XNT = 0; WNT = 0; OT = 1; STOP = 999; NA = 4; WARM = 0; M6V = 1; SCAP = 1; LP = 1; O7 = 1; WB2 = 0; HW = 0; TBAT = 8; OD = 1; OF1 = 1; STU = 999; STN = 1; TD = 3320; VC10 = 35; MS = 1; CPF = True; OF = 1; dbg = False
    VC = 4
    fine = False

class Multi(tuple):
    def __new__(cls, a, b):
        o = super().__new__(cls, a); o.b = b; return o
    def __eq__(self, other):
        return tuple(self) == tuple(other) or self.b == tuple(other)
    def __hash__(self):
        return hash(tuple(self))

class Op:
    def __init__(self, kind, fn, req=(), give=(), at=0.0, cost=1, pre=None, name=""):
        self.kind, self.fn, self.req, self.give, self.at, self.cost, self.pre = kind, fn, set(req), set(give), at, cost, pre
        self.done = False; self.name = name; self.predone = False

class Prog:
    def __init__(self, m6, tag):
        self.m6 = m6; self.tag = tag
        self.e = Em(); self.ops = []; self.tokens = set()
        self.icount = 0; self.used = 0
        self.last_mfma = {}; self.last_valu = {}
        self.nstamp = 0; self.names = []; self.st = None
    def A(self, s):
        self.e.A(s); self.icount += 1; self.used += 1
    def vmem(self, s, tag=None):
        self.e.vmem(s, tag); self.icount += 1; self.used += P.VC10/10.0
    def lds(self, s, tag=None):
        self.e.lds(s, tag); self.icount += 1; self.used += 1
        if self.st is not None and self.st.get("capm") is not None:
            self.e.lg[-1] = Multi(tag, ("capm", self.st["capm"])); self.st["capm"] = None
    def wait(self, vm=None, lg=None):
        if self.e.wait(vm, lg): self.icount += 1; self.used += 1
    def pad(self, since, need):
        n = need - (self.icount - since)
        while n > 0:
            k = min(n, 16)
            self.e.A(f"s_nop {k-1}"); self.icount += k; self.used += k; n -= k
    def valu(self, s, writes=(), acc_tile=None):
        if acc_tile is not None and acc_tile in self.last_mfma:
            self.pad(self.last_mfma[acc_tile], 12)
        self.A(s)
        for r in writes: self.last_valu[r] = self.icount
    def stamp(self, name):
        if P.stamps and self.nstamp < NSTAMP:
            i = self.nstamp; self.nstamp += 1; self.names.append(name)
            self.e.A(f"s_mem{'real' if P.rt else ''}time s[{sSTM}:{sSTM+1}]")
            self.e.wait_lg_all()
            self.e.A(f"v_writelane_b32 v{vST}, s{sSTM}, {i}")
            self.icount += 3
    def add(self, *a, **k):
        o = Op(*a, **k); self.ops.append(o); return o
    def run(self, o):
        assert not o.done
        for t in o.req: self.ensure(t)
        if o.pre and not o.predone:
            o.pre(); self.A("s_nop 0")
        o.done = True
        o.fn()
        self.tokens |= o.give
    def ensure(self, tok):
        if tok in self.tokens: return
        cand = [o for o in self.ops if tok in o.give and not o.done]
        assert cand, f"no producer for {tok}"
        self.run(cand[0])
    def pick(self, now, kind):
        for o in self.ops:
            if not o.done and o.kind == kind and o.at <= now and o.req <= self.tokens:
                return o
        return None

def xreg(m6, pos, ks, s):
    o = 8*ks + 4*s
    if pos == 0:
        r = PX + o; return f"v[{r}:{r+3}]", ("v", r)
    if pos == 7 and not m6:
        r = PX + 16 + o; return f"v[{r}:{r+3}]", ("v", r)
    idx = pos - 1 if (m6 or pos < 7) else pos - 2
    r = 16*idx + o
    return f"a[{r}:{r+3}]", ("a", r)

def unit_list(m6):
    U = []
    for l in range(3):
        L = []
        B = lambda pos, H: [(l, pos, 0, H), (l, pos, 1, H)]
        if m6:
            for pos in range(13): L += B(pos, 0)
        elif l == 0:
            for pos in range(P.L0B): L += B(pos, 0) + B(pos, 1)
            for pos in range(P.L0B, 13): L += B(pos, 0)
            for pos in range(P.L0B, 13): L += B(pos, 1)
        else:
            ORD = P.ORD0 if l == 1 else P.ORD
            L += B(0, 0)
            for pos in range(1, 1 + ORD): L += B(pos, 0)
            L += (B(7, 0) + B(0, 1) + B(7, 1)) if P.O7 else (B(0, 1) + B(7, 0) + B(7, 1))
            e1 = []
            for pos in range(1, 7): e1 += B(pos, 1)
            for pos in range(1 + ORD, 7): L += B(pos, 0)
            L += e1[:P.YP]
            for pos in range(8, 13): L += B(pos, 0)
            L += e1[P.YP:]
            for pos in range(8, 13): L += B(pos, 1)
        U += L
    return U

def tables(p):
    A = p.A
    for q in range(7):
        A(f"s_add_u32 s40, s{sJ}, {q}")
        A("s_sub_u32 s42, s40, 7"); A("s_min_u32 s40, s40, s42")
        A(f"s_mul_i32 s{sBW+q}, s40, {2*BLKW}")
        A(f"s_lshl_b32 s{sBX+q}, s40, 13")
    for q in range(6):
        if p.m6:
            A(f"s_mov_b32 s{sBW+7+q}, {(2*q+1)*BLKW}")
            A(f"s_mov_b32 s{sBX+7+q}, {(2*q+1)*4096}")
        else:
            A(f"s_add_u32 s40, s{sJ}, {q}")
            A("s_sub_u32 s42, s40, 6"); A("s_min_u32 s40, s40, s42")
            A("s_lshl_b32 s40, s40, 1"); A("s_or_b32 s40, s40, 1")
            A(f"s_mul_i32 s{sBW+7+q}, s40, {BLKW}")
            A(f"s_lshl_b32 s{sBX+7+q}, s40, 12")

def gen_member(m6):
    tag = "m6" if m6 else "mr"
    p = Prog(m6, tag); A = p.A; e = p.e
    U = unit_list(m6); NU = len(U); UL = NU // 3
    NB = P.NB
    XS0 = NPAGES - 4*NB
    halves = (0,) if m6 else (0, 1)
    own_pos = {0: 0, 1: 7}
    ool = []
    e.A(f"L_{tag}:")
    if P.stamps:
        p.nstamp = 3; p.names += ["start", "prew", "karg"]
    order0 = []
    for (l, pos, ks, H) in U[:UL]:
        if pos not in order0: order0.append(pos)
    n0 = {pos: n for n, pos in enumerate(order0)}
    free_pages = list(range(XS0))
    pending = []; page_of = {}
    st = {"next_w": 0, "landed": -1, "now": -1, "wl": 0}
    p.st = st
    def w_can():
        return st["next_w"] < min(NU, P.STOP*UL/52 + 8) and bool(free_pages)
    def w_pre():
        v = st["next_w"]
        l = U[v][0]
        if l != st["wl"]:
            st["wl"] = l
            p.ensure(("tab", 25))
            A(f"s_add_u32 s16, s16, {WLAYER}"); A("s_addc_u32 s17, s17, 0"); A(f"s_sub_u32 s18, s18, {WLAYER}")
            if l == 1:
                for i in range(4): A(f"v_add_u32 v{vW+i}, v{vDELTA}, v{vW+i}")
                p.tokens.add(("wswitch",))
        pg = free_pages.pop(0); page_of[v] = pg
        pending.append((pg, v))
        A(f"s_add_u32 m0, s{sW1K}, {pg*PAGE}")
        st["m0"] = ("w", v)
    def w_go():
        v = st["next_w"]
        l, pos, ks, H = U[v]
        so = sT0W + n0[pos] if l == 0 else sBW + pos
        p.vmem(f"buffer_load_dwordx4 v{vW+2*ks+H}, s[16:19], s{so} offen{' nt' if (P.WNT == 2 or (P.WNT == 1 and l == 0)) else ''} lds", ("w", v))
        st["next_w"] += 1
    def w_dma():
        assert w_can(), "no free page"
        w_pre(); A("s_nop 0"); w_go()
    def w_rd(v, i, u):
        s, t = i // 2, i % 2
        off = page_of[v]*PAGE + s*2048 + u*1024
        d = WB + (v & 1)*16 + i*4 + 2*u
        p.lds(f"ds_read_b64_tr_b16 a[{d}:{d+1}], v{vTR+2*(off >> 16)+t} offset:{off & 0xffff}", ("w", v, i))
    def x0_pre(n, sp):
        if P.MS:
            if st.get("m0") == ("x", n): return
            st["m0"] = ("x", n)
            A(f"s_add_u32 m0, s{sXS}, {(n % NB)*PAGE}")
        else:
            A(f"s_add_u32 m0, s{sXS}, {(n % NB)*PAGE + sp*1024}")
    def x0_go(n, sp):
        p.vmem(f"buffer_load_dwordx4 v{vXS+sp}, s[20:23], s{sT0X+n} offen{(' offset:%d' % (1024*sp)) if P.MS else ''}{' nt' if P.XNT else ''} lds", ("x0", n))
    for t_ in (("w", 0), ("x0", 0), ("x0", 0), ("x0", 0), ("bias",), ("x0", 0), ("w", 1), ("w", 2), ("w", 3)) + (("x0", 1),)*4: e.vm.append(t_)
    for v in range(4):
        pg = free_pages.pop(0); page_of[v] = pg; pending.append((pg, v))
        assert pg == v and U[v][1:] == ((0, v, 0) if v < 2 else ((order0[1], v-2, 0) if m6 else (0, v-2, 1)))
    st["next_w"] = 4
    assert P.PREX >= 2
    e.vm.append(("non",))
    if P.stamps:
        A("s_waitcnt lgkmcnt(0)"); A(f"v_writelane_b32 v{vST}, s96, 0"); A(f"v_writelane_b32 v{vST}, s100, 1"); A(f"v_writelane_b32 v{vST}, s98, 2")
    p.stamp("prebias")
    p.wait(vm=lambda t: t == ("bias",))
    A(f"v_lshlrev_b32 v{Y+2}, 16, v{Y}"); A(f"v_and_b32 v{Y+3}, 0xffff0000, v{Y}")
    A(f"v_add_f32 v{Y+2}, s45, v{Y+2}"); A(f"v_add_f32 v{Y+3}, s45, v{Y+3}")
    p.lds(f"ds_write_b64 v{Y+4}, v[{Y+2}:{Y+3}]", ("bw",))
    while st["next_w"] < P.PREW: w_dma()
    for n in range(2, P.PREX):
        for sp in range(4):
            x0_pre(n, sp)
            if sp == 0: A("s_nop 0")
            x0_go(n, sp)
    if P.WARM:
        A(f"v_mov_b32 v3, v{vCB}")
        for H in halves:
            A(f"s_movk_i32 s44, {128*H}")
            A(f"s_call_b64 s[{sRET}:{sRET+1}], L_{tag}_cap0")
        e.lg_done = len(e.lg)
    for q in range(26): A(f"v_readlane_b32 s{sBW+q}, v{Y+20+q//13}, {q % 13}")
    p.tokens.add(("tab", 25))

    first_use = {}; last_use = {}; last_unit = {}; first_unit = {}
    for v, (l, pos, ks, H) in enumerate(U):
        first_use.setdefault((l, pos), v); last_use[(l, pos)] = v; last_unit[(l, H)] = v; first_unit.setdefault((l, H), v)
    def f():
        p.wait(vm=lambda t: t == ("non",))
        A(f"v_readlane_b32 s{sNON}, v{Y+24}, 3"); A(f"v_readlane_b32 s{sNON+1}, v{Y+25}, 3")
        A("s_nop 3")
        A(f"s_or_b32 s{sNON}, s{sNON}, 1"); A(f"s_add_u32 s{sNON}, s{sNON}, 2"); A(f"s_add_u32 s{sNON+1}, s{sNON+1}, 1")
        A(f"s_add_u32 s{sHEL}, s{sHEL}, s{sNON+1}"); A(f"s_add_u32 s{sHEL}, s{sHEL}, 16")
        A(f"v_mov_b32 v{vNON}, s{sNON}"); A(f"v_mov_b32 v{vNON+1}, s{sHEL}")
        A(f"s_mov_b32 s44, {4*16384}")
        p.vmem(f"buffer_store_dwordx2 v[{vNON}:{vNON+1}], v{vFST}, s[24:27], s44 offen sc1", ("hello",))
        A("s_nop 0")
        A(f"v_mov_b32 v{vNON+1}, s{sNON+1}")
    p.add("vmemh", f, give=[("hello",)], at=0, name="hello")
    for n, pos in enumerate(order0):
        for sp in range(4):
            if n < P.PREX:
                p.tokens.add(("x0d", n, sp)); continue
            def pre(n=n, sp=sp):
                if n >= NB:
                    if st.get("capm") is not None:
                        e.wait_lg_all(); p.icount += 1; p.used += 1; st["capm"] = None
                    p.wait(lg=lambda t: (t[0] == "x" and t[1] == 0 and t[2] == order0[n-NB]) or t == ("capm", n-NB))
                x0_pre(n, sp)
            def f(n=n, sp=sp):
                x0_go(n, sp); st[("x0at", n)] = st["now"]
            p.add("vmem", f, pre=pre, req=([("x0rd", n-NB)] if n >= NB else []) + [("x0d", n, sp-1) if sp else ("x0d", n-1, 3)],
                  give=[("x0d", n, sp)], name=f"x0dma{n}").dl = first_use[(0, pos)] - P.XLAT - 1
        for s4 in range(4):
            def f(n=n, pos=pos, s4=s4):
                p.wait(vm=lambda t: t == ("x0", n))
                txt, _ = xreg(m6, pos, s4 // 2, s4 % 2)
                p.lds(f"ds_read_b128 {txt}, v{vXR+s4} offset:{(n % NB)*PAGE}", ("x", 0, pos, s4))
            give = [("x0f", n, s4)]
            if s4 == 3: give.append(("xi", 0, pos))
            o = p.add("lds", f, req=[("x0d", n, 3)] + ([("x0f", n, s4-1)] if s4 else []), give=give, name=f"x0rd{n}")
            o.x0n = n
        def f(n=n):
            lab = f"L_{tag}_nc{n}"
            A(f"s_sub_u32 s44, s{sT0X+n}, s{sOWN}")
            A(f"s_cmp_le_u32 s44, {0 if m6 else 128}")
            A(f"s_cbranch_scc1 {lab}x")
            e.A(f"{lab}:")
            ool.extend([f"{lab}x:", f"v_add_u32 v3, {(n % NB)*PAGE}, v{vCB}", f"s_call_b64 s[{sRET}:{sRET+1}], L_{tag}_cap0", f"s_branch {lab}"])
            st["capm"] = n
        p.add("chk", f, req=[("xi", 0, pos), ("hello",)] + ([("x0rd", n-1)] if n else []), give=[("x0rd", n)], cost=3, name="capchk")
    if P.SCAP:
        for H in halves:
            for q in range(32):
                def f(q=q, H=H):
                    if q == 0 and H == 0:
                        e.wait_lg_all(); p.icount += 1; p.used += 1
                    B = X0F + 32*H
                    if q % 2 == 0: A(f"v_lshlrev_b32 v{B+q}, 16, v{B+16+q//2}")
                    else: A(f"v_and_b32 v{B+q}, 0xffff0000, v{B+16+q//2}")
                p.add("crit" if H == 0 else "valu", f, req=[("x0rd", 12)] + ([("capu", H, q-1)] if q else ([("capu", 0, 0)] if H else [])),
                      give=[("capu", H, q)], name="capu")
    def poll_load(off, key):
        A(f"s_mov_b32 s45, {off}")
        p.vmem(f"buffer_load_dwordx2 v[{vFL}:{vFL+1}], v{vFLAG}, s[24:27], s45 offen sc1", ("poll",) + key)
        st[("pollat",) + key] = st["now"]
    def poll_check(key, cmp_, mask):
        lab = f"L_{tag}_ok{key[0]}{key[1]}"; lp = f"L_{tag}_sp{key[0]}{key[1]}"
        if P.fine: p.stamp(f"chk{key}<")
        p.wait(vm=lambda t: t == ("poll",) + key)
        e.A(f"{lp}:")
        if cmp_ == "hello":
            A(f"v_subrev_u32 v2, s{sNON+1}, v{vFL+1}")
            A("v_lshrrev_b32 v2, 4, v2")
            A(f"v_xor_b32 v3, s{sNON}, v{vFL}")
            A("v_xor_b32 v2, 1, v2")
            A("v_or_b32 v2, v2, v3")
            A("v_cmp_eq_u32 vcc, 0, v2")
        else:
            A(cmp_)
        A("s_nop 1")
        A(f"s_and_b32 s44, vcc_lo, {mask}")
        A(f"s_cmp_eq_u32 s44, {mask}")
        A(f"s_cbranch_scc0 {lab}x")
        e.A(f"{lab}:")
        ool.extend([f"{lab}x:", "s_sleep 1", f"buffer_load_dwordx2 v[{vFL}:{vFL+1}], v{vFLAG}, s[24:27], s45 offen sc1",
                    "s_sub_u32 s46, s46, 1", "s_waitcnt vmcnt(0)", f"s_cbranch_scc0 {lp}", f"s_branch {lab}"])
        if P.fine: p.stamp(f"chk{key}>")
    p.add("vmemh", lambda: poll_load(4*16384, (9, 9)), req=[("hello",)], give=[("pi", 9, 9)], at=P.HELLO*UL/52.0, name="hpoll")
    def f():
        poll_check((9, 9), "hello", 0x7f)
        A(f"v_cmp_eq_u32 vcc, s{sHEL}, v{vFL+1}")
        A("s_nop 1")
        A("s_and_b32 s44, s44, vcc_lo")
        A("s_cmp_eq_u32 s44, 0x7f")
        A(f"s_cselect_b32 s{sMODE}, {1 if P.fast else 0}, 0")
        A(f"s_cselect_b32 s{sX2}, {0 if P.fast else XREG_STRIDE}, {XREG_STRIDE}")
    o = p.add("chk", f, req=[("pi", 9, 9)], give=[("mode",)], cost=3, name="hchk"); o.bh = (9, 9)

    def flag_store(idx, slow_touch):
        lab = f"L_{tag}_fl{idx}"
        A(f"s_mov_b32 s44, {idx*16384}")
        A(f"s_cmp_lg_u32 s{sMODE}, 0")
        A(f"s_cbranch_scc0 {lab}x")
        p.vmem(f"buffer_store_dwordx2 v[{vNON}:{vNON+1}], v{vFST}, s[24:27], s44 offen", ("fl", idx))
        e.A(f"{lab}j:")
        ool.extend([f"{lab}x:", f"buffer_store_dwordx2 v[{vNON}:{vNON+1}], v{vFST}, s[24:27], s44 offen sc1"])
        if slow_touch and P.touch:
            ool.extend([f"v_subrev_u32 v2, s{sBASE}, v{vXL}", "v_and_b32 v2, 0x1f0, v2", f"v_lshl_add_u32 v2, v2, 3, s{sBASE}",
                        f"s_add_u32 s40, s{sBX+own_pos[idx & 1]}, {XREG0 + XREG_STRIDE}",
                        "buffer_load_dword a224, v2, s[24:27], s40 offen sc1"])
        ool.append(f"s_branch {lab}j")
    def f():
        p.wait(vm=lambda t: t == ("x", 1, 6, 3))
        flag_store(5, False)
    p.add("vmemh", f, req=[("udone", first_use[(1, 6)])], give=[("cons",)], name="cons")
    p.add("vmemh", lambda: poll_load(5*16384, (8, 8)), req=[("cons",), ("ok", 0, 1)], give=[("pi", 8, 8)], at=UL + P.CONS*UL/52.0, name="cpoll")
    o = p.add("chk", lambda: poll_check((8, 8), f"v_cmp_eq_u64 vcc, s[{sNON}:{sNON+1}], v[{vFL}:{vFL+1}]", 0x7f),
              req=[("pi", 8, 8)], give=[("ok", 8, 8)], cost=3, name="cchk"); o.bh = (8, 8)
    prev_crit = None
    prev_bc = None
    for l in range(3):
        for H in halves:
            lu = last_unit[(l, H)]
            if (l, H) != (0, 0):
                for q in range(8):
                    def f(l=l, H=H, q=q):
                        p.lds(f"ds_read_b128 v[{BC+4*q}:{BC+4*q+3}], v{vBIAS} offset:{l*512 + (64*H + 8*q)*4}", ("bc", l, H, q // 4))
                    p.add("lds", f, req=[("udone", prev_bc)] + ([("bcr", l, H, q-1)] if q else []), give=[("bcr", l, H, q)],
                          at=max(0, first_unit[(l, H)] - 8), name="bc")
            prev_bc = first_unit[(l, H)]
            if l > 0:
                for q in range(32):
                    def f(H=H, q=q):
                        if q % 2 == 0: A(f"v_lshlrev_b32 v{Y+q}, 16, v{PX+16*H+q//2}")
                        else: A(f"v_and_b32 v{Y+q}, 0xffff0000, v{PX+16*H+q//2}")
                    p.add("valu", f, req=[prev_crit, ("wswitch",)] + ([("yp", l, H, q-1)] if q else []), give=[("yp", l, H, q)], name="yprep")
            for q in range(48):
                g3, k = q // 3, q % 3
                def f(l=l, H=H, g3=g3, k=k):
                    a, b, c_ = X0F + 32*H + 2*g3, Y + 2*g3, ACC + 32*H + 2*g3
                    tile = 2*H + g3 // 8
                    if k == 2:
                        d = PX + 16*H + g3
                        p.valu(f"v_cvt_pk_bf16_f32 v{d}, v{c_}, v{c_+1}", writes=[d])
                    elif l == 0:
                        p.valu(f"v_mul_f32 v{c_+k}, v{a+k}, v{c_+k}", acc_tile=tile)
                    else:
                        p.valu(f"v_fma_f32 v{c_+k}, v{a+k}, v{c_+k}, v{b+k}", acc_tile=tile)
                give = [("cr", l, H, q)] + ([("crit", l, H)] if q == 47 else [])
                req = [("udone", lu), ("udone", last_use[(l, own_pos[H])])]
                req += [("yp", l, H, 31)] if l else [("capu", H, 31) if P.SCAP else ("x0rd", 12)]
                if prev_crit: req.append(prev_crit)
                p.add("crit", f, req=req + ([("cr", l, H, q-1)] if q else []), give=give, at=lu+1.25, name="crit")
            prev_crit = ("crit", l, H)
            src = PX + 16*H
            if l < 2:
                for q in range(4):
                    def f(l=l, H=H, q=q, src=src):
                        lab = f"L_{tag}_st{l}{H}{q}"
                        ins = f"buffer_store_dwordx4 v[{src+4*q}:{src+4*q+3}], v{vXL}, s[24:27], s43 offen offset:{q*1024}"
                        if q == 0:
                            A(f"s_add_u32 s43, s{sBX+own_pos[H]}, {XREG0}")
                            if l == 1: A(f"s_add_u32 s43, s43, s{sX2}")
                        if l == 0:
                            p.vmem(ins + " sc1", ("st", l, H))
                        else:
                            A(f"s_cmp_lg_u32 s{sMODE}, 0")
                            A(f"s_cbranch_scc0 {lab}x")
                            p.vmem(ins, ("st", l, H))
                            e.A(f"{lab}j:")
                            ool.extend([f"{lab}x:", ins + " sc1", f"s_branch {lab}j"])
                        if q == 3: st[("stat", l, H)] = st["now"]
                    req = [("cr", l, H, 12*q+11), ("tab", 25)] + ([("st", l, H, q-1)] if q else [])
                    if l == 1: req += [("mode",), ("ok", 8, 8) if H == 0 else ("ok", 1, 0)]
                    p.add("vmemh", f, req=req, give=[("st", l, H, q)], name="store")
                def touch(H):
                    A(f"v_subrev_u32 v2, s{sBASE}, v{vXL}")
                    A("v_and_b32 v2, 0x1f0, v2")
                    A(f"v_lshl_add_u32 v2, v2, 3, s{sBASE}")
                    A(f"s_add_u32 s40, s{sBX+own_pos[H]}, {XREG0}")
                    return "buffer_load_dword a224, v2, s[24:27], s40 offen sc1"
                if l == 0 and P.T0 == 2:
                    def f(l=l, H=H):
                        p.wait(vm=lambda t: t == ("st", l, H))
                        p.vmem(touch(H), ("tch", l, H))
                        st[("tat", l, H)] = st["now"]
                    o = p.add("vmemh", f, req=[("st", l, H, 3)], give=[("tch", l, H)], name="touch"); o.lh = (l, H)
                def f(l=l, H=H):
                    p.wait(vm=lambda t: t == ("st", l, H) or t == ("tch", l, H))
                    if l == 0 and P.T0 == 1:
                        p.vmem(touch(H), ("tch", l, H))
                    flag_store(2*l+H, l == 1)
                if l == 0 and P.T0 == 2:
                    o = p.add("vmemh", f, req=[("tch", l, H), ("mode",)], give=[("sent", l, H)], name="flag"); o.th = (l, H)
                else:
                    o = p.add("vmemh", f, req=[("st", l, H, 3), ("mode",)], give=[("sent", l, H)], name="flag"); o.lh = (l, H)
            else:
                for ch in range(8):
                    def f(H=H, ch=ch, src=src):
                        if ch == 0:
                            p.wait(lg=lambda t: t[0] == "or")
                            if H == 0:
                                A(f"v_subrev_u32 v{vOR}, s{sBASE}, v{vXL}"); A(f"v_add_u32 v{vOR}, s{sXS}, v{vOR}")
                        A(f"v_xor_b32 v2, {ch}, v{vZ}"); A(f"v_lshl_add_u32 v2, v2, 4, v{vCB}")
                        p.lds(f"ds_write_b64 v2, v[{src+2*ch}:{src+2*ch+1}]", ("ow", H, ch))
                        st[("owat", H)] = st["now"]
                    p.add("lds", f, req=[("cr", 2, H, 6*ch+5)] + ([("ow", H, ch-1)] if ch else []), give=[("ow", H, ch)], cost=3, name="ow")
                dst = BC + 16*H
                for q in range(4):
                    def f(H=H, q=q, dst=dst):
                        p.wait(lg=lambda t: t[0] == "ow")
                        p.lds(f"ds_read_b128 v[{dst+4*q}:{dst+4*q+3}], v{vOR} offset:{q*1024}", ("or", H, q))
                        st[("orat", H)] = st["now"]
                    p.add("lds", f, req=[("ow", H, 7)] + ([("or", H, q-1)] if q else []), give=[("or", H, q)], name="or").oh = ("owat", H)
                for q in range(4):
                    def f(H=H, q=q, dst=dst):
                        p.wait(lg=lambda t: t == ("or", H, q))
                        if q == 0:
                            if H: A(f"s_add_u32 s43, s{sOWN}, 128")
                            else: A(f"s_mov_b32 s43, s{sOWN}")
                        p.vmem(f"buffer_store_dwordx4 v[{dst+4*q}:{dst+4*q+3}], v{vXS+q}, s[28:31], s43 offen offset:{1024*q*P.MS}{('', ' sc1', ' nt', ' sc0 sc1')[P.OF1 if H else P.OF]}", ("ost", H))
                    p.add("vmemh", f, req=[("or", H, 3)] + ([("ost", H, q-1)] if q else []), give=[("ost", H, q)], name="ostore").oh = ("orat", H)
    prev = None
    for l in (1, 2):
        for H in (0, 1):
            b = l - 1
            poss = list(range(1, 7) if H == 0 else range(7 if m6 else 8, 13))
            scale = UL / 52.0
            at = (l-1)*UL + (P.POLL_E0 if l == 1 else P.POLL_E)*scale if H == 0 else l*UL + (P.POLL_L0 if l == 1 else P.POLL_L)*scale
            sent = [("sent", b, h) for h in halves if h <= H]
            p.add("vmemh", lambda b=b, H=H: poll_load((2*b+H)*16384, (b, H)),
                  req=sent + ([("ok", b, 0)] if H else []), give=[("pi", b, H)], at=at, name="poll")
            o = p.add("chk", lambda b=b, H=H: poll_check((b, H), f"v_cmp_eq_u64 vcc, s[{sNON}:{sNON+1}], v[{vFL}:{vFL+1}]", 0x7f if H == 0 else 0x3f),
                      req=[("pi", b, H)], give=[("ok", b, H)], cost=3, name="chk"); o.bh = (b, H)
            for pos in poss:
                for q in range(4):
                    def f(l=l, pos=pos, q=q, first=(l == 2 and H == 0 and pos == 1 and q == 0)):
                        if first:
                            A(f"s_add_u32 s{sXL}, s{sXL}, s{sX2}"); A(f"s_addc_u32 s{sXL+1}, s{sXL+1}, 0")
                        txt, _ = xreg(m6, pos, q // 2, q % 2)
                        p.vmem(f"buffer_load_dwordx4 {txt}, v{vXL}, s[{sXL}:{sXL+3}], s{sBX+pos} offen offset:{q*1024}{(' sc1', '', ' nt')[P.XF]}", ("x", l, pos, q))
                    give = [("xl", l, pos, q)] + ([("xi", l, pos)] if q == 3 else [])
                    p.add("vmem", f, req=[("ok", b, H), ("udone", last_use[(l-1, pos)])] + ([prev] if prev else []), give=give, name="xld").dl = first_use[(l, pos)] + q // 2 - 1
                    prev = ("xl", l, pos, q)

    def gates():
        for o in p.ops:
            if o.done: continue
            if hasattr(o, "lh"): o.at = st.get(("stat",) + o.lh, 1e9) + (P.ACK0 if o.lh[0] == 0 else P.ACK)
            elif hasattr(o, "oh"): o.at = st.get(o.oh, 1e9) + 1 + P.OD
            elif hasattr(o, "th"): o.at = st.get(("tat",) + o.th, 1e9) + P.TW
            elif hasattr(o, "bh"): o.at = st.get(("pollat",) + o.bh, 1e9) + P.POLLW
            elif hasattr(o, "x0n"): o.at = st.get(("x0at", o.x0n), -2) + P.XLAT
    p.wait(lg=lambda t: t == ("bw",))
    p.stamp("setup")
    p.wait(vm=lambda t: t[0] == "w" and t[1] <= 1)
    A("s_barrier")
    st["landed"] = 1
    p.stamp("w01")
    for q in range(8):
        p.lds(f"ds_read_b128 v[{BC+4*q}:{BC+4*q+3}], v{vBIAS} offset:{32*q}", ("bc", 0, 0, q // 4))
        p.tokens.add(("bcr", 0, 0, q))
    for i in range(4):
        w_rd(0, i, 0); w_rd(0, i, 1)
    donated = False
    seen = set()
    plan = None
    for u, (l, pos, ks, H) in enumerate(U):
        e.c(f"---- unit {u}: layer {l} pos {pos} ks {ks} H {H}")
        st["now"] = u
        if u == int(P.STOP*UL/52): break
        if u % UL == 0: p.stamp(f"L{l}")
        elif not m6 and u == last_unit[(l, 0)] + 1: p.stamp(f"L{l}C")
        elif P.fine and u % UL in (8, 20): p.stamp(f"u{u}")
        elif u >= P.STU and (u - P.STU) % P.STN == 0 and not m6: p.stamp(f"u{u}")
        own = pos == 0 or (pos == 7 and not m6)
        if l == 0 or not own: p.ensure(("xi", l, pos))
        else: p.ensure(("cr", l-1, 0 if pos == 0 else 1, 24*ks + 23))
        first = (l, H) not in seen
        seen.add((l, H))
        if first:
            if l > 0: p.ensure(("crit", l-1, H))
            p.ensure(("bcr", l, H, 7))
        need_bar = u + 1 < NU and u + 1 > st["landed"]
        upto = -1
        if need_bar:
            upto = min(u + (2 if u < 4 else P.GB), NU - 1)
            assert plan is None
            while st["next_w"] <= upto: w_dma()
        xs = {("x", l, pos, 2*ks), ("x", l, pos, 2*ks+1)}
        p.wait(vm=lambda t: (t[0] == "w" and t[1] <= upto) or (l > 0 and t in xs),
               lg=lambda t: (t[0] == "w" and t[1] == u) or (l == 0 and t in xs) or (first and t[:3] == ("bc", l, H)))
        if need_bar:
            A("s_barrier")
            st["landed"] = upto
            for it in list(pending):
                if it[1] <= u - 1:
                    free_pages.append(it[0]); pending.remove(it)
        if not donated and ("x0rd", 12) in p.tokens:
            e.wait_lg_all(); p.icount += 1; st["capm"] = None
            for w in range(4):
                for i in range(1, NB): pending.append((XS0 + w*NB + i, u))
            donated = True
        for i in range(4):
            s, t = i // 2, i % 2
            now = u + i/4.0
            tile = 2*H + t
            txt, (kind, r) = xreg(m6, pos, ks, s)
            if kind == "v":
                p.pad(max(p.last_valu.get(x, -99) for x in range(r, r+4)), 2)
            a0 = WB + (u & 1)*16 + i*4
            acc = f"v[{ACC+16*tile}:{ACC+16*tile+15}]"
            cin = f"v[{BC+16*t}:{BC+16*t+15}]" if (first and s == 0) else acc
            A(f"v_mfma_f32_32x32x16_bf16 {acc}, a[{a0}:{a0+3}], {txt}, {cin}")
            p.last_mfma[tile] = p.icount
            p.used = 0
            if i == 3: p.tokens.add(("udone", u))
            gates()
            if plan is not None:
                if plan == "w": w_go()
                else: p.run(plan)
                plan = None
            if u + 1 < NU:
                td = [int(c) for c in str(P.TD).zfill(4)]
                for k in range(sum(td[:i]), sum(td[:i+1])): w_rd(u+1, k // 2, k % 2)
            bud = P.BUD - (1 if i == 3 else 0)
            third = False
            if i == 0:
                o = p.pick(now + 0.25, "vmem")
                dls = ([o.dl] if o is not None else []) + ([st["next_w"] - P.GB - P.WDL] if w_can() else [])
                third = bool(dls) and min(dls) - u < P.SL3
            if m6 and P.M6V and i == 0 and u < UL: third = True
            if i in (1, 2) or third:
                nxt = now + 0.25
                la = st["next_w"] - u
                o = p.pick(nxt, "vmemh")
                urgent = p.pick(now, "crit") is not None
                if o is None:
                    o = p.pick(nxt, "vmem")
                    if w_can():
                        wdl = st["next_w"] - P.GB - P.WDL
                        if o is not None:
                            if wdl < o.dl: o = "w"
                        elif la < P.MINLA: o = "w"
                        elif not urgent:
                            backlog = p.pick(now, "valu") is not None or p.pick(now, "lds") is not None
                            if not (backlog and la >= P.HILA and i == 2): o = "w"
                plan = o
                bud -= 1 if (o == "w" or (o is not None and o.pre)) else 0
            nl = 0
            while True:
                rem = bud - p.used
                if P.LP:
                    o = p.pick(now, "lds")
                    if o is not None and o.name[:2] in ("x0", "bc") and rem + 1 >= 1 and nl < 2:
                        p.run(o); nl += 1; continue
                o = p.pick(now, "crit")
                if o is not None and rem + P.CRITX >= 1:
                    p.run(o); continue
                got = False
                for kind_ in ("chk", "lds", "valu"):
                    o = p.pick(now, kind_)
                    if o is not None and rem >= 1 and o.cost <= rem + 2:
                        p.run(o); got = True; break
                if not got: break
            if m6 and P.M6V and i == 3 and u < UL:
                o = p.pick(now + 0.25, "vmem")
                if o is not None: p.run(o)
                elif w_can(): w_dma()
            if plan == "w": w_pre()
            elif plan is not None and plan.pre:
                plan.pre(); plan.predone = True
    st["now"] = NU
    p.stamp("end")
    for o in p.ops:
        if not o.done and P.STOP == 999: p.run(o)
    p.stamp("flush")
    if P.stamps:
        A("s_waitcnt vmcnt(0)")
        p.stamp("drain")
        while p.nstamp < NSTAMP:
            e.A(f"v_writelane_b32 v{vST}, s{sSTM}, {p.nstamp}"); p.nstamp += 1
        stamp_store(e)
    if P.dbg and not m6:
        A("s_waitcnt vmcnt(0)")
        A("s_memtime s[40:41]"); A("s_memrealtime s[42:43]"); A("s_waitcnt lgkmcnt(0)")
        A("s_sub_u32 s40, s40, s96"); A("s_sub_u32 s42, s42, s100")
        A("s_and_b32 s44, s2, 0xf8"); A(f"s_or_b32 s44, s44, s{sWV}"); A("s_cmp_lg_u32 s44, 0"); A("s_cbranch_scc1 L_end")
        A("s_lshl_b32 s44, s2, 3")
        A("v_mov_b32 v2, s40"); A("v_mov_b32 v3, s42"); A("v_mov_b32 v4, s44")
        A("global_store_dwordx2 v4, v[2:3], s[98:99]")
    A("s_endpgm")
    for x in ool: e.A(x)
    for H in halves:
        e.A(f"L_{tag}_cap{H}:")
        if H == 0 and not m6:
            e.A("s_cmp_lg_u32 s44, 0"); e.A(f"s_cbranch_scc1 L_{tag}_cap1")
        for ch in range(8):
            e.A(f"v_xor_b32 v2, {ch}, v{vZ}"); e.A("v_lshl_add_u32 v2, v2, 4, v3")
            if P.SCAP: e.A(f"ds_read_b64 v[{X0F+32*H+16+2*ch}:{X0F+32*H+17+2*ch}], v2")
            else: e.A(f"ds_read_b64 v[{Y+2*ch}:{Y+2*ch+1}], v2")
        for q in range(0 if P.SCAP else 16):
            if q % 2 == 0: e.A(f"s_waitcnt lgkmcnt({7 - q//2})")
            e.A(f"v_lshlrev_b32 v{X0F+32*H+2*q}, 16, v{Y+q}")
            e.A(f"v_and_b32 v{X0F+32*H+2*q+1}, 0xffff0000, v{Y+q}")
        e.A(f"s_setpc_b64 s[{sRET}:{sRET+1}]")
    return e.text(), p.names

def stamp_store(e):
    A = e.A
    A(f"s_cmp_lg_u32 s{sWV}, 0"); A("s_cbranch_scc1 L_end")
    A("v_mbcnt_lo_u32_b32 v2, -1, 0"); A("v_mbcnt_hi_u32_b32 v2, -1, v2")
    A("v_lshlrev_b32 v2, 2, v2"); A("s_lshl_b32 s44, s2, 8")
    A(f"buffer_store_dword v{vST}, v2, s[24:27], s44 offen")

def gen_helper():
    e = Em(); A = e.A
    A("L_helper:")
    A("s_waitcnt lgkmcnt(0)")
    A("s_mov_b32 s20, s4"); A("s_mov_b32 s21, s5"); A("s_mov_b32 s16, s6"); A("s_mov_b32 s17, s7")
    A("s_mov_b32 s24, s14"); A("s_mov_b32 s25, s15"); A(f"s_mov_b32 s26, {WS_BYTES}"); A("s_mov_b32 s27, 0x20000")
    if P.WB2:
        A(f"s_lshl_b32 s43, s{sC}, 2"); A(f"s_add_u32 s43, s43, s{sWV}"); A("s_lshl_b32 s43, s43, 7"); A(f"s_add_u32 s43, s43, {FLAG_BASE + 3*16384}")
        A("v_and_b32 v12, 7, v1"); A("v_lshl_add_u32 v12, v12, 3, s43")
        A("buffer_load_dwordx2 v[14:15], v12, s[24:27], 0 offen sc1")
    n = [0]
    def stamp():
        if P.stamps:
            A(f"s_mem{'real' if P.rt else ''}time s[{sSTM}:{sSTM+1}]"); A("s_waitcnt lgkmcnt(0)")
            A(f"v_writelane_b32 v{vST}, s{sSTM}, {n[0]}"); n[0] += 1
    stamp()
    def item_loop(name, first, last, stride, start_expr, depth):
        for x in start_expr: A(x)
        A(f"s_add_u32 s50, s50, {first}")
        A(f"L_{name}:")
        A(f"s_cmp_ge_u32 s50, {last}"); A(f"s_cbranch_scc1 L_{name}_done")
        A("s_mul_i32 s51, s50, 5042"); A("s_lshr_b32 s51, s51, 16")
        A("s_mul_i32 s52, s51, 13"); A("s_sub_u32 s52, s50, s52")
        A("s_mul_i32 s53, s51, 5042"); A("s_lshr_b32 s53, s53, 16")
        A("s_mul_i32 s54, s53, 13"); A("s_sub_u32 s54, s51, s54")
        A("s_lshr_b32 s55, s52, 1")
        A("s_sub_u32 s56, s54, 1"); A("s_max_i32 s56, s56, 0")
        A("s_add_u32 s56, s56, s55")
        A("s_cmp_ge_u32 s56, 7"); A("s_cselect_b32 s57, 7, 0"); A("s_sub_u32 s56, s56, s57")
        A("s_lshl_b32 s56, s56, 1")
        A("s_sub_u32 s57, s54, 7"); A("s_max_i32 s57, s57, 0")
        A("s_cmp_eq_u32 s55, 6"); A("s_cselect_b32 s58, 0, s55")
        A("s_add_u32 s57, s57, s58")
        A("s_cmp_ge_u32 s57, 6"); A("s_cselect_b32 s58, 6, 0"); A("s_sub_u32 s57, s57, s58")
        A("s_lshl_b32 s57, s57, 1"); A("s_add_u32 s57, s57, 1")
        A("s_cmp_eq_u32 s54, 1"); A("s_cselect_b32 s56, s57, s56")
        A("s_cmp_ge_u32 s54, 8"); A("s_cselect_b32 s56, s57, s56")
        A(f"s_mul_i32 s56, s56, {BLKW}")
        A(f"s_mul_i32 s53, s53, {WLAYER}")
        A("s_lshl_b32 s52, s52, 7")
        A("s_add_u32 s40, s56, s53"); A("s_add_u32 s40, s40, s52")
        A("buffer_load_dword v8, v2, s[16:19], s40 offen" + (" nt" if (P.WNT == 2 or (P.WNT == 3 and name == "hp2")) else ""))
        A(f"s_waitcnt vmcnt({depth})")
        A(f"s_add_u32 s50, s50, {stride}")
        A(f"s_branch L_{name}")
        A(f"L_{name}_done:")
    if P.CPF:
        A("s_getpc_b64 s[40:41]")
        A("L_pc:")
        A(f"s_sub_u32 s40, s40, L_pc-{NAME}_kernel"); A("s_subb_u32 s41, s41, 0")
        A(f"s_lshl_b32 s42, s{sCQ}, 2"); A(f"s_add_u32 s42, s42, s{sWV}"); A("s_lshl_b32 s42, s42, 13")
        A(f"s_cmp_ge_u32 s42, L_pc-{NAME}_kernel"); A("s_cbranch_scc1 L_cpf_done")
        A("v_lshl_add_u32 v3, v1, 7, s42")
        A(f"v_min_u32 v3, L_pc-{NAME}_kernel, v3")
        A("global_load_dword v9, v3, s[40:41]")
        A("L_cpf_done:")
    if P.helper:
        A("v_mul_u32_u24 v2, 1664, v1")
        if P.HX0:
            if P.HW: A("s_waitcnt vmcnt(0)")
            if P.OT: order.emit_table(A, sT0X, sJ, sCQ, sX2, 40, 41, 42, 43, helper=True)
            A(f"s_and_b32 s44, s{sWV}, 1"); A(f"s_lshl_b32 s45, s{sC}, 1"); A("s_add_u32 s44, s44, s45")
            A(f"s_mul_i32 s44, s44, {64*ROWB}")
            nb_ = 13 - P.NA
            for r in range((nb_ + 1) // 2):
                A(f"s_cmp_ge_u32 s{sWV}, 2")
                A(f"s_cselect_b32 s45, s{sT0X+min(2*r+1, nb_-1)}, s{sT0X+2*r}")
                A("s_add_u32 s40, s44, s45")
                A("buffer_load_dword v8, v2, s[20:23], s40 offen" + (" nt" if P.XNT else ""))
        if P.HP1:
            item_loop("hp1", 13*P.H0, 507, 128, [f"s_lshl_b32 s50, s{sC}, 2", f"s_add_u32 s50, s50, s{sWV}"], 1)
        if P.stamps: A("s_waitcnt vmcnt(0)")
        stamp()
        item_loop("hp2", 13*P.H2, 507, 16, [f"s_lshl_b32 s50, s{sCQ}, 2", f"s_add_u32 s50, s50, s{sWV}"], 1)
        A("s_waitcnt vmcnt(0)")
        if P.WB2:
            A("v_readfirstlane_b32 s48, v14"); A("v_readfirstlane_b32 s49, v15"); A("s_nop 3")
            A("s_or_b32 s48, s48, 1"); A("s_add_u32 s48, s48, 2"); A("s_add_u32 s49, s49, 1")
            A("s_mov_b32 s46, 0x400")
            A("L_hw:")
            A("buffer_load_dwordx2 v[14:15], v12, s[24:27], 0 offen sc1"); A("s_waitcnt vmcnt(0)")
            A("v_cmp_eq_u64 vcc, s[48:49], v[14:15]"); A("s_nop 1")
            A("s_and_b32 s44, vcc_lo, 0x3f"); A("s_cmp_eq_u32 s44, 0x3f"); A("s_cbranch_scc1 L_hw_ok")
            A("s_sleep 4"); A("s_sub_u32 s46, s46, 1"); A("s_cbranch_scc0 L_hw")
            A("L_hw_ok:")
            A("s_barrier")
            A(f"s_cmp_lg_u32 s{sWV}, 0"); A("s_cbranch_scc1 L_hw_end")
            if P.WB2 == 2:
                A(f"s_cmp_lg_u32 s{sCQ}, 3"); A("s_cbranch_scc1 L_hw_end")
            A("buffer_wbl2 sc1"); A("s_waitcnt vmcnt(0)")
            A("L_hw_end:")
    stamp()
    if P.stamps:
        while n[0] < NSTAMP:
            A(f"v_writelane_b32 v{vST}, s{sSTM}, {n[0]}"); n[0] += 1
        stamp_store(e)
    A("s_endpgm")
    return e.text()

def main():
    out = sys.argv[1]
    for a in sys.argv[2:]:
        a = a.lstrip("-")
        if "=" in a:
            k, v = a.split("="); assert hasattr(P, k), k; setattr(P, k, type(getattr(P, k))(int(v)))
        else:
            assert hasattr(P, a), a; setattr(P, a, True)
    order.select(P.NA)
    k = NAME + "_kernel"
    T = []
    A = T.append
    A('.amdgcn_target "amdgcn-amd-amdhsa--gfx950"')
    A(".text"); A(f".globl {k}"); A(".p2align 8"); A(f".type {k},@function"); A(f"{k}:")
    NB = P.NB; XS0 = NPAGES - 4*NB
    A("s_load_dwordx8 s[4:11], s[0:1], 0")
    A("s_load_dwordx2 s[14:15], s[0:1], 40")
    if P.stamps: A(f"s_mem{'real' if P.rt else ''}time s[96:97]")
    if P.dbg:
        A("s_load_dwordx2 s[98:99], s[0:1], 32"); A("s_memtime s[96:97]"); A("s_memrealtime s[100:101]")
    A("s_cmp_ge_u32 s2, 256"); A("s_cbranch_scc1 L_end")
    A("v_lshrrev_b32 v2, 6, v0"); A("v_and_b32 v1, 63, v0")
    A("s_and_b32 s44, s2, 7")
    A(f"v_readfirstlane_b32 s{sWV}, v2")
    A(f"s_lshr_b32 s{sCQ}, s2, 6")
    A(f"s_bfe_u32 s{sJ}, s2, 0x30003")
    A(f"s_lshl_b32 s{sC}, s{sCQ}, 3"); A(f"s_add_u32 s{sC}, s{sC}, s44")
    A(f"s_lshl_b32 s{sX2}, s44, 1" if P.XSH else f"s_mov_b32 s{sX2}, 0")
    if P.NA == 7:
        A(f"s_lshl_b32 s45, s{sCQ}, 1"); A(f"s_add_u32 s45, s45, s{sJ}"); A("s_sub_u32 s46, s45, 7"); A("s_min_u32 s45, s45, s46")
    else:
        A(f"s_lshr_b32 s45, s{sJ}, 1"); A(f"s_add_u32 s45, s45, s{sCQ}"); A("s_and_b32 s45, s45, 3")
    A("s_lshl_b32 s45, s45, 1"); A(f"s_add_u32 s45, s45, s{sX2}")
    A("s_sub_u32 s46, s45, 13"); A("s_min_u32 s45, s45, s46"); A("s_sub_u32 s46, s45, 13"); A("s_min_u32 s45, s45, s46")
    A(f"s_lshl_b32 s{sT0X}, s45, 7")
    A(f"s_mov_b32 s18, {3*WLAYER}"); A("s_mov_b32 s19, 0x20000"); A(f"s_mov_b32 s22, {4096*ROWB}"); A("s_mov_b32 s23, 0x20000")
    A(f"s_cmp_eq_u32 s{sJ}, 7"); A("s_cbranch_scc1 L_helper")
    A(f"s_lshl_b32 s43, s{sC}, 2"); A(f"s_add_u32 s43, s43, s{sWV}"); A(f"s_mul_i32 s46, s43, {32*ROWB}")
    A("v_lshrrev_b32 v2, 3, v1"); A("v_and_b32 v3, 7, v1"); A("v_lshrrev_b32 v4, 4, v1")
    A("v_mul_u32_u24 v6, 1664, v2"); A("v_add_u32 v6, s46, v6")
    A("v_xor_b32 v7, v4, v3"); A(f"v_lshl_add_u32 v{vXS}, v7, 4, v6")
    A("v_xor_b32 v7, 4, v7"); A(f"v_lshl_add_u32 v{vXS+1}, v7, 4, v6"); A(f"v_add_u32 v{vXS+1}, {8*ROWB - 1024}, v{vXS+1}")
    A(f"v_add_u32 v{vXS+2}, {16*ROWB - 2048}, v{vXS}"); A(f"v_add_u32 v{vXS+3}, {16*ROWB - 2048}, v{vXS+1}")
    A(f"s_mul_i32 s{sXS}, s{sWV}, {NB*PAGE}"); A(f"s_add_u32 s{sXS}, s{sXS}, {XS0*PAGE}")
    A(f"s_lshl_b32 s{sOWN+10}, s{sJ}, 8")
    A(f"s_lshl_b32 s{sW1K}, s{sWV}, 10")
    A("v_and_b32 v5, 1, v4"); A("v_lshlrev_b32 v5, 2, v5"); A("v_xor_b32 v5, v5, v3")
    A("v_lshl_add_u32 v5, v5, 4, s44")
    A(f"s_lshr_b32 s42, s{sWV}, 1"); A("s_lshl_b32 s42, s42, 4"); A(f"s_and_b32 s40, s{sWV}, 1"); A("s_lshl_b32 s48, s40, 2")
    A("s_add_u32 s42, s42, s48")
    A("v_lshrrev_b32 v7, 5, v1")
    A("v_and_b32 v6, 3, v2"); A("v_lshl_add_u32 v6, v7, 3, v6"); A("v_add_u32 v6, s42, v6")
    A("v_mul_u32_u24 v6, 1664, v6"); A(f"v_add_u32 v{vW}, v5, v6")
    A(f"v_add_u32 v{vW+1}, 128, v{vW}"); A(f"v_add_u32 v{vW+2}, {KSW}, v{vW}"); A(f"v_add_u32 v{vW+3}, {KSW+128}, v{vW}")
    A(f"v_mul_i32_i24 v{vDELTA}, 0xffffe600, v7"); A("s_mul_i32 s40, s40, 6656"); A(f"v_add_u32 v{vDELTA}, s40, v{vDELTA}")
    A(f"s_mul_i32 s42, s{sT0X}, 832")
    A(f"s_mov_b32 m0, s{sW1K}")
    A(f"s_min_u32 s45, s{sWV}, 2")
    A(f"s_mul_i32 s40, s45, {ROWB}"); A("s_add_u32 s40, s40, s44")
    A("v_lshlrev_b32 v6, 2, v1")
    A(f"s_mov_b32 s34, {3*ROWB}"); A("s_mov_b32 s35, 0x20000")
    if P.stamps: A(f"s_mem{'real' if P.rt else ''}time s[100:101]")
    A("s_waitcnt lgkmcnt(0)")
    if P.stamps: A(f"s_mem{'real' if P.rt else ''}time s[98:99]")
    A("s_mov_b32 s16, s6"); A("s_mov_b32 s17, s7"); A("s_mov_b32 s20, s4"); A("s_mov_b32 s21, s5")
    A(f"buffer_load_dwordx4 v{vW}, s[16:19], s42 offen lds")
    A(f"s_mov_b32 m0, s{sXS}"); A("s_mov_b32 s32, s8"); A("s_mov_b32 s33, s9")
    for sp in range(3):
        A(f"buffer_load_dwordx4 v{vXS+sp}, s[20:23], s{sT0X} offen offset:{1024*sp} lds")
    A(f"buffer_load_dword v{Y}, v6, s[32:35], s40 offen")
    for d, b_, size in ((24, 14, WS_BYTES), (28, 10, 4096*ROWB)):
        A(f"s_mov_b32 s{d}, s{b_}"); A(f"s_mov_b32 s{d+1}, s{b_+1}"); A(f"s_mov_b32 s{d+2}, {size}"); A(f"s_mov_b32 s{d+3}, 0x20000")
    A(f"s_add_u32 s{sXL}, s14, {XREG0}"); A(f"s_addc_u32 s{sXL+1}, s15, 0"); A(f"s_mov_b32 s{sXL+2}, {XREG_STRIDE}"); A(f"s_mov_b32 s{sXL+3}, 0x20000")
    vals = [order.pack(r) for r in order.T]
    for w_, dst in ((0, 48), (1, 49)):
        A(f"s_mov_b32 s{dst}, {(vals[0] >> (32*w_)) & 0xffffffff:#x}")
    for c in range(1, 4):
        A(f"s_cmp_eq_u32 s{sCQ}, {c}")
        for w_, dst in ((0, 48), (1, 49)):
            A(f"s_cselect_b32 s{dst}, {(vals[c] >> (32*w_)) & 0xffffffff:#x}, s{dst}")
    t = Y + 16
    A(f"v_lshlrev_b32 v{t}, 2, v1"); A(f"v_lshrrev_b64 v[{t}:{t+1}], v{t}, s[48:49]"); A(f"v_and_b32 v{t}, 15, v{t}")
    if P.NA == 7:
        A(f"v_add_u32 v{t+1}, s{sJ}, v{t}"); A(f"v_subrev_u32 v{t+2}, 7, v{t+1}"); A(f"v_min_u32 v{t+1}, v{t+1}, v{t+2}")
    else:
        A(f"s_lshr_b32 s40, s{sJ}, 1"); A(f"v_add_u32 v{t+1}, s40, v{t}"); A(f"v_and_b32 v{t+1}, 3, v{t+1}")
    A(f"v_cmp_gt_u32 vcc, {P.NA}, v{t}")
    A(f"s_cmp_eq_u32 s{sJ}, 6"); A(f"s_cselect_b32 s40, 0, s{sJ}")
    A(f"v_cndmask_b32 v{t}, v{t}, v{t+1}, vcc")
    A(f"v_lshl_add_u32 v{t}, v{t}, 1, s{sX2}")
    for _ in range(2):
        A(f"v_subrev_u32 v{t+1}, 13, v{t}"); A(f"v_min_u32 v{t}, v{t}, v{t+1}")
    A(f"v_lshlrev_b32 v{t}, 7, v{t}"); A(f"v_mul_u32_u24 v{t+1}, 832, v{t}")
    A(f"v_add_u32 v{t+2}, s{sJ}, v1"); A(f"v_subrev_u32 v{t+3}, 7, v{t+2}"); A(f"v_min_u32 v{t+2}, v{t+2}, v{t+3}"); A(f"v_lshlrev_b32 v{t+2}, 1, v{t+2}")
    A(f"v_add3_u32 v{t+3}, v1, s40, -7"); A(f"v_subrev_u32 v{t+4}, 6, v{t+3}"); A(f"v_min_u32 v{t+3}, v{t+3}, v{t+4}"); A(f"v_lshl_or_b32 v{t+3}, v{t+3}, 1, 1")
    A("v_cmp_gt_u32 vcc, 7, v1")
    for n in range(13): A(f"v_readlane_b32 s{sT0W+n}, v{t+1}, {n}")
    A(f"v_cndmask_b32 v{t+2}, v{t+3}, v{t+2}, vcc")
    A(f"v_mul_u32_u24 v{t+4}, {BLKW}, v{t+2}"); A(f"v_lshlrev_b32 v{t+5}, 12, v{t+2}")
    for n in range(1, 13): A(f"v_readlane_b32 s{sT0X+n}, v{t}, {n}")
    A(f"buffer_load_dwordx4 v{vXS+3}, s[20:23], s{sT0X} offen offset:3072 lds")
    A(f"s_add_u32 m0, s{sW1K}, {PAGE}"); A("s_nop 0")
    A(f"buffer_load_dwordx4 v{vW+2}, s[16:19], s42 offen lds")
    A("s_lshl_b32 s45, s45, 9"); A(f"s_add_u32 s45, s45, {MISC}")
    A(f"v_lshl_add_u32 v{Y+4}, v1, 3, s45")
    A(f"s_mov_b32 s{sOWN}, s44")
    A("s_lshl_b32 s44, s43, 7"); A(f"s_add_u32 s44, s44, {FLAG_BASE}")
    A(f"v_lshl_add_u32 v{vFLAG}, v3, 3, s44")
    A(f"v_lshlrev_b32 v{vBIAS}, 4, v7"); A(f"v_add_u32 v{vBIAS}, {MISC}, v{vBIAS}")
    A(f"s_lshl_b32 s45, s{sJ}, 3"); A("s_add_u32 s45, s45, s44")
    A("v_mov_b32 v5, 0x80000000"); A("v_mov_b32 v6, s45")
    A("v_cmp_eq_u32 vcc, 0, v1")
    A(f"v_lshl_add_u32 v{vXL}, v1, 4, s46")
    A("v_and_b32 v2, 31, v1")
    A(f"v_cndmask_b32 v{vFST}, v5, v6, vcc")
    A(f"s_add_u32 s42, s42, 128"); A(f"s_cmp_eq_u32 s{sJ}, 6"); A(f"s_cselect_b32 s42, s{sT0W+1}, s42")
    for v in (2, 3):
        A(f"s_add_u32 m0, s{sW1K}, {v*PAGE}"); A("s_nop 0")
        A(f"buffer_load_dwordx4 v{vW+2*(v-2)}, s[16:19], s42 offen lds")
    A(f"v_bfe_u32 v{vZ}, v1, 1, 3"); A(f"v_lshl_add_u32 v2, v2, 7, s{sXS}")
    for s4 in range(4):
        A(f"v_add_u32 v6, {2*s4}, v7"); A(f"v_xor_b32 v6, v6, v{vZ}"); A(f"v_lshl_add_u32 v{vXR+s4}, v6, 4, v2")
    A(f"v_lshl_add_u32 v{vCB}, v7, 3, v2")
    A(f"s_add_u32 m0, s{sXS}, {PAGE}")
    A("v_bfe_u32 v3, v1, 2, 2")
    for sp in range(2): A(f"buffer_load_dwordx4 v{vXS+sp}, s[20:23], s{sT0X+1} offen offset:{1024*sp} lds")
    A("v_lshl_add_u32 v4, v7, 2, v3"); A("v_lshlrev_b32 v4, 7, v4")
    A("v_bfe_u32 v6, v1, 4, 1"); A("v_lshl_add_u32 v4, v6, 5, v4")
    A("v_and_b32 v6, 3, v1"); A("v_lshl_add_u32 v4, v6, 3, v4")
    A("v_lshrrev_b32 v3, 1, v3")
    for sp in range(2, 4): A(f"buffer_load_dwordx4 v{vXS+sp}, s[20:23], s{sT0X+1} offen offset:{1024*sp} lds")
    for t_ in range(2):
        A(f"v_xor_b32 v6, {t_}, v3"); A(f"v_lshl_add_u32 v{vTR+t_}, v6, 6, v4")
        A(f"v_add_u32 v{vTR+2+t_}, 0x10000, v{vTR+t_}"); A(f"v_add_u32 v{vTR+4+t_}, 0x20000, v{vTR+t_}")
    A("v_min_u32 v5, 5, v1"); A("v_lshl_add_u32 v5, v5, 14, s44")
    A(f"s_cmp_eq_u32 s{sWV}, 0"); A("s_cselect_b32 s45, 1.0, 0")
    A(f"s_getreg_b32 s{sHEL}, hwreg(HW_REG_XCC_ID, 0, 4)")
    A(f"s_mov_b32 s{sBASE}, s46")
    A("s_mov_b32 s46, 0x40000")
    A(f"buffer_load_dwordx2 v[{Y+24}:{Y+25}], v5, s[24:27], 0 offen sc1")
    A(f"s_cmp_eq_u32 s{sJ}, 6"); A("s_cbranch_scc1 L_m6")
    t1, n1 = gen_member(False)
    t2, n2 = gen_member(True)
    T.append(t1); T.append(t2)
    T.append(gen_helper())
    A("L_end:"); A("s_endpgm")
    A('.section .rodata,"a"'); A(".p2align 6")
    A(f""".amdhsa_kernel {k}
  .amdhsa_next_free_vgpr 488
  .amdhsa_next_free_sgpr 102
  .amdhsa_accum_offset 256
  .amdhsa_group_segment_fixed_size 0
  .amdhsa_kernarg_size 48
  .amdhsa_user_sgpr_count 2
  .amdhsa_user_sgpr_kernarg_segment_ptr 1
  .amdhsa_system_sgpr_workgroup_id_x 1
  .amdhsa_float_denorm_mode_32 3
.end_amdhsa_kernel
""")
    H = [f"; @launch grid=(256,1,1) block=(256,1,1) lds={LDS_BYTES}"]
    if P.stamps:
        H.append("; @st32" + (" @rt" if P.rt else ""))
        H.append("; @names_reg " + " ".join(x.replace(" ", "") for x in n1))
        H.append("; @names_m6 " + " ".join(x.replace(" ", "") for x in n2))
    open(out, "w").write("\n".join(H + T))

main()
```

```python
import sys
from emit import Em
import order

NAME = "standalone__cross_network_dcn__recsys"
ROWB = 1664
WLAYER = 832 * ROWB
BLKW = 64 * ROWB
KSW = 32 * ROWB
PAGE = 4096
NPAGES = 39
MISC = NPAGES * PAGE
LDS_BYTES = 163840
FLAG_BASE = 8 << 20
XREG0 = 16 << 20
XREG_STRIDE = 8 << 20
WS_BYTES = 32 << 20
ACC, X0F, PX, Y, BC = 32, 96, 160, 192, 224
vFL = 0
vST = 5
vNON = 6
vW = 8
vXS = 12
vXR = 16
vTR = 20
vXL, vZ, vCB, vBIAS, vFLAG, vFST = 26, 27, 28, 29, 30, 31
vDELTA = Y + 31
vOR = vXR
WB = 192
sRET = 0
sT0W = 3
sMODE, sHEL, sOWN, sBASE = 32, 33, 34, 35
sJ, sC, sWV, sCQ = 36, 37, 38, 39
sW1K, sXS = 41, 47
sNON = 48
sBW, sBX = 50, 63
sXL = 76
sT0X = 80
sSTM = 94
sX2 = 93
NSTAMP = 32

class P:
    stamps = False; rt = False
    GB = 6; NB = 3; YP = 6; ORD = 2
    BUD = 5; CRITX = 1
    MINLA = 10; HILA = 18
    XLAT = 4; ACK = 4
    POLL_E0 = 53; POLL_L0 = 17; ORD0 = 0; POLL_E = 46; POLL_L = 12; POLLW = 3
    helper = True; touch = True; fast = True
    XSH = 1; HX0 = True; HELLO = 20
    HP1 = False; H2 = 13; H0 = 13
    PREW = 8; PREX = 2; L0B = 4; WDL = 2; SL3 = 5; XF = 0; SF = 0; T0 = 0; ACK0 = 8; TW = 5; CONS = 28; XNT = 0; WNT = 0; OT = 1; HE = 1; OA = 1; BIN = 1; TDB = 2330; STOP = 999; NA = 4; WARM = 0; M6V = 1; SCAP = 1; LP = 1; O7 = 1; WB2 = 0; HW = 0; TBAT = 8; OD = 1; OF1 = 1; STU = 999; STN = 1; TD = 3320; VC10 = 35; MS = 1; CPF = True; OF = 1; dbg = False
    VC = 4
    fine = False

class Multi(tuple):
    def __new__(cls, a, b):
        o = super().__new__(cls, a); o.b = b; return o
    def __eq__(self, other):
        return tuple(self) == tuple(other) or self.b == tuple(other)
    def __hash__(self):
        return hash(tuple(self))

class Op:
    def __init__(self, kind, fn, req=(), give=(), at=0.0, cost=1, pre=None, name=""):
        self.kind, self.fn, self.req, self.give, self.at, self.cost, self.pre = kind, fn, set(req), set(give), at, cost, pre
        self.done = False; self.name = name; self.predone = False

class Prog:
    def __init__(self, m6, tag):
        self.m6 = m6; self.tag = tag
        self.e = Em(); self.ops = []; self.tokens = set()
        self.icount = 0; self.used = 0
        self.last_mfma = {}; self.last_valu = {}
        self.nstamp = 0; self.names = []; self.st = None
    def A(self, s):
        self.e.A(s); self.icount += 1; self.used += 1
    def vmem(self, s, tag=None):
        self.e.vmem(s, tag); self.icount += 1; self.used += P.VC10/10.0
    def lds(self, s, tag=None):
        self.e.lds(s, tag); self.icount += 1; self.used += 1
        if self.st is not None and self.st.get("capm") is not None:
            self.e.lg[-1] = Multi(tag, ("capm", self.st["capm"])); self.st["capm"] = None
    def wait(self, vm=None, lg=None):
        if self.e.wait(vm, lg): self.icount += 1; self.used += 1
    def pad(self, since, need):
        n = need - (self.icount - since)
        while n > 0:
            k = min(n, 16)
            self.e.A(f"s_nop {k-1}"); self.icount += k; self.used += k; n -= k
    def valu(self, s, writes=(), acc_tile=None):
        if acc_tile is not None and acc_tile in self.last_mfma:
            self.pad(self.last_mfma[acc_tile], 12)
        self.A(s)
        for r in writes: self.last_valu[r] = self.icount
    def stamp(self, name):
        if P.stamps and self.nstamp < NSTAMP:
            i = self.nstamp; self.nstamp += 1; self.names.append(name)
            self.e.A(f"s_mem{'real' if P.rt else ''}time s[{sSTM}:{sSTM+1}]")
            self.e.wait_lg_all()
            self.e.A(f"v_writelane_b32 v{vST}, s{sSTM}, {i}")
            self.icount += 3
    def add(self, *a, **k):
        o = Op(*a, **k); self.ops.append(o); return o
    def run(self, o):
        assert not o.done
        for t in o.req: self.ensure(t)
        if o.pre and not o.predone:
            o.pre(); self.A("s_nop 0")
        o.done = True
        o.fn()
        self.tokens |= o.give
    def ensure(self, tok):
        if tok in self.tokens: return
        cand = [o for o in self.ops if tok in o.give and not o.done]
        assert cand, f"no producer for {tok}"
        self.run(cand[0])
    def pick(self, now, kind):
        for o in self.ops:
            if not o.done and o.kind == kind and o.at <= now and o.req <= self.tokens:
                return o
        return None

def xreg(m6, pos, ks, s):
    o = 8*ks + 4*s
    if pos == 0:
        r = PX + o; return f"v[{r}:{r+3}]", ("v", r)
    if pos == 7 and not m6:
        r = PX + 16 + o; return f"v[{r}:{r+3}]", ("v", r)
    idx = pos - 1 if (m6 or pos < 7) else pos - 2
    r = 16*idx + o
    return f"a[{r}:{r+3}]", ("a", r)

def unit_list(m6):
    U = []
    for l in range(3):
        L = []
        B = lambda pos, H: [(l, pos, 0, H), (l, pos, 1, H)]
        if m6:
            for pos in range(13): L += B(pos, 0)
        elif l == 0:
            for pos in range(P.L0B): L += B(pos, 0) + B(pos, 1)
            for pos in range(P.L0B, 13): L += B(pos, 0)
            for pos in range(P.L0B, 13): L += B(pos, 1)
        else:
            ORD = P.ORD0 if l == 1 else P.ORD
            L += B(0, 0)
            for pos in range(1, 1 + ORD): L += B(pos, 0)
            L += (B(7, 0) + B(0, 1) + B(7, 1)) if P.O7 else (B(0, 1) + B(7, 0) + B(7, 1))
            e1 = []
            for pos in range(1, 7): e1 += B(pos, 1)
            for pos in range(1 + ORD, 7): L += B(pos, 0)
            L += e1[:P.YP]
            for pos in range(8, 13): L += B(pos, 0)
            L += e1[P.YP:]
            for pos in range(8, 13): L += B(pos, 1)
        U += L
    return U

def tables(p):
    A = p.A
    for q in range(7):
        A(f"s_add_u32 s40, s{sJ}, {q}")
        A("s_sub_u32 s42, s40, 7"); A("s_min_u32 s40, s40, s42")
        A(f"s_mul_i32 s{sBW+q}, s40, {2*BLKW}")
        A(f"s_lshl_b32 s{sBX+q}, s40, 13")
    for q in range(6):
        if p.m6:
            A(f"s_mov_b32 s{sBW+7+q}, {(2*q+1)*BLKW}")
            A(f"s_mov_b32 s{sBX+7+q}, {(2*q+1)*4096}")
        else:
            A(f"s_add_u32 s40, s{sJ}, {q}")
            A("s_sub_u32 s42, s40, 6"); A("s_min_u32 s40, s40, s42")
            A("s_lshl_b32 s40, s40, 1"); A("s_or_b32 s40, s40, 1")
            A(f"s_mul_i32 s{sBW+7+q}, s40, {BLKW}")
            A(f"s_lshl_b32 s{sBX+7+q}, s40, 12")

def gen_member(m6):
    tag = "m6" if m6 else "mr"
    p = Prog(m6, tag); A = p.A; e = p.e
    U = unit_list(m6); NU = len(U); UL = NU // 3
    NB = P.NB
    XS0 = NPAGES - 4*NB
    halves = (0,) if m6 else (0, 1)
    own_pos = {0: 0, 1: 7}
    ool = []
    e.A(f"L_{tag}:")
    if P.stamps:
        p.nstamp = 3; p.names += ["start", "prew", "karg"]
    order0 = []
    for (l, pos, ks, H) in U[:UL]:
        if pos not in order0: order0.append(pos)
    n0 = {pos: n for n, pos in enumerate(order0)}
    free_pages = list(range(XS0))
    pending = []; page_of = {}
    st = {"next_w": 0, "landed": -1, "now": -1, "wl": 0}
    p.st = st
    def w_can():
        return st["next_w"] < min(NU, P.STOP*UL/52 + 8) and bool(free_pages)
    def w_pre():
        v = st["next_w"]
        l = U[v][0]
        if l != st["wl"]:
            st["wl"] = l
            p.ensure(("tab", 25))
            A(f"s_add_u32 s16, s16, {WLAYER}"); A("s_addc_u32 s17, s17, 0"); A(f"s_sub_u32 s18, s18, {WLAYER}")
            if l == 1:
                for i in range(4): A(f"v_add_u32 v{vW+i}, v{vDELTA}, v{vW+i}")
                p.tokens.add(("wswitch",))
        pg = free_pages.pop(0); page_of[v] = pg
        pending.append((pg, v))
        A(f"s_add_u32 m0, s{sW1K}, {pg*PAGE}")
        st["m0"] = ("w", v)
    def w_go():
        v = st["next_w"]
        l, pos, ks, H = U[v]
        so = sT0W + n0[pos] if l == 0 else sBW + pos
        p.vmem(f"buffer_load_dwordx4 v{vW+2*ks+H}, s[16:19], s{so} offen{' nt' if (P.WNT == 2 or (P.WNT == 1 and l == 0)) else ''} lds", ("w", v))
        st["next_w"] += 1
    def w_dma():
        assert w_can(), "no free page"
        w_pre(); A("s_nop 0"); w_go()
    def w_rd(v, i, u):
        s, t = i // 2, i % 2
        off = page_of[v]*PAGE + s*2048 + u*1024
        d = WB + (v & 1)*16 + i*4 + 2*u
        p.lds(f"ds_read_b64_tr_b16 a[{d}:{d+1}], v{vTR+2*(off >> 16)+t} offset:{off & 0xffff}", ("w", v, i))
    def x0_pre(n, sp):
        if P.MS:
            if st.get("m0") == ("x", n): return
            st["m0"] = ("x", n)
            A(f"s_add_u32 m0, s{sXS}, {(n % NB)*PAGE}")
        else:
            A(f"s_add_u32 m0, s{sXS}, {(n % NB)*PAGE + sp*1024}")
    def x0_go(n, sp):
        p.vmem(f"buffer_load_dwordx4 v{vXS+sp}, s[20:23], s{sT0X+n} offen{(' offset:%d' % (1024*sp)) if P.MS else ''}{' nt' if P.XNT else ''} lds", ("x0", n))
    for t_ in (("w", 0), ("x0", 0), ("x0", 0), ("x0", 0), ("bias",)) + ((("non",),) if P.HE else ()) + (("x0", 0), ("w", 1), ("w", 2), ("w", 3)) + (("x0", 1),)*4: e.vm.append(t_)
    for v in range(4):
        pg = free_pages.pop(0); page_of[v] = pg; pending.append((pg, v))
        assert pg == v and U[v][1:] == ((0, v, 0) if v < 2 else ((order0[1], v-2, 0) if m6 else (0, v-2, 1)))
    st["next_w"] = 4
    assert P.PREX >= 2
    if not P.HE: e.vm.append(("non",))
    if P.stamps:
        A("s_waitcnt lgkmcnt(0)"); A(f"v_writelane_b32 v{vST}, s96, 0"); A(f"v_writelane_b32 v{vST}, s100, 1"); A(f"v_writelane_b32 v{vST}, s98, 2")
    p.stamp("prebias")
    p.wait(vm=lambda t: t == ("bias",))
    A(f"v_lshlrev_b32 v{Y+2}, 16, v{Y}"); A(f"v_and_b32 v{Y+3}, 0xffff0000, v{Y}")
    A(f"v_add_f32 v{Y+2}, s45, v{Y+2}"); A(f"v_add_f32 v{Y+3}, s45, v{Y+3}")
    p.lds(f"ds_write_b64 v{Y+4}, v[{Y+2}:{Y+3}]", ("bw",))
    while st["next_w"] < P.PREW: w_dma()
    for n in range(2, P.PREX):
        for sp in range(4):
            x0_pre(n, sp)
            if sp == 0: A("s_nop 0")
            x0_go(n, sp)
    if P.WARM:
        A(f"v_mov_b32 v3, v{vCB}")
        for H in halves:
            A(f"s_movk_i32 s44, {128*H}")
            A(f"s_call_b64 s[{sRET}:{sRET+1}], L_{tag}_cap0")
        e.lg_done = len(e.lg)
    for q in range(26): A(f"v_readlane_b32 s{sBW+q}, v{Y+20+q//13}, {q % 13}")
    p.tokens.add(("tab", 25))

    first_use = {}; last_use = {}; last_unit = {}; first_unit = {}
    for v, (l, pos, ks, H) in enumerate(U):
        first_use.setdefault((l, pos), v); last_use[(l, pos)] = v; last_unit[(l, H)] = v; first_unit.setdefault((l, H), v)
    def f():
        p.wait(vm=lambda t: t == ("non",))
        A(f"v_readlane_b32 s{sNON}, v{Y+24}, 3"); A(f"v_readlane_b32 s{sNON+1}, v{Y+25}, 3")
        A("s_nop 3")
        A(f"s_or_b32 s{sNON}, s{sNON}, 1"); A(f"s_add_u32 s{sNON}, s{sNON}, 2"); A(f"s_add_u32 s{sNON+1}, s{sNON+1}, 1")
        A(f"s_add_u32 s{sHEL}, s{sHEL}, s{sNON+1}"); A(f"s_add_u32 s{sHEL}, s{sHEL}, 16")
        A(f"v_mov_b32 v{vNON}, s{sNON}"); A(f"v_mov_b32 v{vNON+1}, s{sHEL}")
        A(f"s_mov_b32 s44, {4*16384}")
        p.vmem(f"buffer_store_dwordx2 v[{vNON}:{vNON+1}], v{vFST}, s[24:27], s44 offen sc1", ("hello",))
        A("s_nop 0")
        A(f"v_mov_b32 v{vNON+1}, s{sNON+1}")
    o = p.add("vmemh", f, give=[("hello",)], at=0, name="hello")
    if P.HE: p.run(o)
    for n, pos in enumerate(order0):
        for sp in range(4):
            if n < P.PREX:
                p.tokens.add(("x0d", n, sp)); continue
            def pre(n=n, sp=sp):
                if n >= NB:
                    if st.get("capm") is not None:
                        e.wait_lg_all(); p.icount += 1; p.used += 1; st["capm"] = None
                    p.wait(lg=lambda t: (t[0] == "x" and t[1] == 0 and t[2] == order0[n-NB]) or t == ("capm", n-NB))
                x0_pre(n, sp)
            def f(n=n, sp=sp):
                x0_go(n, sp); st[("x0at", n)] = st["now"]
            p.add("vmem", f, pre=pre, req=([("x0rd", n-NB)] if n >= NB else []) + [("x0d", n, sp-1) if sp else ("x0d", n-1, 3)],
                  give=[("x0d", n, sp)], name=f"x0dma{n}").dl = first_use[(0, pos)] - P.XLAT - 1
        for s4 in range(4):
            def f(n=n, pos=pos, s4=s4):
                p.wait(vm=lambda t: t == ("x0", n))
                txt, _ = xreg(m6, pos, s4 // 2, s4 % 2)
                p.lds(f"ds_read_b128 {txt}, v{vXR+s4} offset:{(n % NB)*PAGE}", ("x", 0, pos, s4))
            give = [("x0f", n, s4)]
            if s4 == 3: give.append(("xi", 0, pos))
            o = p.add("lds", f, req=[("x0d", n, 3)] + ([("x0f", n, s4-1)] if s4 else []), give=give, name=f"x0rd{n}")
            o.x0n = n
        def f(n=n):
            lab = f"L_{tag}_nc{n}"
            A(f"s_sub_u32 s44, s{sT0X+n}, s{sOWN}")
            A(f"s_cmp_le_u32 s44, {0 if m6 else 128}")
            A(f"s_cbranch_scc1 {lab}x")
            e.A(f"{lab}:")
            ool.extend([f"{lab}x:", f"v_add_u32 v3, {(n % NB)*PAGE}, v{vCB}", f"s_call_b64 s[{sRET}:{sRET+1}], L_{tag}_cap0", f"s_branch {lab}"])
            st["capm"] = n
        p.add("chk", f, req=[("xi", 0, pos), ("hello",)] + ([("x0rd", n-1)] if n else []), give=[("x0rd", n)], cost=3, name="capchk")
    if P.SCAP:
        for H in halves:
            for q in range(32):
                def f(q=q, H=H):
                    if q == 0 and H == 0:
                        e.wait_lg_all(); p.icount += 1; p.used += 1
                    B = X0F + 32*H
                    if q % 2 == 0: A(f"v_lshlrev_b32 v{B+q}, 16, v{B+16+q//2}")
                    else: A(f"v_and_b32 v{B+q}, 0xffff0000, v{B+16+q//2}")
                p.add("crit" if H == 0 else "valu", f, req=[("x0rd", 12)] + ([("capu", H, q-1)] if q else ([("capu", 0, 0)] if H else [])),
                      give=[("capu", H, q)], name="capu")
    def poll_load(off, key):
        A(f"s_mov_b32 s45, {off}")
        p.vmem(f"buffer_load_dwordx2 v[{vFL}:{vFL+1}], v{vFLAG}, s[24:27], s45 offen sc1", ("poll",) + key)
        st[("pollat",) + key] = st["now"]
    def poll_check(key, cmp_, mask):
        lab = f"L_{tag}_ok{key[0]}{key[1]}"; lp = f"L_{tag}_sp{key[0]}{key[1]}"
        if P.fine: p.stamp(f"chk{key}<")
        p.wait(vm=lambda t: t == ("poll",) + key)
        e.A(f"{lp}:")
        if cmp_ == "hello":
            A(f"v_subrev_u32 v2, s{sNON+1}, v{vFL+1}")
            A("v_lshrrev_b32 v2, 4, v2")
            A(f"v_xor_b32 v3, s{sNON}, v{vFL}")
            A("v_xor_b32 v2, 1, v2")
            A("v_or_b32 v2, v2, v3")
            A("v_cmp_eq_u32 vcc, 0, v2")
        else:
            A(cmp_)
        A("s_nop 1")
        A(f"s_and_b32 s44, vcc_lo, {mask}")
        A(f"s_cmp_eq_u32 s44, {mask}")
        A(f"s_cbranch_scc0 {lab}x")
        e.A(f"{lab}:")
        ool.extend([f"{lab}x:", "s_sleep 1", f"buffer_load_dwordx2 v[{vFL}:{vFL+1}], v{vFLAG}, s[24:27], s45 offen sc1",
                    "s_sub_u32 s46, s46, 1", "s_waitcnt vmcnt(0)", f"s_cbranch_scc0 {lp}", f"s_branch {lab}"])
        if P.fine: p.stamp(f"chk{key}>")
    p.add("vmemh", lambda: poll_load(4*16384, (9, 9)), req=[("hello",)], give=[("pi", 9, 9)], at=P.HELLO*UL/52.0, name="hpoll")
    def f():
        poll_check((9, 9), "hello", 0x7f)
        A(f"v_cmp_eq_u32 vcc, s{sHEL}, v{vFL+1}")
        A("s_nop 1")
        A("s_and_b32 s44, s44, vcc_lo")
        A("s_cmp_eq_u32 s44, 0x7f")
        A(f"s_cselect_b32 s{sMODE}, {1 if P.fast else 0}, 0")
        A(f"s_cselect_b32 s{sX2}, {0 if P.fast else XREG_STRIDE}, {XREG_STRIDE}")
    o = p.add("chk", f, req=[("pi", 9, 9)], give=[("mode",)], cost=3, name="hchk"); o.bh = (9, 9)

    def flag_store(idx, slow_touch):
        lab = f"L_{tag}_fl{idx}"
        A(f"s_mov_b32 s44, {idx*16384}")
        A(f"s_cmp_lg_u32 s{sMODE}, 0")
        A(f"s_cbranch_scc0 {lab}x")
        p.vmem(f"buffer_store_dwordx2 v[{vNON}:{vNON+1}], v{vFST}, s[24:27], s44 offen", ("fl", idx))
        e.A(f"{lab}j:")
        ool.extend([f"{lab}x:", f"buffer_store_dwordx2 v[{vNON}:{vNON+1}], v{vFST}, s[24:27], s44 offen sc1"])
        if slow_touch and P.touch:
            ool.extend([f"v_subrev_u32 v2, s{sBASE}, v{vXL}", "v_and_b32 v2, 0x1f0, v2", f"v_lshl_add_u32 v2, v2, 3, s{sBASE}",
                        f"s_add_u32 s40, s{sBX+own_pos[idx & 1]}, {XREG0 + XREG_STRIDE}",
                        "buffer_load_dword a224, v2, s[24:27], s40 offen sc1"])
        ool.append(f"s_branch {lab}j")
    def f():
        p.wait(vm=lambda t: t == ("x", 1, 6, 3))
        flag_store(5, False)
    p.add("vmemh", f, req=[("udone", first_use[(1, 6)])], give=[("cons",)], name="cons")
    p.add("vmemh", lambda: poll_load(5*16384, (8, 8)), req=[("cons",), ("ok", 0, 1)], give=[("pi", 8, 8)], at=UL + P.CONS*UL/52.0, name="cpoll")
    o = p.add("chk", lambda: poll_check((8, 8), f"v_cmp_eq_u64 vcc, s[{sNON}:{sNON+1}], v[{vFL}:{vFL+1}]", 0x7f),
              req=[("pi", 8, 8)], give=[("ok", 8, 8)], cost=3, name="cchk"); o.bh = (8, 8)
    prev_crit = None
    prev_bc = None
    for l in range(3):
        for H in halves:
            lu = last_unit[(l, H)]
            if (l, H) != (0, 0):
                for q in range(8):
                    def f(l=l, H=H, q=q):
                        p.lds(f"ds_read_b128 v[{BC+4*q}:{BC+4*q+3}], v{vBIAS} offset:{l*512 + (64*H + 8*q)*4}", ("bc", l, H, q // 4))
                    p.add("lds", f, req=[("udone", prev_bc)] + ([("bcr", l, H, q-1)] if q else []), give=[("bcr", l, H, q)],
                          at=max(0, first_unit[(l, H)] - 8), name="bc")
            prev_bc = first_unit[(l, H)]
            if l > 0:
                for q in range(32):
                    def f(H=H, q=q):
                        if q % 2 == 0: A(f"v_lshlrev_b32 v{Y+q}, 16, v{PX+16*H+q//2}")
                        else: A(f"v_and_b32 v{Y+q}, 0xffff0000, v{PX+16*H+q//2}")
                    p.add("valu", f, req=[prev_crit, ("wswitch",)] + ([("yp", l, H, q-1)] if q else []), give=[("yp", l, H, q)], name="yprep")
            for q in range(48):
                g3, k = q // 3, q % 3
                def f(l=l, H=H, g3=g3, k=k):
                    a, b, c_ = X0F + 32*H + 2*g3, Y + 2*g3, ACC + 32*H + 2*g3
                    tile = 2*H + g3 // 8
                    if k == 2:
                        d = PX + 16*H + g3
                        p.valu(f"v_cvt_pk_bf16_f32 v{d}, v{c_}, v{c_+1}", writes=[d])
                    elif l == 0:
                        p.valu(f"v_mul_f32 v{c_+k}, v{a+k}, v{c_+k}", acc_tile=tile)
                    else:
                        p.valu(f"v_fma_f32 v{c_+k}, v{a+k}, v{c_+k}, v{b+k}", acc_tile=tile)
                give = [("cr", l, H, q)] + ([("crit", l, H)] if q == 47 else [])
                req = [("udone", lu), ("udone", last_use[(l, own_pos[H])])]
                req += [("yp", l, H, 31)] if l else [("capu", H, 31) if P.SCAP else ("x0rd", 12)]
                if prev_crit: req.append(prev_crit)
                p.add("crit", f, req=req + ([("cr", l, H, q-1)] if q else []), give=give, at=lu+1.25, name="crit")
            prev_crit = ("crit", l, H)
            src = PX + 16*H
            if l < 2:
                for q in range(4):
                    def f(l=l, H=H, q=q, src=src):
                        lab = f"L_{tag}_st{l}{H}{q}"
                        ins = f"buffer_store_dwordx4 v[{src+4*q}:{src+4*q+3}], v{vXL}, s[24:27], s43 offen offset:{q*1024}"
                        if q == 0:
                            A(f"s_add_u32 s43, s{sBX+own_pos[H]}, {XREG0}")
                            if l == 1: A(f"s_add_u32 s43, s43, s{sX2}")
                        if l == 0:
                            p.vmem(ins + " sc1", ("st", l, H))
                        else:
                            A(f"s_cmp_lg_u32 s{sMODE}, 0")
                            A(f"s_cbranch_scc0 {lab}x")
                            p.vmem(ins, ("st", l, H))
                            e.A(f"{lab}j:")
                            ool.extend([f"{lab}x:", ins + " sc1", f"s_branch {lab}j"])
                        if q == 3: st[("stat", l, H)] = st["now"]
                    req = [("cr", l, H, 12*q+11), ("tab", 25)] + ([("st", l, H, q-1)] if q else [])
                    if l == 1: req += [("mode",), ("ok", 8, 8) if H == 0 else ("ok", 1, 0)]
                    p.add("vmemh", f, req=req, give=[("st", l, H, q)], name="store")
                def touch(H):
                    A(f"v_subrev_u32 v2, s{sBASE}, v{vXL}")
                    A("v_and_b32 v2, 0x1f0, v2")
                    A(f"v_lshl_add_u32 v2, v2, 3, s{sBASE}")
                    A(f"s_add_u32 s40, s{sBX+own_pos[H]}, {XREG0}")
                    return "buffer_load_dword a224, v2, s[24:27], s40 offen sc1"
                if l == 0 and P.T0 == 2:
                    def f(l=l, H=H):
                        p.wait(vm=lambda t: t == ("st", l, H))
                        p.vmem(touch(H), ("tch", l, H))
                        st[("tat", l, H)] = st["now"]
                    o = p.add("vmemh", f, req=[("st", l, H, 3)], give=[("tch", l, H)], name="touch"); o.lh = (l, H)
                def f(l=l, H=H):
                    p.wait(vm=lambda t: t == ("st", l, H) or t == ("tch", l, H))
                    if l == 0 and P.T0 == 1:
                        p.vmem(touch(H), ("tch", l, H))
                    flag_store(2*l+H, l == 1)
                if l == 0 and P.T0 == 2:
                    o = p.add("vmemh", f, req=[("tch", l, H), ("mode",)], give=[("sent", l, H)], name="flag"); o.th = (l, H)
                else:
                    o = p.add("vmemh", f, req=[("st", l, H, 3), ("mode",)], give=[("sent", l, H)], name="flag"); o.lh = (l, H)
            else:
                for ch in range(8):
                    def f(H=H, ch=ch, src=src):
                        if ch == 0:
                            p.wait(lg=lambda t: t[0] == "or")
                            if H == 0:
                                A(f"v_subrev_u32 v{vOR}, s{sBASE}, v{vXL}"); A(f"v_add_u32 v{vOR}, s{sXS}, v{vOR}")
                        r = X0F + 2*ch if (P.OA and not m6) else 2
                        if H == 0 or r == 2:
                            A(f"v_xor_b32 v{r}, {ch}, v{vZ}"); A(f"v_lshl_add_u32 v{r}, v{r}, 4, v{vCB}")
                        p.lds(f"ds_write_b64 v{r}, v[{src+2*ch}:{src+2*ch+1}]", ("ow", H, ch))
                        st[("owat", H)] = st["now"]
                    p.add("lds", f, req=[("cr", 2, H, 6*ch+5)] + ([("ow", H, ch-1)] if ch else []), give=[("ow", H, ch)], cost=3, name="ow")
                dst = BC + 16*H
                for q in range(4):
                    def f(H=H, q=q, dst=dst):
                        p.wait(lg=lambda t: t[0] == "ow")
                        p.lds(f"ds_read_b128 v[{dst+4*q}:{dst+4*q+3}], v{vOR} offset:{q*1024}", ("or", H, q))
                        st[("orat", H)] = st["now"]
                    p.add("lds", f, req=[("ow", H, 7)] + ([("or", H, q-1)] if q else []), give=[("or", H, q)], name="or").oh = ("owat", H)
                for q in range(4):
                    def f(H=H, q=q, dst=dst):
                        p.wait(lg=lambda t: t == ("or", H, q))
                        if q == 0:
                            if H: A(f"s_add_u32 s43, s{sOWN}, 128")
                            else: A(f"s_mov_b32 s43, s{sOWN}")
                        p.vmem(f"buffer_store_dwordx4 v[{dst+4*q}:{dst+4*q+3}], v{vXS+q}, s[28:31], s43 offen offset:{1024*q*P.MS}{('', ' sc1', ' nt', ' sc0 sc1')[P.OF1 if H else P.OF]}", ("ost", H))
                    p.add("vmemh", f, req=[("or", H, 3)] + ([("ost", H, q-1)] if q else []), give=[("ost", H, q)], name="ostore").oh = ("orat", H)
    prev = None
    for l in (1, 2):
        for H in (0, 1):
            b = l - 1
            poss = list(range(1, 7) if H == 0 else range(7 if m6 else 8, 13))
            scale = UL / 52.0
            at = (l-1)*UL + (P.POLL_E0 if l == 1 else P.POLL_E)*scale if H == 0 else l*UL + (P.POLL_L0 if l == 1 else P.POLL_L)*scale
            sent = [("sent", b, h) for h in halves if h <= H]
            p.add("vmemh", lambda b=b, H=H: poll_load((2*b+H)*16384, (b, H)),
                  req=sent + ([("ok", b, 0)] if H else []), give=[("pi", b, H)], at=at, name="poll")
            o = p.add("chk", lambda b=b, H=H: poll_check((b, H), f"v_cmp_eq_u64 vcc, s[{sNON}:{sNON+1}], v[{vFL}:{vFL+1}]", 0x7f if H == 0 else 0x3f),
                      req=[("pi", b, H)], give=[("ok", b, H)], cost=3, name="chk"); o.bh = (b, H)
            for pos in poss:
                for q in range(4):
                    def f(l=l, pos=pos, q=q, first=(l == 2 and H == 0 and pos == 1 and q == 0)):
                        if first:
                            A(f"s_add_u32 s{sXL}, s{sXL}, s{sX2}"); A(f"s_addc_u32 s{sXL+1}, s{sXL+1}, 0")
                        txt, _ = xreg(m6, pos, q // 2, q % 2)
                        p.vmem(f"buffer_load_dwordx4 {txt}, v{vXL}, s[{sXL}:{sXL+3}], s{sBX+pos} offen offset:{q*1024}{(' sc1', '', ' nt')[P.XF]}", ("x", l, pos, q))
                    give = [("xl", l, pos, q)] + ([("xi", l, pos)] if q == 3 else [])
                    p.add("vmem", f, req=[("ok", b, H), ("udone", last_use[(l-1, pos)])] + ([prev] if prev else []), give=give, name="xld").dl = first_use[(l, pos)] + q // 2 - 1
                    prev = ("xl", l, pos, q)

    def gates():
        for o in p.ops:
            if o.done: continue
            if hasattr(o, "lh"): o.at = st.get(("stat",) + o.lh, 1e9) + (P.ACK0 if o.lh[0] == 0 else P.ACK)
            elif hasattr(o, "oh"): o.at = st.get(o.oh, 1e9) + 1 + P.OD
            elif hasattr(o, "th"): o.at = st.get(("tat",) + o.th, 1e9) + P.TW
            elif hasattr(o, "bh"): o.at = st.get(("pollat",) + o.bh, 1e9) + P.POLLW
            elif hasattr(o, "x0n"): o.at = st.get(("x0at", o.x0n), -2) + P.XLAT
    p.wait(lg=lambda t: t == ("bw",))
    p.stamp("setup")
    p.wait(vm=lambda t: t[0] == "w" and t[1] <= 1)
    A("s_barrier")
    st["landed"] = 1
    p.stamp("w01")
    for q in range(8):
        p.lds(f"ds_read_b128 v[{BC+4*q}:{BC+4*q+3}], v{vBIAS} offset:{32*q}", ("bc", 0, 0, q // 4))
        p.tokens.add(("bcr", 0, 0, q))
    for i in range(4):
        w_rd(0, i, 0); w_rd(0, i, 1)
    donated = False
    seen = set()
    plan = None
    for u, (l, pos, ks, H) in enumerate(U):
        e.c(f"---- unit {u}: layer {l} pos {pos} ks {ks} H {H}")
        st["now"] = u
        if u == int(P.STOP*UL/52): break
        if u % UL == 0: p.stamp(f"L{l}")
        elif not m6 and u == last_unit[(l, 0)] + 1: p.stamp(f"L{l}C")
        elif P.fine and u % UL in (8, 20): p.stamp(f"u{u}")
        elif u >= P.STU and (u - P.STU) % P.STN == 0 and not m6: p.stamp(f"u{u}")
        own = pos == 0 or (pos == 7 and not m6)
        if l == 0 or not own: p.ensure(("xi", l, pos))
        else: p.ensure(("cr", l-1, 0 if pos == 0 else 1, 24*ks + 23))
        first = (l, H) not in seen
        seen.add((l, H))
        if first:
            if l > 0: p.ensure(("crit", l-1, H))
            p.ensure(("bcr", l, H, 7))
        need_bar = u + 1 < NU and u + 1 > st["landed"]
        upto = -1
        if need_bar:
            upto = min(u + (2 if u < 4 else P.GB), NU - 1)
            assert plan is None
            while st["next_w"] <= upto: w_dma()
        xs = {("x", l, pos, 2*ks), ("x", l, pos, 2*ks+1)}
        def do_bar():
            A("s_barrier")
            st["landed"] = upto
            for it in list(pending):
                if it[1] <= u - 1:
                    free_pages.append(it[0]); pending.remove(it)
        p.wait(vm=lambda t: (t[0] == "w" and t[1] <= upto) or (l > 0 and t in xs),
               lg=lambda t: (t[0] == "w" and t[1] == u) or (l == 0 and t in xs) or (first and t[:3] == ("bc", l, H)))
        if need_bar and not P.BIN: do_bar()
        if not donated and ("x0rd", 12) in p.tokens:
            e.wait_lg_all(); p.icount += 1; st["capm"] = None
            for w in range(4):
                for i in range(1, NB): pending.append((XS0 + w*NB + i, u))
            donated = True
        for i in range(4):
            s, t = i // 2, i % 2
            now = u + i/4.0
            tile = 2*H + t
            txt, (kind, r) = xreg(m6, pos, ks, s)
            if kind == "v":
                p.pad(max(p.last_valu.get(x, -99) for x in range(r, r+4)), 2)
            a0 = WB + (u & 1)*16 + i*4
            acc = f"v[{ACC+16*tile}:{ACC+16*tile+15}]"
            cin = f"v[{BC+16*t}:{BC+16*t+15}]" if (first and s == 0) else acc
            A(f"v_mfma_f32_32x32x16_bf16 {acc}, a[{a0}:{a0+3}], {txt}, {cin}")
            p.last_mfma[tile] = p.icount
            p.used = 0
            if i == 3: p.tokens.add(("udone", u))
            if need_bar and P.BIN and i == 0:
                do_bar(); p.used += 2
            gates()
            if plan is not None:
                if plan == "w": w_go()
                else: p.run(plan)
                plan = None
            if u + 1 < NU:
                td = [int(c) for c in str(P.TDB if (need_bar and P.BIN) else P.TD).zfill(4)]
                for k in range(sum(td[:i]), sum(td[:i+1])): w_rd(u+1, k // 2, k % 2)
            bud = P.BUD - (1 if i == 3 else 0)
            third = False
            if i == 0:
                o = p.pick(now + 0.25, "vmem")
                dls = ([o.dl] if o is not None else []) + ([st["next_w"] - P.GB - P.WDL] if w_can() else [])
                third = bool(dls) and min(dls) - u < P.SL3
            if m6 and P.M6V and i == 0 and u < UL: third = True
            if i in (1, 2) or third:
                nxt = now + 0.25
                la = st["next_w"] - u
                o = p.pick(nxt, "vmemh")
                urgent = p.pick(now, "crit") is not None
                if o is None:
                    o = p.pick(nxt, "vmem")
                    if w_can():
                        wdl = st["next_w"] - P.GB - P.WDL
                        if o is not None:
                            if wdl < o.dl: o = "w"
                        elif la < P.MINLA: o = "w"
                        elif not urgent:
                            backlog = p.pick(now, "valu") is not None or p.pick(now, "lds") is not None
                            if not (backlog and la >= P.HILA and i == 2): o = "w"
                plan = o
                bud -= 1 if (o == "w" or (o is not None and o.pre)) else 0
            nl = 0
            while True:
                rem = bud - p.used
                if P.LP:
                    o = p.pick(now, "lds")
                    if o is not None and o.name[:2] in ("x0", "bc") and rem + 1 >= 1 and nl < 2:
                        p.run(o); nl += 1; continue
                o = p.pick(now, "crit")
                if o is not None and rem + P.CRITX >= 1:
                    p.run(o); continue
                got = False
                for kind_ in ("chk", "lds", "valu"):
                    o = p.pick(now, kind_)
                    if o is not None and rem >= 1 and o.cost <= rem + 2:
                        p.run(o); got = True; break
                if not got: break
            if m6 and P.M6V and i == 3 and u < UL:
                o = p.pick(now + 0.25, "vmem")
                if o is not None: p.run(o)
                elif w_can(): w_dma()
            if plan == "w": w_pre()
            elif plan is not None and plan.pre:
                plan.pre(); plan.predone = True
    st["now"] = NU
    p.stamp("end")
    for o in p.ops:
        if not o.done and P.STOP == 999: p.run(o)
    p.stamp("flush")
    if P.stamps:
        A("s_waitcnt vmcnt(0)")
        p.stamp("drain")
        while p.nstamp < NSTAMP:
            e.A(f"v_writelane_b32 v{vST}, s{sSTM}, {p.nstamp}"); p.nstamp += 1
        stamp_store(e)
    if P.dbg and not m6:
        A("s_waitcnt vmcnt(0)")
        A("s_memtime s[40:41]"); A("s_memrealtime s[42:43]"); A("s_waitcnt lgkmcnt(0)")
        A("s_sub_u32 s40, s40, s96"); A("s_sub_u32 s42, s42, s100")
        A("s_and_b32 s44, s2, 0xf8"); A(f"s_or_b32 s44, s44, s{sWV}"); A("s_cmp_lg_u32 s44, 0"); A("s_cbranch_scc1 L_end")
        A("s_lshl_b32 s44, s2, 3")
        A("v_mov_b32 v2, s40"); A("v_mov_b32 v3, s42"); A("v_mov_b32 v4, s44")
        A("global_store_dwordx2 v4, v[2:3], s[98:99]")
    A("s_endpgm")
    for x in ool: e.A(x)
    for H in halves:
        e.A(f"L_{tag}_cap{H}:")
        if H == 0 and not m6:
            e.A("s_cmp_lg_u32 s44, 0"); e.A(f"s_cbranch_scc1 L_{tag}_cap1")
        for ch in range(8):
            e.A(f"v_xor_b32 v2, {ch}, v{vZ}"); e.A("v_lshl_add_u32 v2, v2, 4, v3")
            if P.SCAP: e.A(f"ds_read_b64 v[{X0F+32*H+16+2*ch}:{X0F+32*H+17+2*ch}], v2")
            else: e.A(f"ds_read_b64 v[{Y+2*ch}:{Y+2*ch+1}], v2")
        for q in range(0 if P.SCAP else 16):
            if q % 2 == 0: e.A(f"s_waitcnt lgkmcnt({7 - q//2})")
            e.A(f"v_lshlrev_b32 v{X0F+32*H+2*q}, 16, v{Y+q}")
            e.A(f"v_and_b32 v{X0F+32*H+2*q+1}, 0xffff0000, v{Y+q}")
        e.A(f"s_setpc_b64 s[{sRET}:{sRET+1}]")
    return e.text(), p.names

def stamp_store(e):
    A = e.A
    A(f"s_cmp_lg_u32 s{sWV}, 0"); A("s_cbranch_scc1 L_end")
    A("v_mbcnt_lo_u32_b32 v2, -1, 0"); A("v_mbcnt_hi_u32_b32 v2, -1, v2")
    A("v_lshlrev_b32 v2, 2, v2"); A("s_lshl_b32 s44, s2, 8")
    A(f"buffer_store_dword v{vST}, v2, s[24:27], s44 offen")

def gen_helper():
    e = Em(); A = e.A
    A("L_helper:")
    A("s_waitcnt lgkmcnt(0)")
    A("s_mov_b32 s20, s4"); A("s_mov_b32 s21, s5"); A("s_mov_b32 s16, s6"); A("s_mov_b32 s17, s7")
    A("s_mov_b32 s24, s14"); A("s_mov_b32 s25, s15"); A(f"s_mov_b32 s26, {WS_BYTES}"); A("s_mov_b32 s27, 0x20000")
    if P.WB2:
        A(f"s_lshl_b32 s43, s{sC}, 2"); A(f"s_add_u32 s43, s43, s{sWV}"); A("s_lshl_b32 s43, s43, 7"); A(f"s_add_u32 s43, s43, {FLAG_BASE + 3*16384}")
        A("v_and_b32 v12, 7, v1"); A("v_lshl_add_u32 v12, v12, 3, s43")
        A("buffer_load_dwordx2 v[14:15], v12, s[24:27], 0 offen sc1")
    n = [0]
    def stamp():
        if P.stamps:
            A(f"s_mem{'real' if P.rt else ''}time s[{sSTM}:{sSTM+1}]"); A("s_waitcnt lgkmcnt(0)")
            A(f"v_writelane_b32 v{vST}, s{sSTM}, {n[0]}"); n[0] += 1
    stamp()
    def item_loop(name, first, last, stride, start_expr, depth):
        for x in start_expr: A(x)
        A(f"s_add_u32 s50, s50, {first}")
        A(f"L_{name}:")
        A(f"s_cmp_ge_u32 s50, {last}"); A(f"s_cbranch_scc1 L_{name}_done")
        A("s_mul_i32 s51, s50, 5042"); A("s_lshr_b32 s51, s51, 16")
        A("s_mul_i32 s52, s51, 13"); A("s_sub_u32 s52, s50, s52")
        A("s_mul_i32 s53, s51, 5042"); A("s_lshr_b32 s53, s53, 16")
        A("s_mul_i32 s54, s53, 13"); A("s_sub_u32 s54, s51, s54")
        A("s_lshr_b32 s55, s52, 1")
        A("s_sub_u32 s56, s54, 1"); A("s_max_i32 s56, s56, 0")
        A("s_add_u32 s56, s56, s55")
        A("s_cmp_ge_u32 s56, 7"); A("s_cselect_b32 s57, 7, 0"); A("s_sub_u32 s56, s56, s57")
        A("s_lshl_b32 s56, s56, 1")
        A("s_sub_u32 s57, s54, 7"); A("s_max_i32 s57, s57, 0")
        A("s_cmp_eq_u32 s55, 6"); A("s_cselect_b32 s58, 0, s55")
        A("s_add_u32 s57, s57, s58")
        A("s_cmp_ge_u32 s57, 6"); A("s_cselect_b32 s58, 6, 0"); A("s_sub_u32 s57, s57, s58")
        A("s_lshl_b32 s57, s57, 1"); A("s_add_u32 s57, s57, 1")
        A("s_cmp_eq_u32 s54, 1"); A("s_cselect_b32 s56, s57, s56")
        A("s_cmp_ge_u32 s54, 8"); A("s_cselect_b32 s56, s57, s56")
        A(f"s_mul_i32 s56, s56, {BLKW}")
        A(f"s_mul_i32 s53, s53, {WLAYER}")
        A("s_lshl_b32 s52, s52, 7")
        A("s_add_u32 s40, s56, s53"); A("s_add_u32 s40, s40, s52")
        A("buffer_load_dword v8, v2, s[16:19], s40 offen" + (" nt" if (P.WNT == 2 or (P.WNT == 3 and name == "hp2")) else ""))
        A(f"s_waitcnt vmcnt({depth})")
        A(f"s_add_u32 s50, s50, {stride}")
        A(f"s_branch L_{name}")
        A(f"L_{name}_done:")
    if P.CPF:
        A("s_getpc_b64 s[40:41]")
        A("L_pc:")
        A(f"s_sub_u32 s40, s40, L_pc-{NAME}_kernel"); A("s_subb_u32 s41, s41, 0")
        A(f"s_lshl_b32 s42, s{sCQ}, 2"); A(f"s_add_u32 s42, s42, s{sWV}"); A("s_lshl_b32 s42, s42, 13")
        A(f"s_cmp_ge_u32 s42, L_pc-{NAME}_kernel"); A("s_cbranch_scc1 L_cpf_done")
        A("v_lshl_add_u32 v3, v1, 7, s42")
        A(f"v_min_u32 v3, L_pc-{NAME}_kernel, v3")
        A("global_load_dword v9, v3, s[40:41]")
        A("L_cpf_done:")
    if P.helper:
        A("v_mul_u32_u24 v2, 1664, v1")
        if P.HX0:
            if P.HW: A("s_waitcnt vmcnt(0)")
            if P.OT: order.emit_table(A, sT0X, sJ, sCQ, sX2, 40, 41, 42, 43, helper=True)
            A(f"s_and_b32 s44, s{sWV}, 1"); A(f"s_lshl_b32 s45, s{sC}, 1"); A("s_add_u32 s44, s44, s45")
            A(f"s_mul_i32 s44, s44, {64*ROWB}")
            nb_ = 13 - P.NA
            for r in range((nb_ + 1) // 2):
                A(f"s_cmp_ge_u32 s{sWV}, 2")
                A(f"s_cselect_b32 s45, s{sT0X+min(2*r+1, nb_-1)}, s{sT0X+2*r}")
                A("s_add_u32 s40, s44, s45")
                A("buffer_load_dword v8, v2, s[20:23], s40 offen" + (" nt" if P.XNT else ""))
        if P.HP1:
            item_loop("hp1", 13*P.H0, 507, 128, [f"s_lshl_b32 s50, s{sC}, 2", f"s_add_u32 s50, s50, s{sWV}"], 1)
        if P.stamps: A("s_waitcnt vmcnt(0)")
        stamp()
        item_loop("hp2", 13*P.H2, 507, 16, [f"s_lshl_b32 s50, s{sCQ}, 2", f"s_add_u32 s50, s50, s{sWV}"], 1)
        A("s_waitcnt vmcnt(0)")
        if P.WB2:
            A("v_readfirstlane_b32 s48, v14"); A("v_readfirstlane_b32 s49, v15"); A("s_nop 3")
            A("s_or_b32 s48, s48, 1"); A("s_add_u32 s48, s48, 2"); A("s_add_u32 s49, s49, 1")
            A("s_mov_b32 s46, 0x400")
            A("L_hw:")
            A("buffer_load_dwordx2 v[14:15], v12, s[24:27], 0 offen sc1"); A("s_waitcnt vmcnt(0)")
            A("v_cmp_eq_u64 vcc, s[48:49], v[14:15]"); A("s_nop 1")
            A("s_and_b32 s44, vcc_lo, 0x3f"); A("s_cmp_eq_u32 s44, 0x3f"); A("s_cbranch_scc1 L_hw_ok")
            A("s_sleep 4"); A("s_sub_u32 s46, s46, 1"); A("s_cbranch_scc0 L_hw")
            A("L_hw_ok:")
            A("s_barrier")
            A(f"s_cmp_lg_u32 s{sWV}, 0"); A("s_cbranch_scc1 L_hw_end")
            if P.WB2 == 2:
                A(f"s_cmp_lg_u32 s{sCQ}, 3"); A("s_cbranch_scc1 L_hw_end")
            A("buffer_wbl2 sc1"); A("s_waitcnt vmcnt(0)")
            A("L_hw_end:")
    stamp()
    if P.stamps:
        while n[0] < NSTAMP:
            A(f"v_writelane_b32 v{vST}, s{sSTM}, {n[0]}"); n[0] += 1
        stamp_store(e)
    A("s_endpgm")
    return e.text()

def main():
    out = sys.argv[1]
    for a in sys.argv[2:]:
        a = a.lstrip("-")
        if "=" in a:
            k, v = a.split("="); assert hasattr(P, k), k; setattr(P, k, type(getattr(P, k))(int(v)))
        else:
            assert hasattr(P, a), a; setattr(P, a, True)
    order.select(P.NA)
    k = NAME + "_kernel"
    T = []
    A = T.append
    A('.amdgcn_target "amdgcn-amd-amdhsa--gfx950"')
    A(".text"); A(f".globl {k}"); A(".p2align 8"); A(f".type {k},@function"); A(f"{k}:")
    NB = P.NB; XS0 = NPAGES - 4*NB
    A("s_load_dwordx8 s[4:11], s[0:1], 0")
    A("s_load_dwordx2 s[14:15], s[0:1], 40")
    if P.stamps: A(f"s_mem{'real' if P.rt else ''}time s[96:97]")
    if P.dbg:
        A("s_load_dwordx2 s[98:99], s[0:1], 32"); A("s_memtime s[96:97]"); A("s_memrealtime s[100:101]")
    A("s_cmp_ge_u32 s2, 256"); A("s_cbranch_scc1 L_end")
    A("v_lshrrev_b32 v2, 6, v0"); A("v_and_b32 v1, 63, v0")
    A("s_and_b32 s44, s2, 7")
    A(f"v_readfirstlane_b32 s{sWV}, v2")
    A(f"s_lshr_b32 s{sCQ}, s2, 6")
    A(f"s_bfe_u32 s{sJ}, s2, 0x30003")
    A(f"s_lshl_b32 s{sC}, s{sCQ}, 3"); A(f"s_add_u32 s{sC}, s{sC}, s44")
    A(f"s_lshl_b32 s{sX2}, s44, 1" if P.XSH else f"s_mov_b32 s{sX2}, 0")
    if P.NA == 7:
        A(f"s_lshl_b32 s45, s{sCQ}, 1"); A(f"s_add_u32 s45, s45, s{sJ}"); A("s_sub_u32 s46, s45, 7"); A("s_min_u32 s45, s45, s46")
    else:
        A(f"s_lshr_b32 s45, s{sJ}, 1"); A(f"s_add_u32 s45, s45, s{sCQ}"); A("s_and_b32 s45, s45, 3")
    A("s_lshl_b32 s45, s45, 1"); A(f"s_add_u32 s45, s45, s{sX2}")
    A("s_sub_u32 s46, s45, 13"); A("s_min_u32 s45, s45, s46"); A("s_sub_u32 s46, s45, 13"); A("s_min_u32 s45, s45, s46")
    A(f"s_lshl_b32 s{sT0X}, s45, 7")
    A(f"s_mov_b32 s18, {3*WLAYER}"); A("s_mov_b32 s19, 0x20000"); A(f"s_mov_b32 s22, {4096*ROWB}"); A("s_mov_b32 s23, 0x20000")
    A(f"s_cmp_eq_u32 s{sJ}, 7"); A("s_cbranch_scc1 L_helper")
    A(f"s_lshl_b32 s43, s{sC}, 2"); A(f"s_add_u32 s43, s43, s{sWV}"); A(f"s_mul_i32 s46, s43, {32*ROWB}")
    A("v_lshrrev_b32 v2, 3, v1"); A("v_and_b32 v3, 7, v1"); A("v_lshrrev_b32 v4, 4, v1")
    A("v_mul_u32_u24 v6, 1664, v2"); A("v_add_u32 v6, s46, v6")
    A("v_xor_b32 v7, v4, v3"); A(f"v_lshl_add_u32 v{vXS}, v7, 4, v6")
    A("v_xor_b32 v7, 4, v7"); A(f"v_lshl_add_u32 v{vXS+1}, v7, 4, v6"); A(f"v_add_u32 v{vXS+1}, {8*ROWB - 1024}, v{vXS+1}")
    A(f"v_add_u32 v{vXS+2}, {16*ROWB - 2048}, v{vXS}"); A(f"v_add_u32 v{vXS+3}, {16*ROWB - 2048}, v{vXS+1}")
    A(f"s_mul_i32 s{sXS}, s{sWV}, {NB*PAGE}"); A(f"s_add_u32 s{sXS}, s{sXS}, {XS0*PAGE}")
    A(f"s_lshl_b32 s{sOWN+10}, s{sJ}, 8")
    A(f"s_lshl_b32 s{sW1K}, s{sWV}, 10")
    A("v_and_b32 v5, 1, v4"); A("v_lshlrev_b32 v5, 2, v5"); A("v_xor_b32 v5, v5, v3")
    A("v_lshl_add_u32 v5, v5, 4, s44")
    A(f"s_lshr_b32 s42, s{sWV}, 1"); A("s_lshl_b32 s42, s42, 4"); A(f"s_and_b32 s40, s{sWV}, 1"); A("s_lshl_b32 s48, s40, 2")
    A("s_add_u32 s42, s42, s48")
    A("v_lshrrev_b32 v7, 5, v1")
    A("v_and_b32 v6, 3, v2"); A("v_lshl_add_u32 v6, v7, 3, v6"); A("v_add_u32 v6, s42, v6")
    A("v_mul_u32_u24 v6, 1664, v6"); A(f"v_add_u32 v{vW}, v5, v6")
    A(f"v_add_u32 v{vW+1}, 128, v{vW}"); A(f"v_add_u32 v{vW+2}, {KSW}, v{vW}"); A(f"v_add_u32 v{vW+3}, {KSW+128}, v{vW}")
    A(f"v_mul_i32_i24 v{vDELTA}, 0xffffe600, v7"); A("s_mul_i32 s40, s40, 6656"); A(f"v_add_u32 v{vDELTA}, s40, v{vDELTA}")
    A(f"s_mul_i32 s42, s{sT0X}, 832")
    A(f"s_mov_b32 m0, s{sW1K}")
    A(f"s_min_u32 s45, s{sWV}, 2")
    A(f"s_mul_i32 s40, s45, {ROWB}"); A("s_add_u32 s40, s40, s44")
    A("v_lshlrev_b32 v6, 2, v1")
    A(f"s_mov_b32 s34, {3*ROWB}"); A("s_mov_b32 s35, 0x20000")
    if P.stamps: A(f"s_mem{'real' if P.rt else ''}time s[100:101]")
    A("s_waitcnt lgkmcnt(0)")
    if P.stamps: A(f"s_mem{'real' if P.rt else ''}time s[98:99]")
    A("s_mov_b32 s16, s6"); A("s_mov_b32 s17, s7"); A("s_mov_b32 s20, s4"); A("s_mov_b32 s21, s5")
    A(f"buffer_load_dwordx4 v{vW}, s[16:19], s42 offen lds")
    A(f"s_mov_b32 m0, s{sXS}"); A("s_mov_b32 s32, s8"); A("s_mov_b32 s33, s9")
    for sp in range(3):
        A(f"buffer_load_dwordx4 v{vXS+sp}, s[20:23], s{sT0X} offen offset:{1024*sp} lds")
    A(f"buffer_load_dword v{Y}, v6, s[32:35], s40 offen")
    for d, b_, size in ((24, 14, WS_BYTES), (28, 10, 4096*ROWB)):
        A(f"s_mov_b32 s{d}, s{b_}"); A(f"s_mov_b32 s{d+1}, s{b_+1}"); A(f"s_mov_b32 s{d+2}, {size}"); A(f"s_mov_b32 s{d+3}, 0x20000")
    if P.HE:
        A("s_lshl_b32 s40, s43, 7"); A(f"s_add_u32 s40, s40, {FLAG_BASE}")
        A("v_min_u32 v5, 5, v1"); A("v_lshl_add_u32 v5, v5, 14, s40")
        A(f"buffer_load_dwordx2 v[{Y+24}:{Y+25}], v5, s[24:27], 0 offen sc1")
    A(f"s_add_u32 s{sXL}, s14, {XREG0}"); A(f"s_addc_u32 s{sXL+1}, s15, 0"); A(f"s_mov_b32 s{sXL+2}, {XREG_STRIDE}"); A(f"s_mov_b32 s{sXL+3}, 0x20000")
    vals = [order.pack(r) for r in order.T]
    for w_, dst in ((0, 48), (1, 49)):
        A(f"s_mov_b32 s{dst}, {(vals[0] >> (32*w_)) & 0xffffffff:#x}")
    for c in range(1, 4):
        A(f"s_cmp_eq_u32 s{sCQ}, {c}")
        for w_, dst in ((0, 48), (1, 49)):
            A(f"s_cselect_b32 s{dst}, {(vals[c] >> (32*w_)) & 0xffffffff:#x}, s{dst}")
    t = Y + 16
    A(f"v_lshlrev_b32 v{t}, 2, v1"); A(f"v_lshrrev_b64 v[{t}:{t+1}], v{t}, s[48:49]"); A(f"v_and_b32 v{t}, 15, v{t}")
    if P.NA == 7:
        A(f"v_add_u32 v{t+1}, s{sJ}, v{t}"); A(f"v_subrev_u32 v{t+2}, 7, v{t+1}"); A(f"v_min_u32 v{t+1}, v{t+1}, v{t+2}")
    else:
        A(f"s_lshr_b32 s40, s{sJ}, 1"); A(f"v_add_u32 v{t+1}, s40, v{t}"); A(f"v_and_b32 v{t+1}, 3, v{t+1}")
    A(f"v_cmp_gt_u32 vcc, {P.NA}, v{t}")
    A(f"s_cmp_eq_u32 s{sJ}, 6"); A(f"s_cselect_b32 s40, 0, s{sJ}")
    A(f"v_cndmask_b32 v{t}, v{t}, v{t+1}, vcc")
    A(f"v_lshl_add_u32 v{t}, v{t}, 1, s{sX2}")
    for _ in range(2):
        A(f"v_subrev_u32 v{t+1}, 13, v{t}"); A(f"v_min_u32 v{t}, v{t}, v{t+1}")
    A(f"v_lshlrev_b32 v{t}, 7, v{t}"); A(f"v_mul_u32_u24 v{t+1}, 832, v{t}")
    A(f"v_add_u32 v{t+2}, s{sJ}, v1"); A(f"v_subrev_u32 v{t+3}, 7, v{t+2}"); A(f"v_min_u32 v{t+2}, v{t+2}, v{t+3}"); A(f"v_lshlrev_b32 v{t+2}, 1, v{t+2}")
    A(f"v_add3_u32 v{t+3}, v1, s40, -7"); A(f"v_subrev_u32 v{t+4}, 6, v{t+3}"); A(f"v_min_u32 v{t+3}, v{t+3}, v{t+4}"); A(f"v_lshl_or_b32 v{t+3}, v{t+3}, 1, 1")
    A("v_cmp_gt_u32 vcc, 7, v1")
    for n in range(13): A(f"v_readlane_b32 s{sT0W+n}, v{t+1}, {n}")
    A(f"v_cndmask_b32 v{t+2}, v{t+3}, v{t+2}, vcc")
    A(f"v_mul_u32_u24 v{t+4}, {BLKW}, v{t+2}"); A(f"v_lshlrev_b32 v{t+5}, 12, v{t+2}")
    for n in range(1, 13): A(f"v_readlane_b32 s{sT0X+n}, v{t}, {n}")
    A(f"buffer_load_dwordx4 v{vXS+3}, s[20:23], s{sT0X} offen offset:3072 lds")
    A(f"s_add_u32 m0, s{sW1K}, {PAGE}"); A("s_nop 0")
    A(f"buffer_load_dwordx4 v{vW+2}, s[16:19], s42 offen lds")
    A("s_lshl_b32 s45, s45, 9"); A(f"s_add_u32 s45, s45, {MISC}")
    A(f"v_lshl_add_u32 v{Y+4}, v1, 3, s45")
    A(f"s_mov_b32 s{sOWN}, s44")
    A("s_lshl_b32 s44, s43, 7"); A(f"s_add_u32 s44, s44, {FLAG_BASE}")
    A(f"v_lshl_add_u32 v{vFLAG}, v3, 3, s44")
    A(f"v_lshlrev_b32 v{vBIAS}, 4, v7"); A(f"v_add_u32 v{vBIAS}, {MISC}, v{vBIAS}")
    A(f"s_lshl_b32 s45, s{sJ}, 3"); A("s_add_u32 s45, s45, s44")
    A("v_mov_b32 v5, 0x80000000"); A("v_mov_b32 v6, s45")
    A("v_cmp_eq_u32 vcc, 0, v1")
    A(f"v_lshl_add_u32 v{vXL}, v1, 4, s46")
    A("v_and_b32 v2, 31, v1")
    A(f"v_cndmask_b32 v{vFST}, v5, v6, vcc")
    A(f"s_add_u32 s42, s42, 128"); A(f"s_cmp_eq_u32 s{sJ}, 6"); A(f"s_cselect_b32 s42, s{sT0W+1}, s42")
    for v in (2, 3):
        A(f"s_add_u32 m0, s{sW1K}, {v*PAGE}"); A("s_nop 0")
        A(f"buffer_load_dwordx4 v{vW+2*(v-2)}, s[16:19], s42 offen lds")
    A(f"v_bfe_u32 v{vZ}, v1, 1, 3"); A(f"v_lshl_add_u32 v2, v2, 7, s{sXS}")
    for s4 in range(4):
        A(f"v_add_u32 v6, {2*s4}, v7"); A(f"v_xor_b32 v6, v6, v{vZ}"); A(f"v_lshl_add_u32 v{vXR+s4}, v6, 4, v2")
    A(f"v_lshl_add_u32 v{vCB}, v7, 3, v2")
    A(f"s_add_u32 m0, s{sXS}, {PAGE}")
    A("v_bfe_u32 v3, v1, 2, 2")
    for sp in range(2): A(f"buffer_load_dwordx4 v{vXS+sp}, s[20:23], s{sT0X+1} offen offset:{1024*sp} lds")
    A("v_lshl_add_u32 v4, v7, 2, v3"); A("v_lshlrev_b32 v4, 7, v4")
    A("v_bfe_u32 v6, v1, 4, 1"); A("v_lshl_add_u32 v4, v6, 5, v4")
    A("v_and_b32 v6, 3, v1"); A("v_lshl_add_u32 v4, v6, 3, v4")
    A("v_lshrrev_b32 v3, 1, v3")
    for sp in range(2, 4): A(f"buffer_load_dwordx4 v{vXS+sp}, s[20:23], s{sT0X+1} offen offset:{1024*sp} lds")
    for t_ in range(2):
        A(f"v_xor_b32 v6, {t_}, v3"); A(f"v_lshl_add_u32 v{vTR+t_}, v6, 6, v4")
        A(f"v_add_u32 v{vTR+2+t_}, 0x10000, v{vTR+t_}"); A(f"v_add_u32 v{vTR+4+t_}, 0x20000, v{vTR+t_}")
    if not P.HE:
        A("v_min_u32 v5, 5, v1"); A("v_lshl_add_u32 v5, v5, 14, s44")
    A(f"s_cmp_eq_u32 s{sWV}, 0"); A("s_cselect_b32 s45, 1.0, 0")
    A(f"s_getreg_b32 s{sHEL}, hwreg(HW_REG_XCC_ID, 0, 4)")
    A(f"s_mov_b32 s{sBASE}, s46")
    A("s_mov_b32 s46, 0x40000")
    if not P.HE: A(f"buffer_load_dwordx2 v[{Y+24}:{Y+25}], v5, s[24:27], 0 offen sc1")
    A(f"s_cmp_eq_u32 s{sJ}, 6"); A("s_cbranch_scc1 L_m6")
    t1, n1 = gen_member(False)
    t2, n2 = gen_member(True)
    T.append(t1); T.append(t2)
    T.append(gen_helper())
    A("L_end:"); A("s_endpgm")
    A('.section .rodata,"a"'); A(".p2align 6")
    A(f""".amdhsa_kernel {k}
  .amdhsa_next_free_vgpr 488
  .amdhsa_next_free_sgpr 102
  .amdhsa_accum_offset 256
  .amdhsa_group_segment_fixed_size 0
  .amdhsa_kernarg_size 48
  .amdhsa_user_sgpr_count 2
  .amdhsa_user_sgpr_kernarg_segment_ptr 1
  .amdhsa_system_sgpr_workgroup_id_x 1
  .amdhsa_float_denorm_mode_32 3
.end_amdhsa_kernel
""")
    H = [f"; @launch grid=(256,1,1) block=(256,1,1) lds={LDS_BYTES}"]
    if P.stamps:
        H.append("; @st32" + (" @rt" if P.rt else ""))
        H.append("; @names_reg " + " ".join(x.replace(" ", "") for x in n1))
        H.append("; @names_m6 " + " ".join(x.replace(" ", "") for x in n2))
    open(out, "w").write("\n".join(H + T))

main()
```

```python
B = lambda k: 7 + k
T = [
    [0, 1, 2, 4, 6, B(1), 3, 5, B(0), B(5), B(2), B(3), B(4)],
    [2, 4, 3, 6, 0, 1, B(2), 5, B(0), B(1), B(3), B(4), B(5)],
    [4, 6, 0, 5, 2, 1, 3, B(3), B(0), B(1), B(2), B(4), B(5)],
    [6, 0, 2, 4, B(0), 1, 3, 5, B(4), B(1), B(2), B(3), B(5)],
]
T7 = T
C = lambda k: 4 + k
T4 = [
    [0, 1, 2, 3, C(0), C(4), C(1), C(2), C(3), C(8), C(5), C(6), C(7)],
    [1, 2, 3, 0, C(1), C(0), C(5), C(2), C(3), C(4), C(6), C(7), C(8)],
    [2, 3, 0, 1, C(2), C(0), C(1), C(6), C(3), C(4), C(5), C(7), C(8)],
    [3, 0, 1, 2, C(3), C(0), C(1), C(2), C(7), C(4), C(5), C(6), C(8)],
]
NA = 7
def select(na):
    global T, NA
    NA = na
    T = T7 if na == 7 else T4
for t in T7 + T4: assert sorted(t) == list(range(13))
def pack(vals):
    x = 0
    for i, v in enumerate(vals): x |= v << (4*i)
    return x
def emit_table(A, sT0X, sJ, sCQ, sBASE2, t0, t1, t2, t3, helper=False, first=0):
    rows = [[v for v in t if v >= NA] for t in T] if helper else T
    n_ent = len(rows[0])
    for w, dst in ((0, t0), (1, t1)):
        vals = [(pack(r) >> (32*w)) & 0xffffffff for r in rows]
        if w == 1 and n_ent <= 8: continue
        A(f"s_mov_b32 s{dst}, {vals[0]:#x}")
        for c in range(1, 4):
            A(f"s_cmp_eq_u32 s{sCQ}, {c}"); A(f"s_cselect_b32 s{dst}, {vals[c]:#x}, s{dst}")
    for n in range(first, n_ent):
        src = t0 if n < 8 else t1
        A(f"s_bfe_u32 s{t2}, s{src}, {(4 << 16) | (4*(n % 8)):#x}")
        if not helper:
            A(f"s_add_u32 s{t3}, s{t2}, s{sJ}"); A(f"s_sub_u32 s{sT0X+n}, s{t3}, 7"); A(f"s_min_u32 s{t3}, s{t3}, s{sT0X+n}")
            A(f"s_cmp_lt_u32 s{t2}, 7"); A(f"s_cselect_b32 s{t2}, s{t3}, s{t2}")
        A(f"s_lshl_b32 s{t2}, s{t2}, 1"); A(f"s_add_u32 s{t2}, s{t2}, s{sBASE2}")
        A(f"s_sub_u32 s{t3}, s{t2}, 13"); A(f"s_min_u32 s{t2}, s{t2}, s{t3}")
        A(f"s_sub_u32 s{t3}, s{t2}, 13"); A(f"s_min_u32 s{t2}, s{t2}, s{t3}")
        A(f"s_lshl_b32 s{sT0X+n}, s{t2}, 7")

TS = [
    [0, 1, 5, 2, 3, 4, 10, 7, 6, 8, 9, 11, 12],
    [0, 2, 1, 6, 3, 4, 5, 7, 11, 8, 9, 10, 12],
    [0, 3, 1, 2, 8, 4, 5, 7, 6, 12, 9, 10, 11],
    [0, 4, 1, 2, 3, 9, 5, 7, 6, 8, 10, 11, 12],
]
for t in TS: assert sorted(t) == list(range(13)) and t[0] == 0 and t[7] == 7
HS = []
for t in TS:
    seq = []
    for c in t:
        if c >= 8:
            for i in (c - 8, c - 7):
                if i not in seq: seq.append(i)
        elif c == 7:
            seq += [i for i in range(6) if i not in seq]
    HS.append(seq)
```

```python
import sys
from emit import Em
import order

NAME = "standalone__cross_network_dcn__recsys"
ROWB = 1664
WLAYER = 832 * ROWB
BLKW = 64 * ROWB
KSW = 32 * ROWB
PAGE = 4096
NPAGES = 39
MISC = NPAGES * PAGE
LDS_BYTES = 163840
FLAG_BASE = 8 << 20
XREG0 = 16 << 20
XREG_STRIDE = 8 << 20
WS_BYTES = 32 << 20
ACC, X0F, PX, Y, BC = 32, 96, 160, 192, 224
vFL = 0
vST = 5
vNON = 6
vW = 8
vXS = 12
vXR = 16
vTR = 20
vXL, vZ, vCB, vBIAS, vFLAG, vFST = 26, 27, 28, 29, 30, 31
vDELTA = Y + 31
vOR = vXR
WB = 192
sRET = 0
sT0W = 3
sMODE, sHEL, sOWN, sBASE = 32, 33, 34, 35
sJ, sC, sWV, sCQ = 36, 37, 38, 39
sW1K, sXS = 41, 47
sNON = 48
sBW, sBX = 50, 63
sXL = 76
sT0X = 80
sSTM = 94
sX2 = 93
NSTAMP = 32

class P:
    stamps = False; rt = False
    GB = 6; NB = 3; YP = 6; ORD = 2
    BUD = 5; CRITX = 1
    MINLA = 10; HILA = 40
    XLAT = 4; ACK = 4
    POLL_E0 = 53; POLL_L0 = 17; ORD0 = 0; POLL_E = 48; POLL_L = 14; POLLW = 3
    helper = True; touch = True; fast = True
    XSH = 1; HX0 = True; HELLO = 20
    HP1 = False; H2 = 13; H0 = 13
    PREW = 8; PREX = 2; L0B = 4; WDL = 2; SL3 = 5; XF = 0; SF = 0; T0 = 0; ACK0 = 8; TW = 5; CONS = 28; XNT = 0; WNT = 0; OT = 2; VW = 20; LSD = 0; YP1 = 6; T3 = 0; UW = 0; HD = 1; DEF = 0; HE = 1; OA = 1; BIN = 1; TDB = 2330; STOP = 999; NA = 4; WARM = 0; M6V = 1; SCAP = 1; LP = 1; O7 = 1; WB2 = 0; HW = 0; TBAT = 8; OD = 1; OF1 = 1; STU = 999; STN = 1; TD = 3320; VC10 = 35; MS = 1; CPF = True; OF = 1; dbg = False
    VC = 4
    fine = False

DEFER = []

class Multi(tuple):
    def __new__(cls, a, b):
        o = super().__new__(cls, a); o.b = b; return o
    def __eq__(self, other):
        return tuple(self) == tuple(other) or self.b == tuple(other)
    def __hash__(self):
        return hash(tuple(self))

class Op:
    def __init__(self, kind, fn, req=(), give=(), at=0.0, cost=1, pre=None, name=""):
        self.kind, self.fn, self.req, self.give, self.at, self.cost, self.pre = kind, fn, set(req), set(give), at, cost, pre
        self.done = False; self.name = name; self.predone = False

class Prog:
    def __init__(self, m6, tag):
        self.m6 = m6; self.tag = tag
        self.e = Em(); self.ops = []; self.tokens = set()
        self.icount = 0; self.used = 0
        self.last_mfma = {}; self.last_valu = {}
        self.nstamp = 0; self.names = []; self.st = None
    def A(self, s):
        self.e.A(s); self.icount += 1; self.used += 1
    def vmem(self, s, tag=None):
        self.e.vmem(s, tag); self.icount += 1; self.used += P.VC10/10.0
    def lds(self, s, tag=None):
        self.e.lds(s, tag); self.icount += 1; self.used += 1
        if self.st is not None and self.st.get("capm") is not None:
            self.e.lg[-1] = Multi(tag, ("capm", self.st["capm"])); self.st["capm"] = None
    def wait(self, vm=None, lg=None):
        if self.e.wait(vm, lg): self.icount += 1; self.used += 1
    def pad(self, since, need):
        n = need - (self.icount - since)
        while n > 0:
            k = min(n, 16)
            self.e.A(f"s_nop {k-1}"); self.icount += k; self.used += k; n -= k
    def valu(self, s, writes=(), acc_tile=None):
        if acc_tile is not None and acc_tile in self.last_mfma:
            self.pad(self.last_mfma[acc_tile], 12)
        self.A(s)
        for r in writes: self.last_valu[r] = self.icount
    def stamp(self, name):
        if P.stamps and self.nstamp < NSTAMP:
            i = self.nstamp; self.nstamp += 1; self.names.append(name)
            self.e.A(f"s_mem{'real' if P.rt else ''}time s[{sSTM}:{sSTM+1}]")
            self.e.wait_lg_all()
            self.e.A(f"v_writelane_b32 v{vST}, s{sSTM}, {i}")
            self.icount += 3
    def add(self, *a, **k):
        o = Op(*a, **k); self.ops.append(o); return o
    def run(self, o):
        assert not o.done
        for t in o.req: self.ensure(t)
        if o.pre and not o.predone:
            o.pre(); self.A("s_nop 0")
        o.done = True
        o.fn()
        self.tokens |= o.give
    def ensure(self, tok):
        if tok in self.tokens: return
        cand = [o for o in self.ops if tok in o.give and not o.done]
        assert cand, f"no producer for {tok}"
        self.run(cand[0])
    def pick(self, now, kind):
        for o in self.ops:
            if not o.done and o.kind == kind and o.at <= now and o.req <= self.tokens:
                return o
        return None

def xreg(m6, pos, ks, s):
    o = 8*ks + 4*s
    if pos == 0:
        r = PX + o; return f"v[{r}:{r+3}]", ("v", r)
    if pos == 7 and not m6:
        r = PX + 16 + o; return f"v[{r}:{r+3}]", ("v", r)
    idx = pos - 1 if (m6 or pos < 7) else pos - 2
    r = 16*idx + o
    return f"a[{r}:{r+3}]", ("a", r)

def unit_list(m6):
    U = []
    for l in range(3):
        L = []
        B = lambda pos, H: [(l, pos, 0, H), (l, pos, 1, H)]
        if m6:
            for pos in range(13): L += B(pos, 0)
        elif l == 0:
            for pos in range(P.L0B): L += B(pos, 0) + B(pos, 1)
            for pos in range(P.L0B, 13): L += B(pos, 0)
            for pos in range(P.L0B, 13): L += B(pos, 1)
        else:
            ORD = P.ORD0 if l == 1 else P.ORD
            L += B(0, 0)
            for pos in range(1, 1 + ORD): L += B(pos, 0)
            L += (B(7, 0) + B(0, 1) + B(7, 1)) if P.O7 else (B(0, 1) + B(7, 0) + B(7, 1))
            e1 = []
            for pos in range(1, 7): e1 += B(pos, 1)
            for pos in range(1 + ORD, 7): L += B(pos, 0)
            YP = P.YP1 if l == 1 else P.YP
            L += e1[:YP]
            for pos in range(8, 13): L += B(pos, 0)
            L += e1[YP:]
            for pos in range(8, 13): L += B(pos, 1)
        U += L
    return U

def tables(p):
    A = p.A
    for q in range(7):
        A(f"s_add_u32 s40, s{sJ}, {q}")
        A("s_sub_u32 s42, s40, 7"); A("s_min_u32 s40, s40, s42")
        A(f"s_mul_i32 s{sBW+q}, s40, {2*BLKW}")
        A(f"s_lshl_b32 s{sBX+q}, s40, 13")
    for q in range(6):
        if p.m6:
            A(f"s_mov_b32 s{sBW+7+q}, {(2*q+1)*BLKW}")
            A(f"s_mov_b32 s{sBX+7+q}, {(2*q+1)*4096}")
        else:
            A(f"s_add_u32 s40, s{sJ}, {q}")
            A("s_sub_u32 s42, s40, 6"); A("s_min_u32 s40, s40, s42")
            A("s_lshl_b32 s40, s40, 1"); A("s_or_b32 s40, s40, 1")
            A(f"s_mul_i32 s{sBW+7+q}, s40, {BLKW}")
            A(f"s_lshl_b32 s{sBX+7+q}, s40, 12")

def gen_member(m6):
    tag = "m6" if m6 else "mr"
    p = Prog(m6, tag); A = p.A; e = p.e
    U = unit_list(m6); NU = len(U); UL = NU // 3
    NB = P.NB
    XS0 = NPAGES - 4*NB
    halves = (0,) if m6 else (0, 1)
    own_pos = {0: 0, 1: 7}
    ool = []
    e.A(f"L_{tag}:")
    if P.stamps:
        p.nstamp = 3; p.names += ["start", "prew", "karg"]
    order0 = []
    for (l, pos, ks, H) in U[:UL]:
        if pos not in order0: order0.append(pos)
    n0 = {pos: n for n, pos in enumerate(order0)}
    free_pages = list(range(XS0))
    pending = []; page_of = {}
    st = {"next_w": 0, "landed": -1, "now": -1, "wl": 0}
    p.st = st
    def w_can():
        return st["next_w"] < min(NU, P.STOP*UL/52 + 8) and bool(free_pages)
    def w_pre():
        v = st["next_w"]
        l = U[v][0]
        if l != st["wl"]:
            st["wl"] = l
            p.ensure(("tab", 25))
            A(f"s_add_u32 s16, s16, {WLAYER}"); A("s_addc_u32 s17, s17, 0"); A(f"s_sub_u32 s18, s18, {WLAYER}")
            if l == 1:
                for i in range(4): A(f"v_add_u32 v{vW+i}, v{vDELTA}, v{vW+i}")
                p.tokens.add(("wswitch",))
        pg = free_pages.pop(0); page_of[v] = pg
        pending.append((pg, v))
        A(f"s_add_u32 m0, s{sW1K}, {pg*PAGE}")
        st["m0"] = ("w", v)
    def w_go():
        v = st["next_w"]
        l, pos, ks, H = U[v]
        so = sT0W + n0[pos] if l == 0 else sBW + pos
        p.vmem(f"buffer_load_dwordx4 v{vW+2*ks+H}, s[16:19], s{so} offen{' nt' if (P.WNT == 2 or (P.WNT == 1 and l == 0)) else ''} lds", ("w", v))
        st["next_w"] += 1
    def w_dma():
        assert w_can(), "no free page"
        w_pre(); A("s_nop 0"); w_go()
    def w_rd(v, i, u):
        s, t = i // 2, i % 2
        off = page_of[v]*PAGE + s*2048 + u*1024
        d = WB + (v & 1)*16 + i*4 + 2*u
        if off >> 16: p.ensure(("trr",))
        p.lds(f"ds_read_b64_tr_b16 a[{d}:{d+1}], v{vTR+2*(off >> 16)+t} offset:{off & 0xffff}", ("w", v, i))
    def x0_pre(n, sp):
        if P.MS:
            if st.get("m0") == ("x", n): return
            st["m0"] = ("x", n)
            A(f"s_add_u32 m0, s{sXS}, {(n % NB)*PAGE}")
        else:
            A(f"s_add_u32 m0, s{sXS}, {(n % NB)*PAGE + sp*1024}")
    def x0_go(n, sp):
        p.vmem(f"buffer_load_dwordx4 v{vXS+sp}, s[20:23], s{sT0X+n} offen{(' offset:%d' % (1024*sp)) if P.MS else ''}{' nt' if P.XNT else ''} lds", ("x0", n))
    for t_ in (("w", 0), ("x0", 0), ("x0", 0), ("x0", 0), ("bias",)) + ((("non",),) if P.HE else ()) + (("x0", 0), ("w", 1), ("w", 2), ("w", 3)) + (("x0", 1),)*4: e.vm.append(t_)
    for v in range(4):
        pg = free_pages.pop(0); page_of[v] = pg; pending.append((pg, v))
        assert pg == v and U[v][1:] == ((0, v, 0) if v < 2 else ((order0[1], v-2, 0) if m6 else (0, v-2, 1)))
    st["next_w"] = 4
    assert P.PREX >= 2
    if not P.HE: e.vm.append(("non",))
    if P.stamps:
        A("s_waitcnt lgkmcnt(0)"); A(f"v_writelane_b32 v{vST}, s96, 0"); A(f"v_writelane_b32 v{vST}, s100, 1"); A(f"v_writelane_b32 v{vST}, s98, 2")
    p.stamp("prebias")
    p.wait(vm=lambda t: t == ("bias",))
    A(f"v_lshlrev_b32 v{Y+2}, 16, v{Y}"); A(f"v_and_b32 v{Y+3}, 0xffff0000, v{Y}")
    A(f"v_add_f32 v{Y+2}, s45, v{Y+2}"); A(f"v_add_f32 v{Y+3}, s45, v{Y+3}")
    p.lds(f"ds_write_b64 v{Y+4}, v[{Y+2}:{Y+3}]", ("bw",))
    while st["next_w"] < P.PREW: w_dma()
    for n in range(2, P.PREX):
        for sp in range(4):
            x0_pre(n, sp)
            if sp == 0: A("s_nop 0")
            x0_go(n, sp)
    if P.WARM:
        A(f"v_mov_b32 v3, v{vCB}")
        for H in halves:
            A(f"s_movk_i32 s44, {128*H}")
            A(f"s_call_b64 s[{sRET}:{sRET+1}], L_{tag}_cap0")
        e.lg_done = len(e.lg)
    for q, ins in enumerate(DEFER):
        def f(ins=ins):
            for x in ins.split("|"): A(x)
        o = p.add("early", f, req=([("df", q-1)] if q else []),
                  give=[("df", q)] + ([("tab", 25)] if q == len(DEFER) - 1 else []) + ([("trr",)] if q == 15 else []), name="defer")
        if not P.DEF: p.run(o)

    first_use = {}; last_use = {}; last_unit = {}; first_unit = {}
    for v, (l, pos, ks, H) in enumerate(U):
        first_use.setdefault((l, pos), v); last_use[(l, pos)] = v; last_unit[(l, H)] = v; first_unit.setdefault((l, H), v)
    def f():
        p.wait(vm=lambda t: t == ("non",))
        A(f"v_readlane_b32 s{sNON}, v{Y+24}, 3"); A(f"v_readlane_b32 s{sNON+1}, v{Y+25}, 3")
        A("s_nop 3")
        A(f"s_or_b32 s{sNON}, s{sNON}, 1"); A(f"s_add_u32 s{sNON}, s{sNON}, 2"); A(f"s_add_u32 s{sNON+1}, s{sNON+1}, 1")
        A(f"s_add_u32 s{sHEL}, s{sHEL}, s{sNON+1}"); A(f"s_add_u32 s{sHEL}, s{sHEL}, 16")
        A(f"v_mov_b32 v{vNON}, s{sNON}"); A(f"v_mov_b32 v{vNON+1}, s{sHEL}")
        A(f"s_mov_b32 s44, {4*16384}")
        p.vmem(f"buffer_store_dwordx2 v[{vNON}:{vNON+1}], v{vFST}, s[24:27], s44 offen sc1", ("hello",))
        A("s_nop 0")
        A(f"v_mov_b32 v{vNON+1}, s{sNON+1}")
    o = p.add("vmemh", f, give=[("hello",)], at=0, name="hello")
    if P.HE: p.run(o)
    for n, pos in enumerate(order0):
        for sp in range(4):
            if n < P.PREX:
                p.tokens.add(("x0d", n, sp)); continue
            def pre(n=n, sp=sp):
                if n >= NB:
                    if st.get("capm") is not None:
                        e.wait_lg_all(); p.icount += 1; p.used += 1; st["capm"] = None
                    p.wait(lg=lambda t: (t[0] == "x" and t[1] == 0 and t[2] == order0[n-NB]) or t == ("capm", n-NB))
                x0_pre(n, sp)
            def f(n=n, sp=sp):
                x0_go(n, sp); st[("x0at", n)] = st["now"]
            p.add("vmem", f, pre=pre, req=([("x0rd", n-NB)] if n >= NB else []) + [("x0d", n, sp-1) if sp else ("x0d", n-1, 3)],
                  give=[("x0d", n, sp)], name=f"x0dma{n}").dl = first_use[(0, pos)] - P.XLAT - 1
        for s4 in range(4):
            def f(n=n, pos=pos, s4=s4):
                p.wait(vm=lambda t: t == ("x0", n))
                txt, _ = xreg(m6, pos, s4 // 2, s4 % 2)
                p.lds(f"ds_read_b128 {txt}, v{vXR+s4} offset:{(n % NB)*PAGE}", ("x", 0, pos, s4))
            give = [("x0f", n, s4)]
            if s4 == 3:
                give.append(("xi", 0, pos))
                if P.OT == 2: give.append(("x0rd", n))
            o = p.add("lds", f, req=[("x0d", n, 3)] + ([("x0f", n, s4-1)] if s4 else []), give=give, name=f"x0rd{n}")
            o.x0n = n
        def f(n=n):
            lab = f"L_{tag}_nc{n}"
            A(f"s_sub_u32 s44, s{sT0X+n}, s{sOWN}")
            A(f"s_cmp_le_u32 s44, {0 if m6 else 128}")
            A(f"s_cbranch_scc1 {lab}x")
            e.A(f"{lab}:")
            ool.extend([f"{lab}x:", f"v_add_u32 v3, {(n % NB)*PAGE}, v{vCB}", f"s_call_b64 s[{sRET}:{sRET+1}], L_{tag}_cap0", f"s_branch {lab}"])
            st["capm"] = n
        if P.OT != 2: p.add("chk", f, req=[("xi", 0, pos), ("hello",)] + ([("x0rd", n-1)] if n else []), give=[("x0rd", n)], cost=3, name="capchk")
    if P.OT == 2:
        assert order0 == list(range(13))
        for H in halves:
            k = 0
            for s4 in range(4):
                r = PX + 16*H + 4*s4
                ins = [f"v_permlane32_swap_b32 v{r}, v{r+2}", f"v_permlane32_swap_b32 v{r+1}, v{r+3}"]
                for q in range(4):
                    d = X0F + 32*H + 8*s4 + 2*q
                    ins += [f"v_lshlrev_b32 v{d}, 16, v{r+q}", f"v_and_b32 v{d+1}, 0xffff0000, v{r+q}"]
                for x in ins:
                    p.add("valu", lambda x=x: A(x), req=[("udone", last_use[(0, own_pos[H])])] + ([("cu", H, k-1)] if k else []),
                          give=[("cu", H, k)] + ([("capu", H, 31)] if k == 39 else []), name="capu").vdl = last_unit[(0, H)]
                    k += 1
    elif P.SCAP:
        for H in halves:
            for q in range(32):
                def f(q=q, H=H):
                    if q == 0 and H == 0:
                        e.wait_lg_all(); p.icount += 1; p.used += 1
                    B = X0F + 32*H
                    if q % 2 == 0: A(f"v_lshlrev_b32 v{B+q}, 16, v{B+16+q//2}")
                    else: A(f"v_and_b32 v{B+q}, 0xffff0000, v{B+16+q//2}")
                p.add("crit" if H == 0 else "valu", f, req=[("x0rd", 12)] + ([("capu", H, q-1)] if q else ([("capu", 0, 0)] if H else [])),
                      give=[("capu", H, q)], name="capu")
    def poll_load(off, key):
        A(f"s_mov_b32 s45, {off}")
        p.vmem(f"buffer_load_dwordx2 v[{vFL}:{vFL+1}], v{vFLAG}, s[24:27], s45 offen sc1", ("poll",) + key)
        st[("pollat",) + key] = st["now"]
    def poll_check(key, cmp_, mask):
        lab = f"L_{tag}_ok{key[0]}{key[1]}"; lp = f"L_{tag}_sp{key[0]}{key[1]}"
        if P.fine: p.stamp(f"chk{key}<")
        p.wait(vm=lambda t: t == ("poll",) + key)
        e.A(f"{lp}:")
        if cmp_ == "hello":
            A(f"v_subrev_u32 v2, s{sNON+1}, v{vFL+1}")
            A("v_lshrrev_b32 v2, 4, v2")
            A(f"v_xor_b32 v3, s{sNON}, v{vFL}")
            A("v_xor_b32 v2, 1, v2")
            A("v_or_b32 v2, v2, v3")
            A("v_cmp_eq_u32 vcc, 0, v2")
        else:
            A(cmp_)
        A("s_nop 1")
        A(f"s_and_b32 s44, vcc_lo, {mask}")
        A(f"s_cmp_eq_u32 s44, {mask}")
        A(f"s_cbranch_scc0 {lab}x")
        e.A(f"{lab}:")
        ool.extend([f"{lab}x:", "s_sleep 1", f"buffer_load_dwordx2 v[{vFL}:{vFL+1}], v{vFLAG}, s[24:27], s45 offen sc1",
                    "s_sub_u32 s46, s46, 1", "s_waitcnt vmcnt(0)", f"s_cbranch_scc0 {lp}", f"s_branch {lab}"])
        if P.fine: p.stamp(f"chk{key}>")
    p.add("vmemh", lambda: poll_load(4*16384, (9, 9)), req=[("hello",), ("tab", 25)], give=[("pi", 9, 9)], at=P.HELLO*UL/52.0, name="hpoll")
    def f():
        poll_check((9, 9), "hello", 0x7f)
        A(f"v_cmp_eq_u32 vcc, s{sHEL}, v{vFL+1}")
        A("s_nop 1")
        A("s_and_b32 s44, s44, vcc_lo")
        A("s_cmp_eq_u32 s44, 0x7f")
        A(f"s_cselect_b32 s{sMODE}, {1 if P.fast else 0}, 0")
        A(f"s_cselect_b32 s{sX2}, {0 if P.fast else XREG_STRIDE}, {XREG_STRIDE}")
    o = p.add("chk", f, req=[("pi", 9, 9)], give=[("mode",)], cost=3, name="hchk"); o.bh = (9, 9)

    def flag_store(idx, slow_touch):
        lab = f"L_{tag}_fl{idx}"
        A(f"s_mov_b32 s44, {idx*16384}")
        A(f"s_cmp_lg_u32 s{sMODE}, 0")
        A(f"s_cbranch_scc0 {lab}x")
        p.vmem(f"buffer_store_dwordx2 v[{vNON}:{vNON+1}], v{vFST}, s[24:27], s44 offen", ("fl", idx))
        e.A(f"{lab}j:")
        ool.extend([f"{lab}x:", f"buffer_store_dwordx2 v[{vNON}:{vNON+1}], v{vFST}, s[24:27], s44 offen sc1"])
        if slow_touch and P.touch:
            ool.extend([f"v_subrev_u32 v2, s{sBASE}, v{vXL}", "v_and_b32 v2, 0x1f0, v2", f"v_lshl_add_u32 v2, v2, 3, s{sBASE}",
                        f"s_add_u32 s40, s{sBX+own_pos[idx & 1]}, {XREG0 + XREG_STRIDE}",
                        "buffer_load_dword a224, v2, s[24:27], s40 offen sc1"])
        ool.append(f"s_branch {lab}j")
    def f():
        p.wait(vm=lambda t: t == ("x", 1, 6, 3))
        flag_store(5, False)
    p.add("vmemh", f, req=[("udone", first_use[(1, 6)])], give=[("cons",)], name="cons")
    p.add("vmemh", lambda: poll_load(5*16384, (8, 8)), req=[("cons",), ("ok", 0, 1)], give=[("pi", 8, 8)], at=UL + P.CONS*UL/52.0, name="cpoll")
    o = p.add("chk", lambda: poll_check((8, 8), f"v_cmp_eq_u64 vcc, s[{sNON}:{sNON+1}], v[{vFL}:{vFL+1}]", 0x7f),
              req=[("pi", 8, 8)], give=[("ok", 8, 8)], cost=3, name="cchk"); o.bh = (8, 8)
    prev_crit = None
    prev_bc = None
    for l in range(3):
        for H in halves:
            lu = last_unit[(l, H)]
            if (l, H) != (0, 0):
                for q in range(8):
                    def f(l=l, H=H, q=q):
                        p.lds(f"ds_read_b128 v[{BC+4*q}:{BC+4*q+3}], v{vBIAS} offset:{l*512 + (64*H + 8*q)*4}", ("bc", l, H, q // 4))
                    p.add("lds", f, req=[("udone", prev_bc)] + ([("bcr", l, H, q-1)] if q else []), give=[("bcr", l, H, q)],
                          at=max(0, first_unit[(l, H)] - 8), name="bc")
            prev_bc = first_unit[(l, H)]
            if l > 0:
                for q in range(32):
                    def f(H=H, q=q):
                        if q % 2 == 0: A(f"v_lshlrev_b32 v{Y+q}, 16, v{PX+16*H+q//2}")
                        else: A(f"v_and_b32 v{Y+q}, 0xffff0000, v{PX+16*H+q//2}")
                    p.add("valu", f, req=[prev_crit, ("wswitch",)] + ([("yp", l, H, q-1)] if q else []), give=[("yp", l, H, q)], name="yprep").vdl = lu
            for q in range(48):
                g3, k = q // 3, q % 3
                def f(l=l, H=H, g3=g3, k=k):
                    a, b, c_ = X0F + 32*H + 2*g3, Y + 2*g3, ACC + 32*H + 2*g3
                    tile = 2*H + g3 // 8
                    if k == 2:
                        d = PX + 16*H + g3
                        p.valu(f"v_cvt_pk_bf16_f32 v{d}, v{c_}, v{c_+1}", writes=[d])
                    elif l == 0:
                        p.valu(f"v_mul_f32 v{c_+k}, v{a+k}, v{c_+k}", acc_tile=tile)
                    else:
                        p.valu(f"v_fma_f32 v{c_+k}, v{a+k}, v{c_+k}, v{b+k}", acc_tile=tile)
                give = [("cr", l, H, q)] + ([("crit", l, H)] if q == 47 else [])
                req = [("udone", lu), ("udone", last_use[(l, own_pos[H])])]
                req += [("yp", l, H, 31)] if l else [("capu", H, 31) if P.SCAP else ("x0rd", 12)]
                if prev_crit: req.append(prev_crit)
                p.add("crit", f, req=req + ([("cr", l, H, q-1)] if q else []), give=give, at=lu+1.25, name="crit")
            prev_crit = ("crit", l, H)
            src = PX + 16*H
            if l < 2:
                for q in range(4):
                    def f(l=l, H=H, q=q, src=src):
                        lab = f"L_{tag}_st{l}{H}{q}"
                        ins = f"buffer_store_dwordx4 v[{src+4*q}:{src+4*q+3}], v{vXL}, s[24:27], s43 offen offset:{q*1024}"
                        if q == 0:
                            A(f"s_add_u32 s43, s{sBX+own_pos[H]}, {XREG0}")
                            if l == 1: A(f"s_add_u32 s43, s43, s{sX2}")
                        if l == 0:
                            p.vmem(ins + " sc1", ("st", l, H))
                        else:
                            A(f"s_cmp_lg_u32 s{sMODE}, 0")
                            A(f"s_cbranch_scc0 {lab}x")
                            p.vmem(ins, ("st", l, H))
                            e.A(f"{lab}j:")
                            ool.extend([f"{lab}x:", ins + " sc1", f"s_branch {lab}j"])
                        if q == 3: st[("stat", l, H)] = st["now"]
                    req = [("cr", l, H, 12*q+11), ("tab", 25)] + ([("st", l, H, q-1)] if q else [])
                    if l == 1: req += [("mode",), ("ok", 8, 8) if H == 0 else ("ok", 1, 0)]
                    if l == 0 and H == 1 and P.LSD: req.append(("xi", 1, P.LSD))
                    p.add("vmemh", f, req=req, give=[("st", l, H, q)], name="store")
                def touch(H):
                    A(f"v_subrev_u32 v2, s{sBASE}, v{vXL}")
                    A("v_and_b32 v2, 0x1f0, v2")
                    A(f"v_lshl_add_u32 v2, v2, 3, s{sBASE}")
                    A(f"s_add_u32 s40, s{sBX+own_pos[H]}, {XREG0}")
                    return "buffer_load_dword a224, v2, s[24:27], s40 offen sc1"
                if l == 0 and P.T0 == 2:
                    def f(l=l, H=H):
                        p.wait(vm=lambda t: t == ("st", l, H))
                        p.vmem(touch(H), ("tch", l, H))
                        st[("tat", l, H)] = st["now"]
                    o = p.add("vmemh", f, req=[("st", l, H, 3)], give=[("tch", l, H)], name="touch"); o.lh = (l, H)
                def f(l=l, H=H):
                    p.wait(vm=lambda t: t == ("st", l, H) or t == ("tch", l, H))
                    if l == 0 and P.T0 == 1:
                        p.vmem(touch(H), ("tch", l, H))
                    flag_store(2*l+H, l == 1)
                if l == 0 and P.T0 == 2:
                    o = p.add("vmemh", f, req=[("tch", l, H), ("mode",)], give=[("sent", l, H)], name="flag"); o.th = (l, H)
                else:
                    o = p.add("vmemh", f, req=[("st", l, H, 3), ("mode",)], give=[("sent", l, H)], name="flag"); o.lh = (l, H)
            else:
                for ch in range(8):
                    def f(H=H, ch=ch, src=src):
                        if ch == 0:
                            p.wait(lg=lambda t: t[0] == "or")
                            if H == 0:
                                A(f"v_subrev_u32 v{vOR}, s{sBASE}, v{vXL}"); A(f"v_add_u32 v{vOR}, s{sXS}, v{vOR}")
                        r = X0F + 2*ch if (P.OA and not m6) else 2
                        if H == 0 or r == 2:
                            A(f"v_xor_b32 v{r}, {ch}, v{vZ}"); A(f"v_lshl_add_u32 v{r}, v{r}, 4, v{vCB}")
                        p.lds(f"ds_write_b64 v{r}, v[{src+2*ch}:{src+2*ch+1}]", ("ow", H, ch))
                        st[("owat", H)] = st["now"]
                    p.add("lds", f, req=[("cr", 2, H, 6*ch+5)] + ([("ow", H, ch-1)] if ch else []), give=[("ow", H, ch)], cost=3, name="ow")
                dst = BC + 16*H
                for q in range(4):
                    def f(H=H, q=q, dst=dst):
                        p.wait(lg=lambda t: t[0] == "ow")
                        p.lds(f"ds_read_b128 v[{dst+4*q}:{dst+4*q+3}], v{vOR} offset:{q*1024}", ("or", H, q))
                        st[("orat", H)] = st["now"]
                    p.add("lds", f, req=[("ow", H, 7)] + ([("or", H, q-1)] if q else []), give=[("or", H, q)], name="or").oh = ("owat", H)
                for q in range(4):
                    def f(H=H, q=q, dst=dst):
                        p.wait(lg=lambda t: t == ("or", H, q))
                        if q == 0:
                            if H: A(f"s_add_u32 s43, s{sOWN}, 128")
                            else: A(f"s_mov_b32 s43, s{sOWN}")
                        p.vmem(f"buffer_store_dwordx4 v[{dst+4*q}:{dst+4*q+3}], v{vXS+q}, s[28:31], s43 offen offset:{1024*q*P.MS}{('', ' sc1', ' nt', ' sc0 sc1')[P.OF1 if H else P.OF]}", ("ost", H))
                    p.add("vmemh", f, req=[("or", H, 3)] + ([("ost", H, q-1)] if q else []), give=[("ost", H, q)], name="ostore").oh = ("orat", H)
    prev = None
    for l in (1, 2):
        for H in (0, 1):
            b = l - 1
            poss = list(range(1, 7) if H == 0 else range(7 if m6 else 8, 13))
            scale = UL / 52.0
            at = (l-1)*UL + (P.POLL_E0 if l == 1 else P.POLL_E)*scale if H == 0 else l*UL + (P.POLL_L0 if l == 1 else P.POLL_L)*scale
            sent = [("sent", b, h) for h in halves if h <= H]
            p.add("vmemh", lambda b=b, H=H: poll_load((2*b+H)*16384, (b, H)),
                  req=sent + ([("ok", b, 0)] if H else []), give=[("pi", b, H)], at=at, name="poll")
            o = p.add("chk", lambda b=b, H=H: poll_check((b, H), f"v_cmp_eq_u64 vcc, s[{sNON}:{sNON+1}], v[{vFL}:{vFL+1}]", 0x7f if H == 0 else 0x3f),
                      req=[("pi", b, H)], give=[("ok", b, H)], cost=3, name="chk"); o.bh = (b, H)
            for pos in poss:
                for q in range(4):
                    def f(l=l, pos=pos, q=q, first=(l == 2 and H == 0 and pos == 1 and q == 0)):
                        if first:
                            A(f"s_add_u32 s{sXL}, s{sXL}, s{sX2}"); A(f"s_addc_u32 s{sXL+1}, s{sXL+1}, 0")
                        txt, _ = xreg(m6, pos, q // 2, q % 2)
                        p.vmem(f"buffer_load_dwordx4 {txt}, v{vXL}, s[{sXL}:{sXL+3}], s{sBX+pos} offen offset:{q*1024}{(' sc1', '', ' nt')[P.XF]}", ("x", l, pos, q))
                    give = [("xl", l, pos, q)] + ([("xi", l, pos)] if q == 3 else [])
                    p.add("vmem", f, req=[("ok", b, H), ("udone", last_use[(l-1, pos)])] + ([prev] if prev else []), give=give, name="xld").dl = first_use[(l, pos)] + q // 2 - 1
                    prev = ("xl", l, pos, q)

    def gates():
        for o in p.ops:
            if o.done: continue
            if hasattr(o, "lh"): o.at = st.get(("stat",) + o.lh, 1e9) + (P.ACK0 if o.lh[0] == 0 else P.ACK)
            elif hasattr(o, "oh"): o.at = st.get(o.oh, 1e9) + 1 + P.OD
            elif hasattr(o, "th"): o.at = st.get(("tat",) + o.th, 1e9) + P.TW
            elif hasattr(o, "bh"): o.at = st.get(("pollat",) + o.bh, 1e9) + P.POLLW
            elif hasattr(o, "x0n"): o.at = st.get(("x0at", o.x0n), -2) + P.XLAT
    p.wait(lg=lambda t: t == ("bw",))
    p.stamp("setup")
    p.wait(vm=lambda t: t[0] == "w" and t[1] <= 1)
    A("s_barrier")
    st["landed"] = 1
    p.stamp("w01")
    for q in range(8):
        p.lds(f"ds_read_b128 v[{BC+4*q}:{BC+4*q+3}], v{vBIAS} offset:{32*q}", ("bc", 0, 0, q // 4))
        p.tokens.add(("bcr", 0, 0, q))
    for i in range(4):
        w_rd(0, i, 0); w_rd(0, i, 1)
    donated = False
    seen = set()
    plan = None
    for u, (l, pos, ks, H) in enumerate(U):
        e.c(f"---- unit {u}: layer {l} pos {pos} ks {ks} H {H}")
        st["now"] = u
        if u == int(P.STOP*UL/52): break
        if u % UL == 0: p.stamp(f"L{l}")
        elif not m6 and u == last_unit[(l, 0)] + 1: p.stamp(f"L{l}C")
        elif P.fine and u % UL in (8, 20): p.stamp(f"u{u}")
        elif u >= P.STU and (u - P.STU) % P.STN == 0 and not m6: p.stamp(f"u{u}")
        own = pos == 0 or (pos == 7 and not m6)
        if l == 0 or not own: p.ensure(("xi", l, pos))
        else: p.ensure(("cr", l-1, 0 if pos == 0 else 1, 24*ks + 23))
        first = (l, H) not in seen
        seen.add((l, H))
        if first:
            if l > 0: p.ensure(("crit", l-1, H))
            p.ensure(("bcr", l, H, 7))
        need_bar = u + 1 < NU and u + 1 > st["landed"]
        upto = -1
        if need_bar:
            upto = min(u + (2 if u < 4 else P.GB), NU - 1)
            assert plan is None
            while st["next_w"] <= upto: w_dma()
        xs = {("x", l, pos, 2*ks), ("x", l, pos, 2*ks+1)}
        def do_bar():
            A("s_barrier")
            st["landed"] = upto
            for it in list(pending):
                if it[1] <= u - 1:
                    free_pages.append(it[0]); pending.remove(it)
        p.wait(vm=lambda t: (t[0] == "w" and t[1] <= upto) or (l > 0 and t in xs),
               lg=lambda t: (t[0] == "w" and t[1] == u) or (l == 0 and t in xs) or (first and t[:3] == ("bc", l, H)))
        if need_bar and not P.BIN: do_bar()
        if not donated and all(("x0rd", n_) in p.tokens for n_ in range(13)):
            e.wait_lg_all(); p.icount += 1; st["capm"] = None
            for w in range(4):
                for i in range(1, NB): pending.append((XS0 + w*NB + i, u))
            donated = True
        for i in range(4):
            s, t = i // 2, i % 2
            now = u + i/4.0
            tile = 2*H + t
            txt, (kind, r) = xreg(m6, pos, ks, s)
            if kind == "v":
                p.pad(max(p.last_valu.get(x, -99) for x in range(r, r+4)), 2)
            a0 = WB + (u & 1)*16 + i*4
            acc = f"v[{ACC+16*tile}:{ACC+16*tile+15}]"
            cin = f"v[{BC+16*t}:{BC+16*t+15}]" if (first and s == 0) else acc
            A(f"v_mfma_f32_32x32x16_bf16 {acc}, a[{a0}:{a0+3}], {txt}, {cin}")
            p.last_mfma[tile] = p.icount
            p.used = 0
            if i == 3: p.tokens.add(("udone", u))
            if need_bar and P.BIN and i == 0:
                do_bar(); p.used += 2
            gates()
            if plan is not None:
                if plan == "w": w_go()
                else: p.run(plan)
                plan = None
            if u + 1 < NU:
                td = [int(c) for c in str(P.TDB if (need_bar and P.BIN) else P.TD).zfill(4)]
                for k in range(sum(td[:i]), sum(td[:i+1])): w_rd(u+1, k // 2, k % 2)
            bud = P.BUD - (1 if i == 3 else 0)
            third = False
            if i == 0:
                o = p.pick(now + 0.25, "vmem")
                dls = ([o.dl] if o is not None else []) + ([st["next_w"] - P.GB - P.WDL] if w_can() else [])
                third = bool(dls) and min(dls) - u < P.SL3
                if P.T3 and w_can() and len(free_pages) >= P.T3 and p.pick(now, "crit") is None: third = True
            if m6 and P.M6V and i == 0 and u < UL: third = True
            if i in (1, 2) or third:
                nxt = now + 0.25
                la = st["next_w"] - u
                o = p.pick(nxt, "vmemh")
                urgent = p.pick(now, "crit") is not None
                if o is None:
                    o = p.pick(nxt, "vmem")
                    if w_can():
                        wdl = st["next_w"] - P.GB - P.WDL
                        if o is not None:
                            if wdl < o.dl: o = "w"
                        elif la < P.MINLA: o = "w"
                        elif not urgent or (P.UW and i == 1):
                            backlog = p.pick(now, "valu") is not None or p.pick(now, "lds") is not None
                            if not (backlog and la >= P.HILA and i == 2): o = "w"
                plan = o
                bud -= 1 if (o == "w" or (o is not None and o.pre)) else 0
            nl = 0
            o = p.pick(now, "valu")
            if o is not None and hasattr(o, "vdl") and o.vdl - now < P.VW:
                left = sum(1 for x in p.ops if not x.done and getattr(x, "vdl", None) == o.vdl)
                st["vacc"] = st.get("vacc", 0.0) + left / max(1.0, 4*(o.vdl - now))
                while st["vacc"] >= 1:
                    o = p.pick(now, "valu")
                    if o is None or not hasattr(o, "vdl"): break
                    p.run(o); st["vacc"] -= 1
            for _ in range(P.DEF):
                o = p.pick(now, "early")
                if o is not None:
                    u0 = p.used; p.run(o); p.used = u0
            while True:
                rem = bud - p.used
                if P.LP:
                    o = p.pick(now, "lds")
                    if o is not None and o.name[:2] in ("x0", "bc") and rem + 1 >= 1 and nl < 2:
                        p.run(o); nl += 1; continue
                o = p.pick(now, "crit")
                if o is not None and rem + P.CRITX >= 1:
                    p.run(o); continue
                got = False
                for kind_ in ("chk", "lds", "early", "valu"):
                    o = p.pick(now, kind_)
                    if o is not None and rem >= 1 and o.cost <= rem + 2:
                        p.run(o); got = True; break
                if not got: break
            if m6 and P.M6V and i == 3 and u < UL:
                o = p.pick(now + 0.25, "vmem")
                if o is not None: p.run(o)
                elif w_can(): w_dma()
            if plan == "w": w_pre()
            elif plan is not None and plan.pre:
                plan.pre(); plan.predone = True
    st["now"] = NU
    p.stamp("end")
    for o in p.ops:
        if not o.done and P.STOP == 999: p.run(o)
    p.stamp("flush")
    if P.stamps:
        A("s_waitcnt vmcnt(0)")
        p.stamp("drain")
        while p.nstamp < NSTAMP:
            e.A(f"v_writelane_b32 v{vST}, s{sSTM}, {p.nstamp}"); p.nstamp += 1
        stamp_store(e)
    if P.dbg and not m6:
        A("s_waitcnt vmcnt(0)")
        A("s_memtime s[40:41]"); A("s_memrealtime s[42:43]"); A("s_waitcnt lgkmcnt(0)")
        A("s_sub_u32 s40, s40, s96"); A("s_sub_u32 s42, s42, s100")
        A("s_and_b32 s44, s2, 0xf8"); A(f"s_or_b32 s44, s44, s{sWV}"); A("s_cmp_lg_u32 s44, 0"); A("s_cbranch_scc1 L_end")
        A("s_lshl_b32 s44, s2, 3")
        A("v_mov_b32 v2, s40"); A("v_mov_b32 v3, s42"); A("v_mov_b32 v4, s44")
        A("global_store_dwordx2 v4, v[2:3], s[98:99]")
    A("s_endpgm")
    for x in ool: e.A(x)
    for H in (halves if P.OT != 2 else ()):
        e.A(f"L_{tag}_cap{H}:")
        if H == 0 and not m6:
            e.A("s_cmp_lg_u32 s44, 0"); e.A(f"s_cbranch_scc1 L_{tag}_cap1")
        for ch in range(8):
            e.A(f"v_xor_b32 v2, {ch}, v{vZ}"); e.A("v_lshl_add_u32 v2, v2, 4, v3")
            if P.SCAP: e.A(f"ds_read_b64 v[{X0F+32*H+16+2*ch}:{X0F+32*H+17+2*ch}], v2")
            else: e.A(f"ds_read_b64 v[{Y+2*ch}:{Y+2*ch+1}], v2")
        for q in range(0 if P.SCAP else 16):
            if q % 2 == 0: e.A(f"s_waitcnt lgkmcnt({7 - q//2})")
            e.A(f"v_lshlrev_b32 v{X0F+32*H+2*q}, 16, v{Y+q}")
            e.A(f"v_and_b32 v{X0F+32*H+2*q+1}, 0xffff0000, v{Y+q}")
        e.A(f"s_setpc_b64 s[{sRET}:{sRET+1}]")
    return e.text(), p.names

def stamp_store(e):
    A = e.A
    A(f"s_cmp_lg_u32 s{sWV}, 0"); A("s_cbranch_scc1 L_end")
    A("v_mbcnt_lo_u32_b32 v2, -1, 0"); A("v_mbcnt_hi_u32_b32 v2, -1, v2")
    A("v_lshlrev_b32 v2, 2, v2"); A("s_lshl_b32 s44, s2, 8")
    A(f"buffer_store_dword v{vST}, v2, s[24:27], s44 offen")

def gen_helper():
    e = Em(); A = e.A
    A("L_helper:")
    A("s_waitcnt lgkmcnt(0)")
    A("s_mov_b32 s20, s4"); A("s_mov_b32 s21, s5"); A("s_mov_b32 s16, s6"); A("s_mov_b32 s17, s7")
    A("s_mov_b32 s24, s14"); A("s_mov_b32 s25, s15"); A(f"s_mov_b32 s26, {WS_BYTES}"); A("s_mov_b32 s27, 0x20000")
    if P.WB2:
        A(f"s_lshl_b32 s43, s{sC}, 2"); A(f"s_add_u32 s43, s43, s{sWV}"); A("s_lshl_b32 s43, s43, 7"); A(f"s_add_u32 s43, s43, {FLAG_BASE + 3*16384}")
        A("v_and_b32 v12, 7, v1"); A("v_lshl_add_u32 v12, v12, 3, s43")
        A("buffer_load_dwordx2 v[14:15], v12, s[24:27], 0 offen sc1")
    n = [0]
    def stamp():
        if P.stamps:
            A(f"s_mem{'real' if P.rt else ''}time s[{sSTM}:{sSTM+1}]"); A("s_waitcnt lgkmcnt(0)")
            A(f"v_writelane_b32 v{vST}, s{sSTM}, {n[0]}"); n[0] += 1
    stamp()
    def item_loop(name, first, last, stride, start_expr, depth):
        for x in start_expr: A(x)
        A(f"s_add_u32 s50, s50, {first}")
        A(f"L_{name}:")
        A(f"s_cmp_ge_u32 s50, {last}"); A(f"s_cbranch_scc1 L_{name}_done")
        A("s_mul_i32 s51, s50, 5042"); A("s_lshr_b32 s51, s51, 16")
        A("s_mul_i32 s52, s51, 13"); A("s_sub_u32 s52, s50, s52")
        A("s_mul_i32 s53, s51, 5042"); A("s_lshr_b32 s53, s53, 16")
        A("s_mul_i32 s54, s53, 13"); A("s_sub_u32 s54, s51, s54")
        A("s_lshr_b32 s55, s52, 1")
        A("s_sub_u32 s56, s54, 1"); A("s_max_i32 s56, s56, 0")
        A("s_add_u32 s56, s56, s55")
        A("s_cmp_ge_u32 s56, 7"); A("s_cselect_b32 s57, 7, 0"); A("s_sub_u32 s56, s56, s57")
        A("s_lshl_b32 s56, s56, 1")
        A("s_sub_u32 s57, s54, 7"); A("s_max_i32 s57, s57, 0")
        A("s_cmp_eq_u32 s55, 6"); A("s_cselect_b32 s58, 0, s55")
        A("s_add_u32 s57, s57, s58")
        A("s_cmp_ge_u32 s57, 6"); A("s_cselect_b32 s58, 6, 0"); A("s_sub_u32 s57, s57, s58")
        A("s_lshl_b32 s57, s57, 1"); A("s_add_u32 s57, s57, 1")
        A("s_cmp_eq_u32 s54, 1"); A("s_cselect_b32 s56, s57, s56")
        A("s_cmp_ge_u32 s54, 8"); A("s_cselect_b32 s56, s57, s56")
        A(f"s_mul_i32 s56, s56, {BLKW}")
        A(f"s_mul_i32 s53, s53, {WLAYER}")
        A("s_lshl_b32 s52, s52, 7")
        A("s_add_u32 s40, s56, s53"); A("s_add_u32 s40, s40, s52")
        A("buffer_load_dword v8, v2, s[16:19], s40 offen" + (" nt" if (P.WNT == 2 or (P.WNT == 3 and name == "hp2")) else ""))
        A(f"s_waitcnt vmcnt({depth})")
        A(f"s_add_u32 s50, s50, {stride}")
        A(f"s_branch L_{name}")
        A(f"L_{name}_done:")
    if P.CPF:
        A("s_getpc_b64 s[40:41]")
        A("L_pc:")
        A(f"s_sub_u32 s40, s40, L_pc-{NAME}_kernel"); A("s_subb_u32 s41, s41, 0")
        A(f"s_lshl_b32 s42, s{sCQ}, 2"); A(f"s_add_u32 s42, s42, s{sWV}"); A("s_lshl_b32 s42, s42, 13")
        A(f"s_cmp_ge_u32 s42, L_pc-{NAME}_kernel"); A("s_cbranch_scc1 L_cpf_done")
        A("v_lshl_add_u32 v3, v1, 7, s42")
        A(f"v_min_u32 v3, L_pc-{NAME}_kernel, v3")
        A("global_load_dword v9, v3, s[40:41]")
        A("L_cpf_done:")
    if P.helper:
        A("v_mul_u32_u24 v2, 1664, v1")
        if P.HX0:
            if P.HW: A("s_waitcnt vmcnt(0)")
            if P.OT == 2:
                hv = [order.pack(r) for r in order.HS]
                A(f"s_mov_b32 s40, {hv[0]:#x}")
                for c in range(1, 4):
                    A(f"s_cmp_eq_u32 s{sCQ}, {c}"); A(f"s_cselect_b32 s40, {hv[c]:#x}, s40")
                for n_ in range(6):
                    A(f"s_bfe_u32 s42, s40, {(4 << 16) | (4*n_):#x}"); A(f"s_add_u32 s42, s42, s{sX2}")
                    A("s_sub_u32 s43, s42, 6"); A("s_min_u32 s42, s42, s43")
                    A("s_lshl_b32 s42, s42, 8"); A(f"s_add_u32 s{sT0X+n_}, s42, 128")
            elif P.OT: order.emit_table(A, sT0X, sJ, sCQ, sX2, 40, 41, 42, 43, helper=True)
            A(f"s_and_b32 s44, s{sWV}, 1"); A(f"s_lshl_b32 s45, s{sC}, 1"); A("s_add_u32 s44, s44, s45")
            A(f"s_mul_i32 s44, s44, {64*ROWB}")
            nb_ = 6 if P.OT == 2 else 13 - P.NA
            for r in range((nb_ + 1) // 2):
                A(f"s_cmp_ge_u32 s{sWV}, 2")
                A(f"s_cselect_b32 s45, s{sT0X+min(2*r+1, nb_-1)}, s{sT0X+2*r}")
                A("s_add_u32 s40, s44, s45")
                A("buffer_load_dword v8, v2, s[20:23], s40 offen" + (" nt" if P.XNT else ""))
        if P.OT == 2 and P.HD:
            A(f"s_lshl_b32 s42, s{sCQ}, 2"); A(f"s_add_u32 s42, s42, s{sWV}")
            A("s_cmp_ge_u32 s42, 12"); A("s_cbranch_scc1 L_hd_done")
            A("s_or_b32 s43, s42, 1"); A(f"s_mul_i32 s43, s43, {BLKW}"); A("s_lshl_b32 s42, s42, 7"); A("s_add_u32 s40, s43, s42")
            A("buffer_load_dword v8, v2, s[16:19], s40 offen")
            A("L_hd_done:")
        if P.HP1:
            item_loop("hp1", 13*P.H0, 507, 128, [f"s_lshl_b32 s50, s{sC}, 2", f"s_add_u32 s50, s50, s{sWV}"], 1)
        if P.stamps: A("s_waitcnt vmcnt(0)")
        stamp()
        item_loop("hp2", 13*P.H2, 507, 16, [f"s_lshl_b32 s50, s{sCQ}, 2", f"s_add_u32 s50, s50, s{sWV}"], 1)
        A("s_waitcnt vmcnt(0)")
        if P.WB2:
            A("v_readfirstlane_b32 s48, v14"); A("v_readfirstlane_b32 s49, v15"); A("s_nop 3")
            A("s_or_b32 s48, s48, 1"); A("s_add_u32 s48, s48, 2"); A("s_add_u32 s49, s49, 1")
            A("s_mov_b32 s46, 0x400")
            A("L_hw:")
            A("buffer_load_dwordx2 v[14:15], v12, s[24:27], 0 offen sc1"); A("s_waitcnt vmcnt(0)")
            A("v_cmp_eq_u64 vcc, s[48:49], v[14:15]"); A("s_nop 1")
            A("s_and_b32 s44, vcc_lo, 0x3f"); A("s_cmp_eq_u32 s44, 0x3f"); A("s_cbranch_scc1 L_hw_ok")
            A("s_sleep 4"); A("s_sub_u32 s46, s46, 1"); A("s_cbranch_scc0 L_hw")
            A("L_hw_ok:")
            A("s_barrier")
            A(f"s_cmp_lg_u32 s{sWV}, 0"); A("s_cbranch_scc1 L_hw_end")
            if P.WB2 == 2:
                A(f"s_cmp_lg_u32 s{sCQ}, 3"); A("s_cbranch_scc1 L_hw_end")
            A("buffer_wbl2 sc1"); A("s_waitcnt vmcnt(0)")
            A("L_hw_end:")
    stamp()
    if P.stamps:
        while n[0] < NSTAMP:
            A(f"v_writelane_b32 v{vST}, s{sSTM}, {n[0]}"); n[0] += 1
        stamp_store(e)
    A("s_endpgm")
    return e.text()

def main():
    out = sys.argv[1]
    for a in sys.argv[2:]:
        a = a.lstrip("-")
        if "=" in a:
            k, v = a.split("="); assert hasattr(P, k), k; setattr(P, k, type(getattr(P, k))(int(v)))
        else:
            assert hasattr(P, a), a; setattr(P, a, True)
    order.select(P.NA)
    k = NAME + "_kernel"
    T = []
    A = T.append
    A('.amdgcn_target "amdgcn-amd-amdhsa--gfx950"')
    A(".text"); A(f".globl {k}"); A(".p2align 8"); A(f".type {k},@function"); A(f"{k}:")
    NB = P.NB; XS0 = NPAGES - 4*NB
    A("s_load_dwordx8 s[4:11], s[0:1], 0")
    A("s_load_dwordx2 s[14:15], s[0:1], 40")
    if P.stamps: A(f"s_mem{'real' if P.rt else ''}time s[96:97]")
    if P.dbg:
        A("s_load_dwordx2 s[98:99], s[0:1], 32"); A("s_memtime s[96:97]"); A("s_memrealtime s[100:101]")
    A("s_cmp_ge_u32 s2, 256"); A("s_cbranch_scc1 L_end")
    A("v_lshrrev_b32 v2, 6, v0"); A("v_and_b32 v1, 63, v0")
    A("s_and_b32 s44, s2, 7")
    A(f"v_readfirstlane_b32 s{sWV}, v2")
    A(f"s_lshr_b32 s{sCQ}, s2, 6")
    A(f"s_bfe_u32 s{sJ}, s2, 0x30003")
    A(f"s_lshl_b32 s{sC}, s{sCQ}, 3"); A(f"s_add_u32 s{sC}, s{sC}, s44")
    A(f"s_lshl_b32 s{sX2}, s44, 1" if P.XSH else f"s_mov_b32 s{sX2}, 0")
    if P.OT == 2:
        A(f"s_lshl_b32 s{sT0X}, s{sJ}, 8")
        A(f"s_sub_u32 s45, s44, 6"); A(f"s_min_u32 s{sX2}, s44, s45")
        if not P.XSH: A(f"s_mov_b32 s{sX2}, 0")
    elif P.NA == 7:
        A(f"s_lshl_b32 s45, s{sCQ}, 1"); A(f"s_add_u32 s45, s45, s{sJ}"); A("s_sub_u32 s46, s45, 7"); A("s_min_u32 s45, s45, s46")
    else:
        A(f"s_lshr_b32 s45, s{sJ}, 1"); A(f"s_add_u32 s45, s45, s{sCQ}"); A("s_and_b32 s45, s45, 3")
    if P.OT != 2:
        A("s_lshl_b32 s45, s45, 1"); A(f"s_add_u32 s45, s45, s{sX2}")
        A("s_sub_u32 s46, s45, 13"); A("s_min_u32 s45, s45, s46"); A("s_sub_u32 s46, s45, 13"); A("s_min_u32 s45, s45, s46")
        A(f"s_lshl_b32 s{sT0X}, s45, 7")
    A(f"s_mov_b32 s18, {3*WLAYER}"); A("s_mov_b32 s19, 0x20000"); A(f"s_mov_b32 s22, {4096*ROWB}"); A("s_mov_b32 s23, 0x20000")
    A(f"s_cmp_eq_u32 s{sJ}, 7"); A("s_cbranch_scc1 L_helper")
    A(f"s_lshl_b32 s43, s{sC}, 2"); A(f"s_add_u32 s43, s43, s{sWV}"); A(f"s_mul_i32 s46, s43, {32*ROWB}")
    A("v_lshrrev_b32 v2, 3, v1"); A("v_and_b32 v3, 7, v1"); A("v_lshrrev_b32 v4, 4, v1")
    A("v_mul_u32_u24 v6, 1664, v2"); A("v_add_u32 v6, s46, v6")
    A("v_xor_b32 v7, v4, v3"); A(f"v_lshl_add_u32 v{vXS}, v7, 4, v6")
    A("v_xor_b32 v7, 4, v7"); A(f"v_lshl_add_u32 v{vXS+1}, v7, 4, v6"); A(f"v_add_u32 v{vXS+1}, {8*ROWB - 1024}, v{vXS+1}")
    A(f"v_add_u32 v{vXS+2}, {16*ROWB - 2048}, v{vXS}"); A(f"v_add_u32 v{vXS+3}, {16*ROWB - 2048}, v{vXS+1}")
    A(f"s_mul_i32 s{sXS}, s{sWV}, {NB*PAGE}"); A(f"s_add_u32 s{sXS}, s{sXS}, {XS0*PAGE}")
    A(f"s_lshl_b32 s{sOWN+10}, s{sJ}, 8")
    A(f"s_lshl_b32 s{sW1K}, s{sWV}, 10")
    A("v_and_b32 v5, 1, v4"); A("v_lshlrev_b32 v5, 2, v5"); A("v_xor_b32 v5, v5, v3")
    A("v_lshl_add_u32 v5, v5, 4, s44")
    A(f"s_lshr_b32 s42, s{sWV}, 1"); A("s_lshl_b32 s42, s42, 4"); A(f"s_and_b32 s40, s{sWV}, 1"); A("s_lshl_b32 s48, s40, 2")
    A("s_add_u32 s42, s42, s48")
    A("v_lshrrev_b32 v7, 5, v1")
    A("v_and_b32 v6, 3, v2"); A("v_lshl_add_u32 v6, v7, 3, v6"); A("v_add_u32 v6, s42, v6")
    A("v_mul_u32_u24 v6, 1664, v6"); A(f"v_add_u32 v{vW}, v5, v6")
    A(f"v_add_u32 v{vW+1}, 128, v{vW}"); A(f"v_add_u32 v{vW+2}, {KSW}, v{vW}"); A(f"v_add_u32 v{vW+3}, {KSW+128}, v{vW}")
    A(f"v_mul_i32_i24 v{vDELTA}, 0xffffe600, v7"); A("s_mul_i32 s40, s40, 6656"); A(f"v_add_u32 v{vDELTA}, s40, v{vDELTA}")
    A(f"s_mul_i32 s42, s{sT0X}, 832")
    A(f"s_mov_b32 m0, s{sW1K}")
    A(f"s_min_u32 s45, s{sWV}, 2")
    A(f"s_mul_i32 s40, s45, {ROWB}"); A("s_add_u32 s40, s40, s44")
    A("v_lshlrev_b32 v6, 2, v1")
    A(f"s_mov_b32 s34, {3*ROWB}"); A("s_mov_b32 s35, 0x20000")
    if P.stamps: A(f"s_mem{'real' if P.rt else ''}time s[100:101]")
    A("s_waitcnt lgkmcnt(0)")
    if P.stamps: A(f"s_mem{'real' if P.rt else ''}time s[98:99]")
    A("s_mov_b32 s16, s6"); A("s_mov_b32 s17, s7"); A("s_mov_b32 s20, s4"); A("s_mov_b32 s21, s5")
    A(f"buffer_load_dwordx4 v{vW}, s[16:19], s42 offen lds")
    A(f"s_mov_b32 m0, s{sXS}"); A("s_mov_b32 s32, s8"); A("s_mov_b32 s33, s9")
    for sp in range(3):
        A(f"buffer_load_dwordx4 v{vXS+sp}, s[20:23], s{sT0X} offen offset:{1024*sp} lds")
    A(f"buffer_load_dword v{Y}, v6, s[32:35], s40 offen")
    for d, b_, size in ((24, 14, WS_BYTES), (28, 10, 4096*ROWB)):
        A(f"s_mov_b32 s{d}, s{b_}"); A(f"s_mov_b32 s{d+1}, s{b_+1}"); A(f"s_mov_b32 s{d+2}, {size}"); A(f"s_mov_b32 s{d+3}, 0x20000")
    if P.HE:
        A("s_lshl_b32 s40, s43, 7"); A(f"s_add_u32 s40, s40, {FLAG_BASE}")
        A("v_min_u32 v5, 5, v1"); A("v_lshl_add_u32 v5, v5, 14, s40")
        A(f"buffer_load_dwordx2 v[{Y+24}:{Y+25}], v5, s[24:27], 0 offen sc1")
    A(f"s_add_u32 s{sXL}, s14, {XREG0}"); A(f"s_addc_u32 s{sXL+1}, s15, 0"); A(f"s_mov_b32 s{sXL+2}, {XREG_STRIDE}"); A(f"s_mov_b32 s{sXL+3}, 0x20000")
    vals = [order.pack(r) for r in (order.TS if P.OT == 2 else order.T)]
    for w_, dst in ((0, 48), (1, 49)):
        A(f"s_mov_b32 s{dst}, {(vals[0] >> (32*w_)) & 0xffffffff:#x}")
    for c in range(1, 4):
        A(f"s_cmp_eq_u32 s{sCQ}, {c}")
        for w_, dst in ((0, 48), (1, 49)):
            A(f"s_cselect_b32 s{dst}, {(vals[c] >> (32*w_)) & 0xffffffff:#x}, s{dst}")
    t = Y + 16
    A(f"v_lshlrev_b32 v{t}, 2, v1"); A(f"v_lshrrev_b64 v[{t}:{t+1}], v{t}, s[48:49]"); A(f"v_and_b32 v{t}, 15, v{t}")
    if P.OT == 2:
        A(f"v_add3_u32 v{t+1}, v{t}, s{sX2}, -1"); A(f"v_subrev_u32 v{t+2}, 6, v{t+1}"); A(f"v_min_u32 v{t+1}, v{t+1}, v{t+2}")
        A(f"v_add3_u32 v{t+1}, v{t+1}, s{sJ}, 1"); A(f"v_subrev_u32 v{t+2}, 7, v{t+1}"); A(f"v_min_u32 v{t+1}, v{t+1}, v{t+2}")
        A(f"v_lshlrev_b32 v{t+1}, 1, v{t+1}")
        A(f"s_sub_u32 s40, s{sJ}, s{sX2}"); A("s_add_u32 s48, s40, 6"); A("s_min_u32 s40, s40, s48")
        A(f"s_cmp_eq_u32 s{sJ}, 6"); A("s_cselect_b32 s40, 5, s40"); A(f"s_cselect_b32 s{sMODE}, 0, s{sJ}")
        A(f"v_subrev_u32 v{t+2}, 8, v{t}")
        A(f"v_cmp_le_i32 vcc, s40, v{t+2}")
        A(f"v_mov_b32 v{t+3}, s40"); A("s_nop 0")
        A(f"v_addc_co_u32 v{t+2}, vcc, 0, v{t+2}, vcc")
        A(f"v_cmp_eq_u32 vcc, 7, v{t}"); A("s_nop 1")
        A(f"v_cndmask_b32 v{t+2}, v{t+2}, v{t+3}, vcc")
        A(f"v_add_u32 v{t+2}, s{sX2}, v{t+2}"); A(f"v_subrev_u32 v{t+3}, 6, v{t+2}"); A(f"v_min_u32 v{t+2}, v{t+2}, v{t+3}")
        A(f"v_lshl_or_b32 v{t+2}, v{t+2}, 1, 1")
        A(f"v_cmp_gt_u32 vcc, 7, v{t}"); A("s_nop 1")
        A(f"v_cndmask_b32 v{t}, v{t+2}, v{t+1}, vcc")
    else:
        if P.NA == 7:
            A(f"v_add_u32 v{t+1}, s{sJ}, v{t}"); A(f"v_subrev_u32 v{t+2}, 7, v{t+1}"); A(f"v_min_u32 v{t+1}, v{t+1}, v{t+2}")
        else:
            A(f"s_lshr_b32 s40, s{sJ}, 1"); A(f"v_add_u32 v{t+1}, s40, v{t}"); A(f"v_and_b32 v{t+1}, 3, v{t+1}")
        A(f"v_cmp_gt_u32 vcc, {P.NA}, v{t}")
        A(f"s_cmp_eq_u32 s{sJ}, 6"); A(f"s_cselect_b32 s{sMODE}, 0, s{sJ}")
        A(f"v_cndmask_b32 v{t}, v{t}, v{t+1}, vcc")
        A(f"v_lshl_add_u32 v{t}, v{t}, 1, s{sX2}")
        for _ in range(2):
            A(f"v_subrev_u32 v{t+1}, 13, v{t}"); A(f"v_min_u32 v{t}, v{t}, v{t+1}")
    A(f"v_lshlrev_b32 v{t}, 7, v{t}"); A(f"v_mul_u32_u24 v{t+1}, 832, v{t}")
    D1 = [f"v_add_u32 v{t+2}, s{sJ}, v1", f"v_subrev_u32 v{t+3}, 7, v{t+2}", f"v_min_u32 v{t+2}, v{t+2}, v{t+3}", f"v_lshlrev_b32 v{t+2}, 1, v{t+2}",
          f"v_add3_u32 v{t+3}, v1, s{sMODE}, -7", f"v_subrev_u32 v{t+4}, 6, v{t+3}", f"v_min_u32 v{t+3}, v{t+3}, v{t+4}", f"v_lshl_or_b32 v{t+3}, v{t+3}, 1, 1",
          "v_cmp_gt_u32 vcc, 7, v1|s_nop 1|" + f"v_cndmask_b32 v{t+2}, v{t+3}, v{t+2}, vcc",
          f"v_mul_u32_u24 v{t+4}, {BLKW}, v{t+2}", f"v_lshlrev_b32 v{t+5}, 12, v{t+2}",
          f"v_lshl_add_u32 v{vXL}, v1, 4, s{sBASE}"]
    D1 += [f"v_add_u32 v{vTR+2+t_}, 0x10000, v{vTR+t_}" for t_ in range(2)] + [f"v_add_u32 v{vTR+4+t_}, 0x20000, v{vTR+t_}" for t_ in range(2)]
    D1 += [f"v_readlane_b32 s{sBW+q}, v{Y+20+q//13}, {q % 13}" for q in range(26)]
    DEFER.extend(D1)
    A("s_nop 0")
    A(f"s_mov_b32 s{sT0W}, s42")
    for n in range(1, 13): A(f"v_readlane_b32 s{sT0W+n}, v{t+1}, {n}")
    for n in range(1, 13): A(f"v_readlane_b32 s{sT0X+n}, v{t}, {n}")
    A(f"buffer_load_dwordx4 v{vXS+3}, s[20:23], s{sT0X} offen offset:3072 lds")
    A(f"s_add_u32 m0, s{sW1K}, {PAGE}"); A("s_nop 0")
    A(f"buffer_load_dwordx4 v{vW+2}, s[16:19], s42 offen lds")
    A("s_lshl_b32 s45, s45, 9"); A(f"s_add_u32 s45, s45, {MISC}")
    A(f"v_lshl_add_u32 v{Y+4}, v1, 3, s45")
    A(f"s_mov_b32 s{sOWN}, s44")
    A("s_lshl_b32 s44, s43, 7"); A(f"s_add_u32 s44, s44, {FLAG_BASE}")
    A(f"v_lshl_add_u32 v{vFLAG}, v3, 3, s44")
    A(f"v_lshlrev_b32 v{vBIAS}, 4, v7"); A(f"v_add_u32 v{vBIAS}, {MISC}, v{vBIAS}")
    A(f"s_lshl_b32 s45, s{sJ}, 3"); A("s_add_u32 s45, s45, s44")
    A("v_mov_b32 v5, 0x80000000"); A("v_mov_b32 v6, s45")
    A("v_cmp_eq_u32 vcc, 0, v1")
    A("s_nop 0")
    A("v_and_b32 v2, 31, v1")
    A(f"v_cndmask_b32 v{vFST}, v5, v6, vcc")
    A(f"s_add_u32 s42, s42, 128"); A(f"s_cmp_eq_u32 s{sJ}, 6"); A(f"s_cselect_b32 s42, s{sT0W+1}, s42")
    for v in (2, 3):
        A(f"s_add_u32 m0, s{sW1K}, {v*PAGE}"); A("s_nop 0")
        A(f"buffer_load_dwordx4 v{vW+2*(v-2)}, s[16:19], s42 offen lds")
    A(f"v_bfe_u32 v{vZ}, v1, 1, 3"); A(f"v_lshl_add_u32 v2, v2, 7, s{sXS}")
    for s4 in range(4):
        A(f"v_add_u32 v6, {2*s4}, v7"); A(f"v_xor_b32 v6, v6, v{vZ}"); A(f"v_lshl_add_u32 v{vXR+s4}, v6, 4, v2")
    A(f"v_lshl_add_u32 v{vCB}, v7, 3, v2")
    A(f"s_add_u32 m0, s{sXS}, {PAGE}")
    A("v_bfe_u32 v3, v1, 2, 2")
    for sp in range(2): A(f"buffer_load_dwordx4 v{vXS+sp}, s[20:23], s{sT0X+1} offen offset:{1024*sp} lds")
    A("v_lshl_add_u32 v4, v7, 2, v3"); A("v_lshlrev_b32 v4, 7, v4")
    A("v_bfe_u32 v6, v1, 4, 1"); A("v_lshl_add_u32 v4, v6, 5, v4")
    A("v_and_b32 v6, 3, v1"); A("v_lshl_add_u32 v4, v6, 3, v4")
    A("v_lshrrev_b32 v3, 1, v3")
    for sp in range(2, 4): A(f"buffer_load_dwordx4 v{vXS+sp}, s[20:23], s{sT0X+1} offen offset:{1024*sp} lds")
    for t_ in range(2):
        A(f"v_xor_b32 v6, {t_}, v3"); A(f"v_lshl_add_u32 v{vTR+t_}, v6, 6, v4")
    if not P.HE:
        A("v_min_u32 v5, 5, v1"); A("v_lshl_add_u32 v5, v5, 14, s44")
    A(f"s_cmp_eq_u32 s{sWV}, 0"); A("s_cselect_b32 s45, 1.0, 0")
    A(f"s_getreg_b32 s{sHEL}, hwreg(HW_REG_XCC_ID, 0, 4)")
    A(f"s_mov_b32 s{sBASE}, s46")
    A("s_mov_b32 s46, 0x40000")
    if not P.HE: A(f"buffer_load_dwordx2 v[{Y+24}:{Y+25}], v5, s[24:27], 0 offen sc1")
    A(f"s_cmp_eq_u32 s{sJ}, 6"); A("s_cbranch_scc1 L_m6")
    t1, n1 = gen_member(False)
    t2, n2 = gen_member(True)
    T.append(t1); T.append(t2)
    T.append(gen_helper())
    A("L_end:"); A("s_endpgm")
    A('.section .rodata,"a"'); A(".p2align 6")
    A(f""".amdhsa_kernel {k}
  .amdhsa_next_free_vgpr 488
  .amdhsa_next_free_sgpr 102
  .amdhsa_accum_offset 256
  .amdhsa_group_segment_fixed_size 0
  .amdhsa_kernarg_size 48
  .amdhsa_user_sgpr_count 2
  .amdhsa_user_sgpr_kernarg_segment_ptr 1
  .amdhsa_system_sgpr_workgroup_id_x 1
  .amdhsa_float_denorm_mode_32 3
.end_amdhsa_kernel
""")
    H = [f"; @launch grid=(256,1,1) block=(256,1,1) lds={LDS_BYTES}"]
    if P.stamps:
        H.append("; @st32" + (" @rt" if P.rt else ""))
        H.append("; @names_reg " + " ".join(x.replace(" ", "") for x in n1))
        H.append("; @names_m6 " + " ".join(x.replace(" ", "") for x in n2))
    open(out, "w").write("\n".join(H + T))

main()
```

```python
import sys
from emit import Em
import order

NAME = "standalone__cross_network_dcn__recsys"
ROWB = 1664
WLAYER = 832 * ROWB
BLKW = 64 * ROWB
KSW = 32 * ROWB
PAGE = 4096
NPAGES = 39
MISC = NPAGES * PAGE
LDS_BYTES = 163840
FLAG_BASE = 8 << 20
XREG0 = 16 << 20
XREG_STRIDE = 8 << 20
WS_BYTES = 32 << 20
ACC, X0F, PX, Y, BC = 32, 96, 160, 192, 224
vFL = 0
vST = 5
vNON = 6
vW = 8
vXS = 12
vXR = 16
vTR = 20
vXL, vZ, vCB, vBIAS, vFLAG, vFST = 26, 27, 28, 29, 30, 31
vDELTA = Y + 31
vOR = vXR
WB = 192
sRET = 0
sT0W = 3
sMODE, sHEL, sOWN, sBASE = 32, 33, 34, 35
sJ, sC, sWV, sCQ = 36, 37, 38, 39
sW1K, sXS = 41, 47
sNON = 48
sBW, sBX = 50, 63
sXL = 76
sT0X = 80
sSTM = 94
sX2 = 93
NSTAMP = 32

class P:
    stamps = False; rt = False
    GB = 6; NB = 3; YP = 6; ORD = 2
    BUD = 5; CRITX = 1
    MINLA = 10; HILA = 40
    XLAT = 4; ACK = 4
    POLL_E0 = 53; POLL_L0 = 17; ORD0 = 0; POLL_E = 48; POLL_L = 14; POLLW = 3
    helper = True; touch = True; fast = True
    XSH = 1; HX0 = True; HELLO = 20
    HP1 = False; H2 = 13; H0 = 13
    PREW = 8; PREX = 2; L0B = 4; WDL = 2; SL3 = 5; XF = 0; SF = 0; T0 = 0; ACK0 = 8; TW = 5; CONS = 28; XNT = 0; WNT = 0; OT = 2; VW = 20; LSD = 0; YP1 = 6; T3 = 0; UW = 0; HD = 1; DEF = 0; HE = 1; OA = 1; BIN = 1; TDB = 2330; STOP = 999; NA = 4; WARM = 0; M6V = 1; SCAP = 1; LP = 1; O7 = 1; WB2 = 0; HW = 0; TBAT = 8; OD = 1; OF1 = 1; STU = 999; STN = 1; TD = 3320; VC10 = 35; MS = 1; CPF = True; OF = 1; dbg = False
    VC = 4
    fine = False

DEFER = []

class Multi(tuple):
    def __new__(cls, a, b):
        o = super().__new__(cls, a); o.b = b; return o
    def __eq__(self, other):
        return tuple(self) == tuple(other) or self.b == tuple(other)
    def __hash__(self):
        return hash(tuple(self))

class Op:
    def __init__(self, kind, fn, req=(), give=(), at=0.0, cost=1, pre=None, name=""):
        self.kind, self.fn, self.req, self.give, self.at, self.cost, self.pre = kind, fn, set(req), set(give), at, cost, pre
        self.done = False; self.name = name; self.predone = False

class Prog:
    def __init__(self, m6, tag):
        self.m6 = m6; self.tag = tag
        self.e = Em(); self.ops = []; self.tokens = set()
        self.icount = 0; self.used = 0
        self.last_mfma = {}; self.last_valu = {}
        self.nstamp = 0; self.names = []; self.st = None
    def A(self, s):
        self.e.A(s); self.icount += 1; self.used += 1
    def vmem(self, s, tag=None):
        self.e.vmem(s, tag); self.icount += 1; self.used += P.VC10/10.0
    def lds(self, s, tag=None):
        self.e.lds(s, tag); self.icount += 1; self.used += 1
        if self.st is not None and self.st.get("capm") is not None:
            self.e.lg[-1] = Multi(tag, ("capm", self.st["capm"])); self.st["capm"] = None
    def wait(self, vm=None, lg=None):
        if self.e.wait(vm, lg): self.icount += 1; self.used += 1
    def pad(self, since, need):
        n = need - (self.icount - since)
        while n > 0:
            k = min(n, 16)
            self.e.A(f"s_nop {k-1}"); self.icount += k; self.used += k; n -= k
    def valu(self, s, writes=(), acc_tile=None):
        if acc_tile is not None and acc_tile in self.last_mfma:
            self.pad(self.last_mfma[acc_tile], 12)
        self.A(s)
        for r in writes: self.last_valu[r] = self.icount
    def stamp(self, name):
        if P.stamps and self.nstamp < NSTAMP:
            i = self.nstamp; self.nstamp += 1; self.names.append(name)
            self.e.A(f"s_mem{'real' if P.rt else ''}time s[{sSTM}:{sSTM+1}]")
            self.e.wait_lg_all()
            self.e.A(f"v_writelane_b32 v{vST}, s{sSTM}, {i}")
            self.icount += 3
    def add(self, *a, **k):
        o = Op(*a, **k); self.ops.append(o); return o
    def run(self, o):
        assert not o.done
        for t in o.req: self.ensure(t)
        if o.pre and not o.predone:
            o.pre(); self.A("s_nop 0")
        o.done = True
        o.fn()
        self.tokens |= o.give
    def ensure(self, tok):
        if tok in self.tokens: return
        cand = [o for o in self.ops if tok in o.give and not o.done]
        assert cand, f"no producer for {tok}"
        self.run(cand[0])
    def pick(self, now, kind):
        for o in self.ops:
            if not o.done and o.kind == kind and o.at <= now and o.req <= self.tokens:
                return o
        return None

def xreg(m6, pos, ks, s):
    o = 8*ks + 4*s
    if pos == 0:
        r = PX + o; return f"v[{r}:{r+3}]", ("v", r)
    if pos == 7 and not m6:
        r = PX + 16 + o; return f"v[{r}:{r+3}]", ("v", r)
    idx = pos - 1 if (m6 or pos < 7) else pos - 2
    r = 16*idx + o
    return f"a[{r}:{r+3}]", ("a", r)

def unit_list(m6):
    U = []
    for l in range(3):
        L = []
        B = lambda pos, H: [(l, pos, 0, H), (l, pos, 1, H)]
        if m6:
            for pos in range(13): L += B(pos, 0)
        elif l == 0:
            for pos in range(P.L0B): L += B(pos, 0) + B(pos, 1)
            for pos in range(P.L0B, 13): L += B(pos, 0)
            for pos in range(P.L0B, 13): L += B(pos, 1)
        else:
            ORD = P.ORD0 if l == 1 else P.ORD
            L += B(0, 0)
            for pos in range(1, 1 + ORD): L += B(pos, 0)
            L += (B(7, 0) + B(0, 1) + B(7, 1)) if P.O7 else (B(0, 1) + B(7, 0) + B(7, 1))
            e1 = []
            for pos in range(1, 7): e1 += B(pos, 1)
            for pos in range(1 + ORD, 7): L += B(pos, 0)
            YP = P.YP1 if l == 1 else P.YP
            L += e1[:YP]
            for pos in range(8, 13): L += B(pos, 0)
            L += e1[YP:]
            for pos in range(8, 13): L += B(pos, 1)
        U += L
    return U

def tables(p):
    A = p.A
    for q in range(7):
        A(f"s_add_u32 s40, s{sJ}, {q}")
        A("s_sub_u32 s42, s40, 7"); A("s_min_u32 s40, s40, s42")
        A(f"s_mul_i32 s{sBW+q}, s40, {2*BLKW}")
        A(f"s_lshl_b32 s{sBX+q}, s40, 13")
    for q in range(6):
        if p.m6:
            A(f"s_mov_b32 s{sBW+7+q}, {(2*q+1)*BLKW}")
            A(f"s_mov_b32 s{sBX+7+q}, {(2*q+1)*4096}")
        else:
            A(f"s_add_u32 s40, s{sJ}, {q}")
            A("s_sub_u32 s42, s40, 6"); A("s_min_u32 s40, s40, s42")
            A("s_lshl_b32 s40, s40, 1"); A("s_or_b32 s40, s40, 1")
            A(f"s_mul_i32 s{sBW+7+q}, s40, {BLKW}")
            A(f"s_lshl_b32 s{sBX+7+q}, s40, 12")

def gen_member(m6):
    tag = "m6" if m6 else "mr"
    p = Prog(m6, tag); A = p.A; e = p.e
    U = unit_list(m6); NU = len(U); UL = NU // 3
    NB = P.NB
    XS0 = NPAGES - 4*NB
    halves = (0,) if m6 else (0, 1)
    own_pos = {0: 0, 1: 7}
    ool = []
    e.A(f"L_{tag}:")
    if P.stamps:
        p.nstamp = 3; p.names += ["start", "prew", "karg"]
    order0 = []
    for (l, pos, ks, H) in U[:UL]:
        if pos not in order0: order0.append(pos)
    n0 = {pos: n for n, pos in enumerate(order0)}
    free_pages = list(range(XS0))
    pending = []; page_of = {}
    st = {"next_w": 0, "landed": -1, "now": -1, "wl": 0}
    p.st = st
    def w_can():
        return st["next_w"] < min(NU, P.STOP*UL/52 + 8) and bool(free_pages)
    def w_pre():
        v = st["next_w"]
        l = U[v][0]
        if l != st["wl"]:
            st["wl"] = l
            p.ensure(("tab", 25))
            A(f"s_add_u32 s16, s16, {WLAYER}"); A("s_addc_u32 s17, s17, 0"); A(f"s_sub_u32 s18, s18, {WLAYER}")
            if l == 1:
                for i in range(4): A(f"v_add_u32 v{vW+i}, v{vDELTA}, v{vW+i}")
                p.tokens.add(("wswitch",))
        pg = free_pages.pop(0); page_of[v] = pg
        pending.append((pg, v))
        A(f"s_add_u32 m0, s{sW1K}, {pg*PAGE}")
        st["m0"] = ("w", v)
    def w_go():
        v = st["next_w"]
        l, pos, ks, H = U[v]
        so = sT0W + n0[pos] if l == 0 else sBW + pos
        p.vmem(f"buffer_load_dwordx4 v{vW+2*ks+H}, s[16:19], s{so} offen{' nt' if (P.WNT == 2 or (P.WNT == 1 and l == 0)) else ''} lds", ("w", v))
        st["next_w"] += 1
    def w_dma():
        assert w_can(), "no free page"
        w_pre(); A("s_nop 0"); w_go()
    def w_rd(v, i, u):
        s, t = i // 2, i % 2
        off = page_of[v]*PAGE + s*2048 + u*1024
        d = WB + (v & 1)*16 + i*4 + 2*u
        if off >> 16: p.ensure(("trr",))
        p.lds(f"ds_read_b64_tr_b16 a[{d}:{d+1}], v{vTR+2*(off >> 16)+t} offset:{off & 0xffff}", ("w", v, i))
    def x0_pre(n, sp):
        if P.MS:
            if st.get("m0") == ("x", n): return
            st["m0"] = ("x", n)
            A(f"s_add_u32 m0, s{sXS}, {(n % NB)*PAGE}")
        else:
            A(f"s_add_u32 m0, s{sXS}, {(n % NB)*PAGE + sp*1024}")
    def x0_go(n, sp):
        p.vmem(f"buffer_load_dwordx4 v{vXS+sp}, s[20:23], s{sT0X+n} offen{(' offset:%d' % (1024*sp)) if P.MS else ''}{' nt' if P.XNT else ''} lds", ("x0", n))
    for t_ in (("w", 0), ("x0", 0), ("x0", 0), ("x0", 0), ("bias",)) + ((("non",),) if P.HE else ()) + (("x0", 0), ("w", 1), ("w", 2), ("w", 3)) + (("x0", 1),)*4: e.vm.append(t_)
    for v in range(4):
        pg = free_pages.pop(0); page_of[v] = pg; pending.append((pg, v))
        assert pg == v and U[v][1:] == ((0, v, 0) if v < 2 else ((order0[1], v-2, 0) if m6 else (0, v-2, 1)))
    st["next_w"] = 4
    assert P.PREX >= 2
    if not P.HE: e.vm.append(("non",))
    if P.stamps:
        A("s_waitcnt lgkmcnt(0)"); A(f"v_writelane_b32 v{vST}, s96, 0"); A(f"v_writelane_b32 v{vST}, s100, 1"); A(f"v_writelane_b32 v{vST}, s98, 2")
    p.stamp("prebias")
    p.wait(vm=lambda t: t == ("bias",))
    A(f"v_lshlrev_b32 v{Y+2}, 16, v{Y}"); A(f"v_and_b32 v{Y+3}, 0xffff0000, v{Y}")
    A(f"v_add_f32 v{Y+2}, s45, v{Y+2}"); A(f"v_add_f32 v{Y+3}, s45, v{Y+3}")
    p.lds(f"ds_write_b64 v{Y+4}, v[{Y+2}:{Y+3}]", ("bw",))
    while st["next_w"] < P.PREW: w_dma()
    for n in range(2, P.PREX):
        for sp in range(4):
            x0_pre(n, sp)
            if sp == 0: A("s_nop 0")
            x0_go(n, sp)
    if P.WARM:
        A(f"v_mov_b32 v3, v{vCB}")
        for H in halves:
            A(f"s_movk_i32 s44, {128*H}")
            A(f"s_call_b64 s[{sRET}:{sRET+1}], L_{tag}_cap0")
        e.lg_done = len(e.lg)
    for q, ins in enumerate(DEFER):
        def f(ins=ins):
            for x in ins.split("|"): A(x)
        o = p.add("early", f, req=([("df", q-1)] if q else []),
                  give=[("df", q)] + ([("tab", 25)] if q == len(DEFER) - 1 else []) + ([("trr",)] if q == 15 else []), name="defer")
        if not P.DEF: p.run(o)

    first_use = {}; last_use = {}; last_unit = {}; first_unit = {}
    for v, (l, pos, ks, H) in enumerate(U):
        first_use.setdefault((l, pos), v); last_use[(l, pos)] = v; last_unit[(l, H)] = v; first_unit.setdefault((l, H), v)
    def f():
        p.wait(vm=lambda t: t == ("non",))
        A(f"v_readlane_b32 s{sNON}, v{Y+24}, 3"); A(f"v_readlane_b32 s{sNON+1}, v{Y+25}, 3")
        A("s_nop 3")
        A(f"s_or_b32 s{sNON}, s{sNON}, 1"); A(f"s_add_u32 s{sNON}, s{sNON}, 2"); A(f"s_add_u32 s{sNON+1}, s{sNON+1}, 1")
        A(f"s_add_u32 s{sHEL}, s{sHEL}, s{sNON+1}"); A(f"s_add_u32 s{sHEL}, s{sHEL}, 16")
        A(f"v_mov_b32 v{vNON}, s{sNON}"); A(f"v_mov_b32 v{vNON+1}, s{sHEL}")
        A(f"s_mov_b32 s44, {4*16384}")
        p.vmem(f"buffer_store_dwordx2 v[{vNON}:{vNON+1}], v{vFST}, s[24:27], s44 offen sc1", ("hello",))
        A("s_nop 0")
        A(f"v_mov_b32 v{vNON+1}, s{sNON+1}")
    o = p.add("vmemh", f, give=[("hello",)], at=0, name="hello")
    if P.HE: p.run(o)
    for n, pos in enumerate(order0):
        for sp in range(4):
            if n < P.PREX:
                p.tokens.add(("x0d", n, sp)); continue
            def pre(n=n, sp=sp):
                if n >= NB:
                    if st.get("capm") is not None:
                        e.wait_lg_all(); p.icount += 1; p.used += 1; st["capm"] = None
                    p.wait(lg=lambda t: (t[0] == "x" and t[1] == 0 and t[2] == order0[n-NB]) or t == ("capm", n-NB))
                x0_pre(n, sp)
            def f(n=n, sp=sp):
                x0_go(n, sp); st[("x0at", n)] = st["now"]
            p.add("vmem", f, pre=pre, req=([("x0rd", n-NB)] if n >= NB else []) + [("x0d", n, sp-1) if sp else ("x0d", n-1, 3)],
                  give=[("x0d", n, sp)], name=f"x0dma{n}").dl = first_use[(0, pos)] - P.XLAT - 1
        for s4 in range(4):
            def f(n=n, pos=pos, s4=s4):
                p.wait(vm=lambda t: t == ("x0", n))
                txt, _ = xreg(m6, pos, s4 // 2, s4 % 2)
                p.lds(f"ds_read_b128 {txt}, v{vXR+s4} offset:{(n % NB)*PAGE}", ("x", 0, pos, s4))
            give = [("x0f", n, s4)]
            if s4 == 3:
                give.append(("xi", 0, pos))
                if P.OT == 2: give.append(("x0rd", n))
            o = p.add("lds", f, req=[("x0d", n, 3)] + ([("x0f", n, s4-1)] if s4 else []), give=give, name=f"x0rd{n}")
            o.x0n = n
        def f(n=n):
            lab = f"L_{tag}_nc{n}"
            A(f"s_sub_u32 s44, s{sT0X+n}, s{sOWN}")
            A(f"s_cmp_le_u32 s44, {0 if m6 else 128}")
            A(f"s_cbranch_scc1 {lab}x")
            e.A(f"{lab}:")
            ool.extend([f"{lab}x:", f"v_add_u32 v3, {(n % NB)*PAGE}, v{vCB}", f"s_call_b64 s[{sRET}:{sRET+1}], L_{tag}_cap0", f"s_branch {lab}"])
            st["capm"] = n
        if P.OT != 2: p.add("chk", f, req=[("xi", 0, pos), ("hello",)] + ([("x0rd", n-1)] if n else []), give=[("x0rd", n)], cost=3, name="capchk")
    if P.OT == 2:
        assert order0 == list(range(13))
        for H in halves:
            k = 0
            for s4 in range(4):
                r = PX + 16*H + 4*s4
                ins = [f"v_permlane32_swap_b32 v{r}, v{r+2}", f"v_permlane32_swap_b32 v{r+1}, v{r+3}"]
                for q in range(4):
                    d = X0F + 32*H + 8*s4 + 2*q
                    ins += [f"v_lshlrev_b32 v{d}, 16, v{r+q}", f"v_and_b32 v{d+1}, 0xffff0000, v{r+q}"]
                for x in ins:
                    p.add("valu", lambda x=x: A(x), req=[("udone", last_use[(0, own_pos[H])])] + ([("cu", H, k-1)] if k else []),
                          give=[("cu", H, k)] + ([("capu", H, 31)] if k == 39 else []), name="capu").vdl = last_unit[(0, H)]
                    k += 1
    elif P.SCAP:
        for H in halves:
            for q in range(32):
                def f(q=q, H=H):
                    if q == 0 and H == 0:
                        e.wait_lg_all(); p.icount += 1; p.used += 1
                    B = X0F + 32*H
                    if q % 2 == 0: A(f"v_lshlrev_b32 v{B+q}, 16, v{B+16+q//2}")
                    else: A(f"v_and_b32 v{B+q}, 0xffff0000, v{B+16+q//2}")
                p.add("crit" if H == 0 else "valu", f, req=[("x0rd", 12)] + ([("capu", H, q-1)] if q else ([("capu", 0, 0)] if H else [])),
                      give=[("capu", H, q)], name="capu")
    def poll_load(off, key):
        A(f"s_mov_b32 s45, {off}")
        p.vmem(f"buffer_load_dwordx2 v[{vFL}:{vFL+1}], v{vFLAG}, s[24:27], s45 offen sc1", ("poll",) + key)
        st[("pollat",) + key] = st["now"]
    def poll_check(key, cmp_, mask):
        lab = f"L_{tag}_ok{key[0]}{key[1]}"; lp = f"L_{tag}_sp{key[0]}{key[1]}"
        if P.fine: p.stamp(f"chk{key}<")
        p.wait(vm=lambda t: t == ("poll",) + key)
        e.A(f"{lp}:")
        if cmp_ == "hello":
            A(f"v_subrev_u32 v2, s{sNON+1}, v{vFL+1}")
            A("v_lshrrev_b32 v2, 4, v2")
            A(f"v_xor_b32 v3, s{sNON}, v{vFL}")
            A("v_xor_b32 v2, 1, v2")
            A("v_or_b32 v2, v2, v3")
            A("v_cmp_eq_u32 vcc, 0, v2")
        else:
            A(cmp_)
        A("s_nop 1")
        A(f"s_and_b32 s44, vcc_lo, {mask}")
        A(f"s_cmp_eq_u32 s44, {mask}")
        A(f"s_cbranch_scc0 {lab}x")
        e.A(f"{lab}:")
        ool.extend([f"{lab}x:", "s_sleep 1", f"buffer_load_dwordx2 v[{vFL}:{vFL+1}], v{vFLAG}, s[24:27], s45 offen sc1",
                    "s_sub_u32 s46, s46, 1", "s_waitcnt vmcnt(0)", f"s_cbranch_scc0 {lp}", f"s_branch {lab}"])
        if P.fine: p.stamp(f"chk{key}>")
    p.add("vmemh", lambda: poll_load(4*16384, (9, 9)), req=[("hello",), ("tab", 25)], give=[("pi", 9, 9)], at=P.HELLO*UL/52.0, name="hpoll")
    def f():
        poll_check((9, 9), "hello", 0x7f)
        A(f"v_cmp_eq_u32 vcc, s{sHEL}, v{vFL+1}")
        A("s_nop 1")
        A("s_and_b32 s44, s44, vcc_lo")
        A("s_cmp_eq_u32 s44, 0x7f")
        A(f"s_cselect_b32 s{sMODE}, {1 if P.fast else 0}, 0")
        A(f"s_cselect_b32 s{sX2}, {0 if P.fast else XREG_STRIDE}, {XREG_STRIDE}")
    o = p.add("chk", f, req=[("pi", 9, 9)], give=[("mode",)], cost=3, name="hchk"); o.bh = (9, 9)

    def flag_store(idx, slow_touch):
        lab = f"L_{tag}_fl{idx}"
        A(f"s_mov_b32 s44, {idx*16384}")
        A(f"s_cmp_lg_u32 s{sMODE}, 0")
        A(f"s_cbranch_scc0 {lab}x")
        p.vmem(f"buffer_store_dwordx2 v[{vNON}:{vNON+1}], v{vFST}, s[24:27], s44 offen", ("fl", idx))
        e.A(f"{lab}j:")
        ool.extend([f"{lab}x:", f"buffer_store_dwordx2 v[{vNON}:{vNON+1}], v{vFST}, s[24:27], s44 offen sc1"])
        if slow_touch and P.touch:
            ool.extend([f"v_subrev_u32 v2, s{sBASE}, v{vXL}", "v_and_b32 v2, 0x1f0, v2", f"v_lshl_add_u32 v2, v2, 3, s{sBASE}",
                        f"s_add_u32 s40, s{sBX+own_pos[idx & 1]}, {XREG0 + XREG_STRIDE}",
                        "buffer_load_dword a224, v2, s[24:27], s40 offen sc1"])
        ool.append(f"s_branch {lab}j")
    def f():
        p.wait(vm=lambda t: t == ("x", 1, 6, 3))
        flag_store(5, False)
    p.add("vmemh", f, req=[("udone", first_use[(1, 6)])], give=[("cons",)], name="cons")
    p.add("vmemh", lambda: poll_load(5*16384, (8, 8)), req=[("cons",), ("ok", 0, 1)], give=[("pi", 8, 8)], at=UL + P.CONS*UL/52.0, name="cpoll")
    o = p.add("chk", lambda: poll_check((8, 8), f"v_cmp_eq_u64 vcc, s[{sNON}:{sNON+1}], v[{vFL}:{vFL+1}]", 0x7f),
              req=[("pi", 8, 8)], give=[("ok", 8, 8)], cost=3, name="cchk"); o.bh = (8, 8)
    prev_crit = None
    prev_bc = None
    for l in range(3):
        for H in halves:
            lu = last_unit[(l, H)]
            if (l, H) != (0, 0):
                for q in range(8):
                    def f(l=l, H=H, q=q):
                        p.lds(f"ds_read_b128 v[{BC+4*q}:{BC+4*q+3}], v{vBIAS} offset:{l*512 + (64*H + 8*q)*4}", ("bc", l, H, q // 4))
                    p.add("lds", f, req=[("udone", prev_bc)] + ([("bcr", l, H, q-1)] if q else []), give=[("bcr", l, H, q)],
                          at=max(0, first_unit[(l, H)] - 8), name="bc")
            prev_bc = first_unit[(l, H)]
            if l > 0:
                for q in range(32):
                    def f(H=H, q=q):
                        if q % 2 == 0: A(f"v_lshlrev_b32 v{Y+q}, 16, v{PX+16*H+q//2}")
                        else: A(f"v_and_b32 v{Y+q}, 0xffff0000, v{PX+16*H+q//2}")
                    p.add("valu", f, req=[prev_crit, ("wswitch",)] + ([("yp", l, H, q-1)] if q else []), give=[("yp", l, H, q)], name="yprep").vdl = lu
            for q in range(48):
                g3, k = q // 3, q % 3
                def f(l=l, H=H, g3=g3, k=k):
                    a, b, c_ = X0F + 32*H + 2*g3, Y + 2*g3, ACC + 32*H + 2*g3
                    tile = 2*H + g3 // 8
                    if k == 2:
                        d = PX + 16*H + g3
                        p.valu(f"v_cvt_pk_bf16_f32 v{d}, v{c_}, v{c_+1}", writes=[d])
                    elif l == 0:
                        p.valu(f"v_mul_f32 v{c_+k}, v{a+k}, v{c_+k}", acc_tile=tile)
                    else:
                        p.valu(f"v_fma_f32 v{c_+k}, v{a+k}, v{c_+k}, v{b+k}", acc_tile=tile)
                give = [("cr", l, H, q)] + ([("crit", l, H)] if q == 47 else [])
                req = [("udone", lu), ("udone", last_use[(l, own_pos[H])])]
                req += [("yp", l, H, 31)] if l else [("capu", H, 31) if P.SCAP else ("x0rd", 12)]
                if prev_crit: req.append(prev_crit)
                p.add("crit", f, req=req + ([("cr", l, H, q-1)] if q else []), give=give, at=lu+1.25, name="crit")
            prev_crit = ("crit", l, H)
            src = PX + 16*H
            if l < 2:
                for q in range(4):
                    def f(l=l, H=H, q=q, src=src):
                        lab = f"L_{tag}_st{l}{H}{q}"
                        ins = f"buffer_store_dwordx4 v[{src+4*q}:{src+4*q+3}], v{vXL}, s[24:27], s43 offen offset:{q*1024}"
                        if q == 0:
                            A(f"s_add_u32 s43, s{sBX+own_pos[H]}, {XREG0}")
                            if l == 1: A(f"s_add_u32 s43, s43, s{sX2}")
                        if l == 0:
                            p.vmem(ins + " sc1", ("st", l, H))
                        else:
                            A(f"s_cmp_lg_u32 s{sMODE}, 0")
                            A(f"s_cbranch_scc0 {lab}x")
                            p.vmem(ins, ("st", l, H))
                            e.A(f"{lab}j:")
                            ool.extend([f"{lab}x:", ins + " sc1", f"s_branch {lab}j"])
                        if q == 3: st[("stat", l, H)] = st["now"]
                    req = [("cr", l, H, 12*q+11), ("tab", 25)] + ([("st", l, H, q-1)] if q else [])
                    if l == 1: req += [("mode",), ("ok", 8, 8) if H == 0 else ("ok", 1, 0)]
                    if l == 0 and H == 1 and P.LSD: req.append(("xi", 1, P.LSD))
                    p.add("vmemh", f, req=req, give=[("st", l, H, q)], name="store")
                def touch(H):
                    A(f"v_subrev_u32 v2, s{sBASE}, v{vXL}")
                    A("v_and_b32 v2, 0x1f0, v2")
                    A(f"v_lshl_add_u32 v2, v2, 3, s{sBASE}")
                    A(f"s_add_u32 s40, s{sBX+own_pos[H]}, {XREG0}")
                    return "buffer_load_dword a224, v2, s[24:27], s40 offen sc1"
                if l == 0 and P.T0 == 2:
                    def f(l=l, H=H):
                        p.wait(vm=lambda t: t == ("st", l, H))
                        p.vmem(touch(H), ("tch", l, H))
                        st[("tat", l, H)] = st["now"]
                    o = p.add("vmemh", f, req=[("st", l, H, 3)], give=[("tch", l, H)], name="touch"); o.lh = (l, H)
                def f(l=l, H=H):
                    p.wait(vm=lambda t: t == ("st", l, H) or t == ("tch", l, H))
                    if l == 0 and P.T0 == 1:
                        p.vmem(touch(H), ("tch", l, H))
                    flag_store(2*l+H, l == 1)
                if l == 0 and P.T0 == 2:
                    o = p.add("vmemh", f, req=[("tch", l, H), ("mode",)], give=[("sent", l, H)], name="flag"); o.th = (l, H)
                else:
                    o = p.add("vmemh", f, req=[("st", l, H, 3), ("mode",)], give=[("sent", l, H)], name="flag"); o.lh = (l, H)
            else:
                for ch in range(8):
                    def f(H=H, ch=ch, src=src):
                        if ch == 0:
                            p.wait(lg=lambda t: t[0] == "or")
                            if H == 0:
                                A(f"v_subrev_u32 v{vOR}, s{sBASE}, v{vXL}"); A(f"v_add_u32 v{vOR}, s{sXS}, v{vOR}")
                        r = X0F + 2*ch if (P.OA and not m6) else 2
                        if H == 0 or r == 2:
                            A(f"v_xor_b32 v{r}, {ch}, v{vZ}"); A(f"v_lshl_add_u32 v{r}, v{r}, 4, v{vCB}")
                        p.lds(f"ds_write_b64 v{r}, v[{src+2*ch}:{src+2*ch+1}]", ("ow", H, ch))
                        st[("owat", H)] = st["now"]
                    p.add("lds", f, req=[("cr", 2, H, 6*ch+5)] + ([("ow", H, ch-1)] if ch else []), give=[("ow", H, ch)], cost=3, name="ow")
                dst = BC + 16*H
                for q in range(4):
                    def f(H=H, q=q, dst=dst):
                        p.wait(lg=lambda t: t[0] == "ow")
                        p.lds(f"ds_read_b128 v[{dst+4*q}:{dst+4*q+3}], v{vOR} offset:{q*1024}", ("or", H, q))
                        st[("orat", H)] = st["now"]
                    p.add("lds", f, req=[("ow", H, 7)] + ([("or", H, q-1)] if q else []), give=[("or", H, q)], name="or").oh = ("owat", H)
                for q in range(4):
                    def f(H=H, q=q, dst=dst):
                        p.wait(lg=lambda t: t == ("or", H, q))
                        if q == 0:
                            if H: A(f"s_add_u32 s43, s{sOWN}, 128")
                            else: A(f"s_mov_b32 s43, s{sOWN}")
                        p.vmem(f"buffer_store_dwordx4 v[{dst+4*q}:{dst+4*q+3}], v{vXS+q}, s[28:31], s43 offen offset:{1024*q*P.MS}{('', ' sc1', ' nt', ' sc0 sc1')[P.OF1 if H else P.OF]}", ("ost", H))
                    p.add("vmemh", f, req=[("or", H, 3)] + ([("ost", H, q-1)] if q else []), give=[("ost", H, q)], name="ostore").oh = ("orat", H)
    prev = None
    for l in (1, 2):
        for H in (0, 1):
            b = l - 1
            poss = list(range(1, 7) if H == 0 else range(7 if m6 else 8, 13))
            scale = UL / 52.0
            at = (l-1)*UL + (P.POLL_E0 if l == 1 else P.POLL_E)*scale if H == 0 else l*UL + (P.POLL_L0 if l == 1 else P.POLL_L)*scale
            sent = [("sent", b, h) for h in halves if h <= H]
            p.add("vmemh", lambda b=b, H=H: poll_load((2*b+H)*16384, (b, H)),
                  req=sent + ([("ok", b, 0)] if H else []), give=[("pi", b, H)], at=at, name="poll")
            o = p.add("chk", lambda b=b, H=H: poll_check((b, H), f"v_cmp_eq_u64 vcc, s[{sNON}:{sNON+1}], v[{vFL}:{vFL+1}]", 0x7f if H == 0 else 0x3f),
                      req=[("pi", b, H)], give=[("ok", b, H)], cost=3, name="chk"); o.bh = (b, H)
            for pos in poss:
                for q in range(4):
                    def f(l=l, pos=pos, q=q, first=(l == 2 and H == 0 and pos == 1 and q == 0)):
                        if first:
                            A(f"s_add_u32 s{sXL}, s{sXL}, s{sX2}"); A(f"s_addc_u32 s{sXL+1}, s{sXL+1}, 0")
                        txt, _ = xreg(m6, pos, q // 2, q % 2)
                        p.vmem(f"buffer_load_dwordx4 {txt}, v{vXL}, s[{sXL}:{sXL+3}], s{sBX+pos} offen offset:{q*1024}{(' sc1', '', ' nt')[P.XF]}", ("x", l, pos, q))
                    give = [("xl", l, pos, q)] + ([("xi", l, pos)] if q == 3 else [])
                    p.add("vmem", f, req=[("ok", b, H), ("udone", last_use[(l-1, pos)])] + ([prev] if prev else []), give=give, name="xld").dl = first_use[(l, pos)] + q // 2 - 1
                    prev = ("xl", l, pos, q)

    def gates():
        for o in p.ops:
            if o.done: continue
            if hasattr(o, "lh"): o.at = st.get(("stat",) + o.lh, 1e9) + (P.ACK0 if o.lh[0] == 0 else P.ACK)
            elif hasattr(o, "oh"): o.at = st.get(o.oh, 1e9) + 1 + P.OD
            elif hasattr(o, "th"): o.at = st.get(("tat",) + o.th, 1e9) + P.TW
            elif hasattr(o, "bh"): o.at = st.get(("pollat",) + o.bh, 1e9) + P.POLLW
            elif hasattr(o, "x0n"): o.at = st.get(("x0at", o.x0n), -2) + P.XLAT
    p.wait(lg=lambda t: t == ("bw",))
    p.stamp("setup")
    p.wait(vm=lambda t: t[0] == "w" and t[1] <= 1)
    A("s_barrier")
    st["landed"] = 1
    p.stamp("w01")
    for q in range(8):
        p.lds(f"ds_read_b128 v[{BC+4*q}:{BC+4*q+3}], v{vBIAS} offset:{32*q}", ("bc", 0, 0, q // 4))
        p.tokens.add(("bcr", 0, 0, q))
    for i in range(4):
        w_rd(0, i, 0); w_rd(0, i, 1)
    donated = False
    seen = set()
    plan = None
    for u, (l, pos, ks, H) in enumerate(U):
        e.c(f"---- unit {u}: layer {l} pos {pos} ks {ks} H {H}")
        st["now"] = u
        if u == int(P.STOP*UL/52): break
        if u % UL == 0: p.stamp(f"L{l}")
        elif not m6 and u == last_unit[(l, 0)] + 1: p.stamp(f"L{l}C")
        elif P.fine and u % UL in (8, 20): p.stamp(f"u{u}")
        elif u >= P.STU and (u - P.STU) % P.STN == 0 and not m6: p.stamp(f"u{u}")
        own = pos == 0 or (pos == 7 and not m6)
        if l == 0 or not own: p.ensure(("xi", l, pos))
        else: p.ensure(("cr", l-1, 0 if pos == 0 else 1, 24*ks + 23))
        first = (l, H) not in seen
        seen.add((l, H))
        if first:
            if l > 0: p.ensure(("crit", l-1, H))
            p.ensure(("bcr", l, H, 7))
        need_bar = u + 1 < NU and u + 1 > st["landed"]
        upto = -1
        if need_bar:
            upto = min(u + (2 if u < 4 else P.GB), NU - 1)
            assert plan is None
            while st["next_w"] <= upto: w_dma()
        xs = {("x", l, pos, 2*ks), ("x", l, pos, 2*ks+1)}
        def do_bar():
            A("s_barrier")
            st["landed"] = upto
            for it in list(pending):
                if it[1] <= u - 1:
                    free_pages.append(it[0]); pending.remove(it)
        p.wait(vm=lambda t: (t[0] == "w" and t[1] <= upto) or (l > 0 and t in xs),
               lg=lambda t: (t[0] == "w" and t[1] == u) or (l == 0 and t in xs) or (first and t[:3] == ("bc", l, H)))
        if need_bar and not P.BIN: do_bar()
        if not donated and all(("x0rd", n_) in p.tokens for n_ in range(13)):
            e.wait_lg_all(); p.icount += 1; st["capm"] = None
            for w in range(4):
                for i in range(1, NB): pending.append((XS0 + w*NB + i, u))
            donated = True
        for i in range(4):
            s, t = i // 2, i % 2
            now = u + i/4.0
            tile = 2*H + t
            txt, (kind, r) = xreg(m6, pos, ks, s)
            if kind == "v":
                p.pad(max(p.last_valu.get(x, -99) for x in range(r, r+4)), 2)
            a0 = WB + (u & 1)*16 + i*4
            acc = f"v[{ACC+16*tile}:{ACC+16*tile+15}]"
            cin = f"v[{BC+16*t}:{BC+16*t+15}]" if (first and s == 0) else acc
            A(f"v_mfma_f32_32x32x16_bf16 {acc}, a[{a0}:{a0+3}], {txt}, {cin}")
            p.last_mfma[tile] = p.icount
            p.used = 0
            if i == 3: p.tokens.add(("udone", u))
            if need_bar and P.BIN and i == 0:
                do_bar(); p.used += 2
            gates()
            if plan is not None:
                if plan == "w": w_go()
                else: p.run(plan)
                plan = None
            if u + 1 < NU:
                td = [int(c) for c in str(P.TDB if (need_bar and P.BIN) else P.TD).zfill(4)]
                for k in range(sum(td[:i]), sum(td[:i+1])): w_rd(u+1, k // 2, k % 2)
            bud = P.BUD - (1 if i == 3 else 0)
            third = False
            if i == 0:
                o = p.pick(now + 0.25, "vmem")
                dls = ([o.dl] if o is not None else []) + ([st["next_w"] - P.GB - P.WDL] if w_can() else [])
                third = bool(dls) and min(dls) - u < P.SL3
                if P.T3 and w_can() and len(free_pages) >= P.T3 and p.pick(now, "crit") is None: third = True
            if m6 and P.M6V and i == 0 and u < UL: third = True
            if i in (1, 2) or third:
                nxt = now + 0.25
                la = st["next_w"] - u
                o = p.pick(nxt, "vmemh")
                urgent = p.pick(now, "crit") is not None
                if o is None:
                    o = p.pick(nxt, "vmem")
                    if w_can():
                        wdl = st["next_w"] - P.GB - P.WDL
                        if o is not None:
                            if wdl < o.dl: o = "w"
                        elif la < P.MINLA: o = "w"
                        elif not urgent or (P.UW and i == 1):
                            backlog = p.pick(now, "valu") is not None or p.pick(now, "lds") is not None
                            if not (backlog and la >= P.HILA and i == 2): o = "w"
                plan = o
                bud -= 1 if (o == "w" or (o is not None and o.pre)) else 0
            nl = 0
            o = p.pick(now, "valu")
            if o is not None and hasattr(o, "vdl") and o.vdl - now < P.VW:
                left = sum(1 for x in p.ops if not x.done and getattr(x, "vdl", None) == o.vdl)
                st["vacc"] = st.get("vacc", 0.0) + left / max(1.0, 4*(o.vdl - now))
                while st["vacc"] >= 1:
                    o = p.pick(now, "valu")
                    if o is None or not hasattr(o, "vdl"): break
                    p.run(o); st["vacc"] -= 1
            for _ in range(P.DEF):
                o = p.pick(now, "early")
                if o is not None:
                    u0 = p.used; p.run(o); p.used = u0
            while True:
                rem = bud - p.used
                if P.LP:
                    o = p.pick(now, "lds")
                    if o is not None and o.name[:2] in ("x0", "bc") and rem + 1 >= 1 and nl < 2:
                        p.run(o); nl += 1; continue
                o = p.pick(now, "crit")
                if o is not None and rem + P.CRITX >= 1:
                    p.run(o); continue
                got = False
                for kind_ in ("chk", "lds", "early", "valu"):
                    o = p.pick(now, kind_)
                    if o is not None and rem >= 1 and o.cost <= rem + 2:
                        p.run(o); got = True; break
                if not got: break
            if m6 and P.M6V and i == 3 and u < UL:
                o = p.pick(now + 0.25, "vmem")
                if o is not None: p.run(o)
                elif w_can(): w_dma()
            if plan == "w": w_pre()
            elif plan is not None and plan.pre:
                plan.pre(); plan.predone = True
    st["now"] = NU
    p.stamp("end")
    for o in p.ops:
        if not o.done and P.STOP == 999: p.run(o)
    p.stamp("flush")
    if P.stamps:
        A("s_waitcnt vmcnt(0)")
        p.stamp("drain")
        while p.nstamp < NSTAMP:
            e.A(f"v_writelane_b32 v{vST}, s{sSTM}, {p.nstamp}"); p.nstamp += 1
        stamp_store(e)
    if P.dbg and not m6:
        A("s_waitcnt vmcnt(0)")
        A("s_memtime s[40:41]"); A("s_memrealtime s[42:43]"); A("s_waitcnt lgkmcnt(0)")
        A("s_sub_u32 s40, s40, s96"); A("s_sub_u32 s42, s42, s100")
        A("s_and_b32 s44, s2, 0xf8"); A(f"s_or_b32 s44, s44, s{sWV}"); A("s_cmp_lg_u32 s44, 0"); A("s_cbranch_scc1 L_end")
        A("s_lshl_b32 s44, s2, 3")
        A("v_mov_b32 v2, s40"); A("v_mov_b32 v3, s42"); A("v_mov_b32 v4, s44")
        A("global_store_dwordx2 v4, v[2:3], s[98:99]")
    A("s_endpgm")
    for x in ool: e.A(x)
    for H in (halves if P.OT != 2 else ()):
        e.A(f"L_{tag}_cap{H}:")
        if H == 0 and not m6:
            e.A("s_cmp_lg_u32 s44, 0"); e.A(f"s_cbranch_scc1 L_{tag}_cap1")
        for ch in range(8):
            e.A(f"v_xor_b32 v2, {ch}, v{vZ}"); e.A("v_lshl_add_u32 v2, v2, 4, v3")
            if P.SCAP: e.A(f"ds_read_b64 v[{X0F+32*H+16+2*ch}:{X0F+32*H+17+2*ch}], v2")
            else: e.A(f"ds_read_b64 v[{Y+2*ch}:{Y+2*ch+1}], v2")
        for q in range(0 if P.SCAP else 16):
            if q % 2 == 0: e.A(f"s_waitcnt lgkmcnt({7 - q//2})")
            e.A(f"v_lshlrev_b32 v{X0F+32*H+2*q}, 16, v{Y+q}")
            e.A(f"v_and_b32 v{X0F+32*H+2*q+1}, 0xffff0000, v{Y+q}")
        e.A(f"s_setpc_b64 s[{sRET}:{sRET+1}]")
    return e.text(), p.names

def stamp_store(e):
    A = e.A
    A(f"s_cmp_lg_u32 s{sWV}, 0"); A("s_cbranch_scc1 L_end")
    A("v_mbcnt_lo_u32_b32 v2, -1, 0"); A("v_mbcnt_hi_u32_b32 v2, -1, v2")
    A("v_lshlrev_b32 v2, 2, v2"); A("s_lshl_b32 s44, s2, 8")
    A(f"buffer_store_dword v{vST}, v2, s[24:27], s44 offen")

def gen_helper():
    e = Em(); A = e.A
    A("L_helper:")
    A("s_waitcnt lgkmcnt(0)")
    A("s_mov_b32 s20, s4"); A("s_mov_b32 s21, s5"); A("s_mov_b32 s16, s6"); A("s_mov_b32 s17, s7")
    A("s_mov_b32 s24, s14"); A("s_mov_b32 s25, s15"); A(f"s_mov_b32 s26, {WS_BYTES}"); A("s_mov_b32 s27, 0x20000")
    if P.WB2:
        A(f"s_lshl_b32 s43, s{sC}, 2"); A(f"s_add_u32 s43, s43, s{sWV}"); A("s_lshl_b32 s43, s43, 7"); A(f"s_add_u32 s43, s43, {FLAG_BASE + 3*16384}")
        A("v_and_b32 v12, 7, v1"); A("v_lshl_add_u32 v12, v12, 3, s43")
        A("buffer_load_dwordx2 v[14:15], v12, s[24:27], 0 offen sc1")
    n = [0]
    def stamp():
        if P.stamps:
            A(f"s_mem{'real' if P.rt else ''}time s[{sSTM}:{sSTM+1}]"); A("s_waitcnt lgkmcnt(0)")
            A(f"v_writelane_b32 v{vST}, s{sSTM}, {n[0]}"); n[0] += 1
    stamp()
    def item_loop(name, first, last, stride, start_expr, depth):
        for x in start_expr: A(x)
        A(f"s_add_u32 s50, s50, {first}")
        A(f"L_{name}:")
        A(f"s_cmp_ge_u32 s50, {last}"); A(f"s_cbranch_scc1 L_{name}_done")
        A("s_mul_i32 s51, s50, 5042"); A("s_lshr_b32 s51, s51, 16")
        A("s_mul_i32 s52, s51, 13"); A("s_sub_u32 s52, s50, s52")
        A("s_mul_i32 s53, s51, 5042"); A("s_lshr_b32 s53, s53, 16")
        A("s_mul_i32 s54, s53, 13"); A("s_sub_u32 s54, s51, s54")
        A("s_lshr_b32 s55, s52, 1")
        A("s_sub_u32 s56, s54, 1"); A("s_max_i32 s56, s56, 0")
        A("s_add_u32 s56, s56, s55")
        A("s_cmp_ge_u32 s56, 7"); A("s_cselect_b32 s57, 7, 0"); A("s_sub_u32 s56, s56, s57")
        A("s_lshl_b32 s56, s56, 1")
        A("s_sub_u32 s57, s54, 7"); A("s_max_i32 s57, s57, 0")
        A("s_cmp_eq_u32 s55, 6"); A("s_cselect_b32 s58, 0, s55")
        A("s_add_u32 s57, s57, s58")
        A("s_cmp_ge_u32 s57, 6"); A("s_cselect_b32 s58, 6, 0"); A("s_sub_u32 s57, s57, s58")
        A("s_lshl_b32 s57, s57, 1"); A("s_add_u32 s57, s57, 1")
        A("s_cmp_eq_u32 s54, 1"); A("s_cselect_b32 s56, s57, s56")
        A("s_cmp_ge_u32 s54, 8"); A("s_cselect_b32 s56, s57, s56")
        A(f"s_mul_i32 s56, s56, {BLKW}")
        A(f"s_mul_i32 s53, s53, {WLAYER}")
        A("s_lshl_b32 s52, s52, 7")
        A("s_add_u32 s40, s56, s53"); A("s_add_u32 s40, s40, s52")
        A("buffer_load_dword v8, v2, s[16:19], s40 offen" + (" nt" if (P.WNT == 2 or (P.WNT == 3 and name == "hp2")) else ""))
        A(f"s_waitcnt vmcnt({depth})")
        A(f"s_add_u32 s50, s50, {stride}")
        A(f"s_branch L_{name}")
        A(f"L_{name}_done:")
    if P.CPF:
        A("s_getpc_b64 s[40:41]")
        A("L_pc:")
        A(f"s_sub_u32 s40, s40, L_pc-{NAME}_kernel"); A("s_subb_u32 s41, s41, 0")
        A(f"s_lshl_b32 s42, s{sCQ}, 2"); A(f"s_add_u32 s42, s42, s{sWV}"); A("s_lshl_b32 s42, s42, 13")
        A(f"s_cmp_ge_u32 s42, L_pc-{NAME}_kernel"); A("s_cbranch_scc1 L_cpf_done")
        A("v_lshl_add_u32 v3, v1, 7, s42")
        A(f"v_min_u32 v3, L_pc-{NAME}_kernel, v3")
        A("global_load_dword v9, v3, s[40:41]")
        A("L_cpf_done:")
    if P.helper:
        A("v_mul_u32_u24 v2, 1664, v1")
        if P.HX0:
            if P.HW: A("s_waitcnt vmcnt(0)")
            if P.OT == 2:
                hv = [order.pack(r) for r in order.HS]
                A(f"s_mov_b32 s40, {hv[0]:#x}")
                for c in range(1, 4):
                    A(f"s_cmp_eq_u32 s{sCQ}, {c}"); A(f"s_cselect_b32 s40, {hv[c]:#x}, s40")
                for n_ in range(6):
                    A(f"s_bfe_u32 s42, s40, {(4 << 16) | (4*n_):#x}"); A(f"s_add_u32 s42, s42, s{sX2}")
                    A("s_sub_u32 s43, s42, 6"); A("s_min_u32 s42, s42, s43")
                    A("s_lshl_b32 s42, s42, 8"); A(f"s_add_u32 s{sT0X+n_}, s42, 128")
            elif P.OT: order.emit_table(A, sT0X, sJ, sCQ, sX2, 40, 41, 42, 43, helper=True)
            A(f"s_and_b32 s44, s{sWV}, 1"); A(f"s_lshl_b32 s45, s{sC}, 1"); A("s_add_u32 s44, s44, s45")
            A(f"s_mul_i32 s44, s44, {64*ROWB}")
            nb_ = 6 if P.OT == 2 else 13 - P.NA
            for r in range((nb_ + 1) // 2):
                A(f"s_cmp_ge_u32 s{sWV}, 2")
                A(f"s_cselect_b32 s45, s{sT0X+min(2*r+1, nb_-1)}, s{sT0X+2*r}")
                A("s_add_u32 s40, s44, s45")
                A("buffer_load_dword v8, v2, s[20:23], s40 offen" + (" nt" if P.XNT else ""))
        if P.OT == 2 and P.HD:
            A(f"s_lshl_b32 s42, s{sCQ}, 2"); A(f"s_add_u32 s42, s42, s{sWV}")
            A("s_cmp_ge_u32 s42, 12"); A("s_cbranch_scc1 L_hd_done")
            A("s_or_b32 s43, s42, 1"); A(f"s_mul_i32 s43, s43, {BLKW}"); A("s_lshl_b32 s42, s42, 7"); A("s_add_u32 s40, s43, s42")
            A("buffer_load_dword v8, v2, s[16:19], s40 offen")
            A("L_hd_done:")
        if P.HP1:
            item_loop("hp1", 13*P.H0, 507, 128, [f"s_lshl_b32 s50, s{sC}, 2", f"s_add_u32 s50, s50, s{sWV}"], 1)
        if P.stamps: A("s_waitcnt vmcnt(0)")
        stamp()
        item_loop("hp2", 13*P.H2, 507, 16, [f"s_lshl_b32 s50, s{sCQ}, 2", f"s_add_u32 s50, s50, s{sWV}"], 1)
        A("s_waitcnt vmcnt(0)")
        if P.WB2:
            A("v_readfirstlane_b32 s48, v14"); A("v_readfirstlane_b32 s49, v15"); A("s_nop 3")
            A("s_or_b32 s48, s48, 1"); A("s_add_u32 s48, s48, 2"); A("s_add_u32 s49, s49, 1")
            A("s_mov_b32 s46, 0x400")
            A("L_hw:")
            A("buffer_load_dwordx2 v[14:15], v12, s[24:27], 0 offen sc1"); A("s_waitcnt vmcnt(0)")
            A("v_cmp_eq_u64 vcc, s[48:49], v[14:15]"); A("s_nop 1")
            A("s_and_b32 s44, vcc_lo, 0x3f"); A("s_cmp_eq_u32 s44, 0x3f"); A("s_cbranch_scc1 L_hw_ok")
            A("s_sleep 4"); A("s_sub_u32 s46, s46, 1"); A("s_cbranch_scc0 L_hw")
            A("L_hw_ok:")
            A("s_barrier")
            A(f"s_cmp_lg_u32 s{sWV}, 0"); A("s_cbranch_scc1 L_hw_end")
            if P.WB2 == 2:
                A(f"s_cmp_lg_u32 s{sCQ}, 3"); A("s_cbranch_scc1 L_hw_end")
            A("buffer_wbl2 sc1"); A("s_waitcnt vmcnt(0)")
            A("L_hw_end:")
    stamp()
    if P.stamps:
        while n[0] < NSTAMP:
            A(f"v_writelane_b32 v{vST}, s{sSTM}, {n[0]}"); n[0] += 1
        stamp_store(e)
    A("s_endpgm")
    return e.text()

HEADER = """; DCN-V2 cross network, 3 layers fused in one launch (generated by gen/gen8.py; hand-designed schedule).
;  x_{l+1} = x0 * (x_l W_l + b_l) + x_l,   x0: 4096x832 bf16, W: 3x832x832 bf16, fp32 accumulation.
; Work split: 32 clusters of 128 rows; workgroup id -> (cluster = 8*(id>>6) + (id&7), member = (id>>3)&7).
;  members 0..5 own 128 output columns, member 6 owns the last 64, member 7 only prefetches into the L2.
;  A wave owns 32 rows: x fragments live in registers, W streams through an LDS ring (LDS-DMA + transposing reads).
; Between layers the members of a cluster exchange their bf16 pieces through d_ws (MFMA fragment order) and
;  signal with per-wave flag words.  The flag value is a tag derived from the word the previous launch left in
;  d_ws (used only to tell this launch's flags from stale ones).  Write-through (sc1) stores and sc1 loads are
;  used unless a run-time check of the XCC ids shows that the whole cluster shares one L2."""

def main():
    out = sys.argv[1]
    for a in sys.argv[2:]:
        a = a.lstrip("-")
        if "=" in a:
            k, v = a.split("="); assert hasattr(P, k), k; setattr(P, k, type(getattr(P, k))(int(v)))
        else:
            assert hasattr(P, a), a; setattr(P, a, True)
    order.select(P.NA)
    k = NAME + "_kernel"
    T = []
    A = T.append
    A('.amdgcn_target "amdgcn-amd-amdhsa--gfx950"')
    A(".text"); A(f".globl {k}"); A(".p2align 8"); A(f".type {k},@function"); A(f"{k}:")
    NB = P.NB; XS0 = NPAGES - 4*NB
    A("s_load_dwordx8 s[4:11], s[0:1], 0")
    A("s_load_dwordx2 s[14:15], s[0:1], 40")
    if P.stamps: A(f"s_mem{'real' if P.rt else ''}time s[96:97]")
    if P.dbg:
        A("s_load_dwordx2 s[98:99], s[0:1], 32"); A("s_memtime s[96:97]"); A("s_memrealtime s[100:101]")
    A("s_cmp_ge_u32 s2, 256"); A("s_cbranch_scc1 L_end")
    A("v_lshrrev_b32 v2, 6, v0"); A("v_and_b32 v1, 63, v0")
    A("s_and_b32 s44, s2, 7")
    A(f"v_readfirstlane_b32 s{sWV}, v2")
    A(f"s_lshr_b32 s{sCQ}, s2, 6")
    A(f"s_bfe_u32 s{sJ}, s2, 0x30003")
    A(f"s_lshl_b32 s{sC}, s{sCQ}, 3"); A(f"s_add_u32 s{sC}, s{sC}, s44")
    A(f"s_lshl_b32 s{sX2}, s44, 1" if P.XSH else f"s_mov_b32 s{sX2}, 0")
    if P.OT == 2:
        A(f"s_lshl_b32 s{sT0X}, s{sJ}, 8")
        A(f"s_sub_u32 s45, s44, 6"); A(f"s_min_u32 s{sX2}, s44, s45")
        if not P.XSH: A(f"s_mov_b32 s{sX2}, 0")
    elif P.NA == 7:
        A(f"s_lshl_b32 s45, s{sCQ}, 1"); A(f"s_add_u32 s45, s45, s{sJ}"); A("s_sub_u32 s46, s45, 7"); A("s_min_u32 s45, s45, s46")
    else:
        A(f"s_lshr_b32 s45, s{sJ}, 1"); A(f"s_add_u32 s45, s45, s{sCQ}"); A("s_and_b32 s45, s45, 3")
    if P.OT != 2:
        A("s_lshl_b32 s45, s45, 1"); A(f"s_add_u32 s45, s45, s{sX2}")
        A("s_sub_u32 s46, s45, 13"); A("s_min_u32 s45, s45, s46"); A("s_sub_u32 s46, s45, 13"); A("s_min_u32 s45, s45, s46")
        A(f"s_lshl_b32 s{sT0X}, s45, 7")
    A(f"s_mov_b32 s18, {3*WLAYER}"); A("s_mov_b32 s19, 0x20000"); A(f"s_mov_b32 s22, {4096*ROWB}"); A("s_mov_b32 s23, 0x20000")
    A(f"s_cmp_eq_u32 s{sJ}, 7"); A("s_cbranch_scc1 L_helper")
    A(f"s_lshl_b32 s43, s{sC}, 2"); A(f"s_add_u32 s43, s43, s{sWV}"); A(f"s_mul_i32 s46, s43, {32*ROWB}")
    A("v_lshrrev_b32 v2, 3, v1"); A("v_and_b32 v3, 7, v1"); A("v_lshrrev_b32 v4, 4, v1")
    A("v_mul_u32_u24 v6, 1664, v2"); A("v_add_u32 v6, s46, v6")
    A("v_xor_b32 v7, v4, v3"); A(f"v_lshl_add_u32 v{vXS}, v7, 4, v6")
    A("v_xor_b32 v7, 4, v7"); A(f"v_lshl_add_u32 v{vXS+1}, v7, 4, v6"); A(f"v_add_u32 v{vXS+1}, {8*ROWB - 1024}, v{vXS+1}")
    A(f"v_add_u32 v{vXS+2}, {16*ROWB - 2048}, v{vXS}"); A(f"v_add_u32 v{vXS+3}, {16*ROWB - 2048}, v{vXS+1}")
    A(f"s_mul_i32 s{sXS}, s{sWV}, {NB*PAGE}"); A(f"s_add_u32 s{sXS}, s{sXS}, {XS0*PAGE}")
    A(f"s_lshl_b32 s{sOWN+10}, s{sJ}, 8")
    A(f"s_lshl_b32 s{sW1K}, s{sWV}, 10")
    A("v_and_b32 v5, 1, v4"); A("v_lshlrev_b32 v5, 2, v5"); A("v_xor_b32 v5, v5, v3")
    A("v_lshl_add_u32 v5, v5, 4, s44")
    A(f"s_lshr_b32 s42, s{sWV}, 1"); A("s_lshl_b32 s42, s42, 4"); A(f"s_and_b32 s40, s{sWV}, 1"); A("s_lshl_b32 s48, s40, 2")
    A("s_add_u32 s42, s42, s48")
    A("v_lshrrev_b32 v7, 5, v1")
    A("v_and_b32 v6, 3, v2"); A("v_lshl_add_u32 v6, v7, 3, v6"); A("v_add_u32 v6, s42, v6")
    A("v_mul_u32_u24 v6, 1664, v6"); A(f"v_add_u32 v{vW}, v5, v6")
    A(f"v_add_u32 v{vW+1}, 128, v{vW}"); A(f"v_add_u32 v{vW+2}, {KSW}, v{vW}"); A(f"v_add_u32 v{vW+3}, {KSW+128}, v{vW}")
    A(f"v_mul_i32_i24 v{vDELTA}, 0xffffe600, v7"); A("s_mul_i32 s40, s40, 6656"); A(f"v_add_u32 v{vDELTA}, s40, v{vDELTA}")
    A(f"s_mul_i32 s42, s{sT0X}, 832")
    A(f"s_mov_b32 m0, s{sW1K}")
    A(f"s_min_u32 s45, s{sWV}, 2")
    A(f"s_mul_i32 s40, s45, {ROWB}"); A("s_add_u32 s40, s40, s44")
    A("v_lshlrev_b32 v6, 2, v1")
    A(f"s_mov_b32 s34, {3*ROWB}"); A("s_mov_b32 s35, 0x20000")
    if P.stamps: A(f"s_mem{'real' if P.rt else ''}time s[100:101]")
    A("s_waitcnt lgkmcnt(0)")
    if P.stamps: A(f"s_mem{'real' if P.rt else ''}time s[98:99]")
    A("s_mov_b32 s16, s6"); A("s_mov_b32 s17, s7"); A("s_mov_b32 s20, s4"); A("s_mov_b32 s21, s5")
    A(f"buffer_load_dwordx4 v{vW}, s[16:19], s42 offen lds")
    A(f"s_mov_b32 m0, s{sXS}"); A("s_mov_b32 s32, s8"); A("s_mov_b32 s33, s9")
    for sp in range(3):
        A(f"buffer_load_dwordx4 v{vXS+sp}, s[20:23], s{sT0X} offen offset:{1024*sp} lds")
    A(f"buffer_load_dword v{Y}, v6, s[32:35], s40 offen")
    for d, b_, size in ((24, 14, WS_BYTES), (28, 10, 4096*ROWB)):
        A(f"s_mov_b32 s{d}, s{b_}"); A(f"s_mov_b32 s{d+1}, s{b_+1}"); A(f"s_mov_b32 s{d+2}, {size}"); A(f"s_mov_b32 s{d+3}, 0x20000")
    if P.HE:
        A("s_lshl_b32 s40, s43, 7"); A(f"s_add_u32 s40, s40, {FLAG_BASE}")
        A("v_min_u32 v5, 5, v1"); A("v_lshl_add_u32 v5, v5, 14, s40")
        A(f"buffer_load_dwordx2 v[{Y+24}:{Y+25}], v5, s[24:27], 0 offen sc1")
    A(f"s_add_u32 s{sXL}, s14, {XREG0}"); A(f"s_addc_u32 s{sXL+1}, s15, 0"); A(f"s_mov_b32 s{sXL+2}, {XREG_STRIDE}"); A(f"s_mov_b32 s{sXL+3}, 0x20000")
    vals = [order.pack(r) for r in (order.TS if P.OT == 2 else order.T)]
    for w_, dst in ((0, 48), (1, 49)):
        A(f"s_mov_b32 s{dst}, {(vals[0] >> (32*w_)) & 0xffffffff:#x}")
    for c in range(1, 4):
        A(f"s_cmp_eq_u32 s{sCQ}, {c}")
        for w_, dst in ((0, 48), (1, 49)):
            A(f"s_cselect_b32 s{dst}, {(vals[c] >> (32*w_)) & 0xffffffff:#x}, s{dst}")
    t = Y + 16
    A(f"v_lshlrev_b32 v{t}, 2, v1"); A(f"v_lshrrev_b64 v[{t}:{t+1}], v{t}, s[48:49]"); A(f"v_and_b32 v{t}, 15, v{t}")
    if P.OT == 2:
        A(f"v_add3_u32 v{t+1}, v{t}, s{sX2}, -1"); A(f"v_subrev_u32 v{t+2}, 6, v{t+1}"); A(f"v_min_u32 v{t+1}, v{t+1}, v{t+2}")
        A(f"v_add3_u32 v{t+1}, v{t+1}, s{sJ}, 1"); A(f"v_subrev_u32 v{t+2}, 7, v{t+1}"); A(f"v_min_u32 v{t+1}, v{t+1}, v{t+2}")
        A(f"v_lshlrev_b32 v{t+1}, 1, v{t+1}")
        A(f"s_sub_u32 s40, s{sJ}, s{sX2}"); A("s_add_u32 s48, s40, 6"); A("s_min_u32 s40, s40, s48")
        A(f"s_cmp_eq_u32 s{sJ}, 6"); A("s_cselect_b32 s40, 5, s40"); A(f"s_cselect_b32 s{sMODE}, 0, s{sJ}")
        A(f"v_subrev_u32 v{t+2}, 8, v{t}")
        A(f"v_cmp_le_i32 vcc, s40, v{t+2}")
        A(f"v_mov_b32 v{t+3}, s40"); A("s_nop 0")
        A(f"v_addc_co_u32 v{t+2}, vcc, 0, v{t+2}, vcc")
        A(f"v_cmp_eq_u32 vcc, 7, v{t}"); A("s_nop 1")
        A(f"v_cndmask_b32 v{t+2}, v{t+2}, v{t+3}, vcc")
        A(f"v_add_u32 v{t+2}, s{sX2}, v{t+2}"); A(f"v_subrev_u32 v{t+3}, 6, v{t+2}"); A(f"v_min_u32 v{t+2}, v{t+2}, v{t+3}")
        A(f"v_lshl_or_b32 v{t+2}, v{t+2}, 1, 1")
        A(f"v_cmp_gt_u32 vcc, 7, v{t}"); A("s_nop 1")
        A(f"v_cndmask_b32 v{t}, v{t+2}, v{t+1}, vcc")
    else:
        if P.NA == 7:
            A(f"v_add_u32 v{t+1}, s{sJ}, v{t}"); A(f"v_subrev_u32 v{t+2}, 7, v{t+1}"); A(f"v_min_u32 v{t+1}, v{t+1}, v{t+2}")
        else:
            A(f"s_lshr_b32 s40, s{sJ}, 1"); A(f"v_add_u32 v{t+1}, s40, v{t}"); A(f"v_and_b32 v{t+1}, 3, v{t+1}")
        A(f"v_cmp_gt_u32 vcc, {P.NA}, v{t}")
        A(f"s_cmp_eq_u32 s{sJ}, 6"); A(f"s_cselect_b32 s{sMODE}, 0, s{sJ}")
        A(f"v_cndmask_b32 v{t}, v{t}, v{t+1}, vcc")
        A(f"v_lshl_add_u32 v{t}, v{t}, 1, s{sX2}")
        for _ in range(2):
            A(f"v_subrev_u32 v{t+1}, 13, v{t}"); A(f"v_min_u32 v{t}, v{t}, v{t+1}")
    A(f"v_lshlrev_b32 v{t}, 7, v{t}"); A(f"v_mul_u32_u24 v{t+1}, 832, v{t}")
    D1 = [f"v_add_u32 v{t+2}, s{sJ}, v1", f"v_subrev_u32 v{t+3}, 7, v{t+2}", f"v_min_u32 v{t+2}, v{t+2}, v{t+3}", f"v_lshlrev_b32 v{t+2}, 1, v{t+2}",
          f"v_add3_u32 v{t+3}, v1, s{sMODE}, -7", f"v_subrev_u32 v{t+4}, 6, v{t+3}", f"v_min_u32 v{t+3}, v{t+3}, v{t+4}", f"v_lshl_or_b32 v{t+3}, v{t+3}, 1, 1",
          "v_cmp_gt_u32 vcc, 7, v1|s_nop 1|" + f"v_cndmask_b32 v{t+2}, v{t+3}, v{t+2}, vcc",
          f"v_mul_u32_u24 v{t+4}, {BLKW}, v{t+2}", f"v_lshlrev_b32 v{t+5}, 12, v{t+2}",
          f"v_lshl_add_u32 v{vXL}, v1, 4, s{sBASE}"]
    D1 += [f"v_add_u32 v{vTR+2+t_}, 0x10000, v{vTR+t_}" for t_ in range(2)] + [f"v_add_u32 v{vTR+4+t_}, 0x20000, v{vTR+t_}" for t_ in range(2)]
    D1 += [f"v_readlane_b32 s{sBW+q}, v{Y+20+q//13}, {q % 13}" for q in range(26)]
    DEFER.extend(D1)
    A("s_nop 0")
    A(f"s_mov_b32 s{sT0W}, s42")
    for n in range(1, 13): A(f"v_readlane_b32 s{sT0W+n}, v{t+1}, {n}")
    for n in range(1, 13): A(f"v_readlane_b32 s{sT0X+n}, v{t}, {n}")
    A(f"buffer_load_dwordx4 v{vXS+3}, s[20:23], s{sT0X} offen offset:3072 lds")
    A(f"s_add_u32 m0, s{sW1K}, {PAGE}"); A("s_nop 0")
    A(f"buffer_load_dwordx4 v{vW+2}, s[16:19], s42 offen lds")
    A("s_lshl_b32 s45, s45, 9"); A(f"s_add_u32 s45, s45, {MISC}")
    A(f"v_lshl_add_u32 v{Y+4}, v1, 3, s45")
    A(f"s_mov_b32 s{sOWN}, s44")
    A("s_lshl_b32 s44, s43, 7"); A(f"s_add_u32 s44, s44, {FLAG_BASE}")
    A(f"v_lshl_add_u32 v{vFLAG}, v3, 3, s44")
    A(f"v_lshlrev_b32 v{vBIAS}, 4, v7"); A(f"v_add_u32 v{vBIAS}, {MISC}, v{vBIAS}")
    A(f"s_lshl_b32 s45, s{sJ}, 3"); A("s_add_u32 s45, s45, s44")
    A("v_mov_b32 v5, 0x80000000"); A("v_mov_b32 v6, s45")
    A("v_cmp_eq_u32 vcc, 0, v1")
    A("s_nop 0")
    A("v_and_b32 v2, 31, v1")
    A(f"v_cndmask_b32 v{vFST}, v5, v6, vcc")
    A(f"s_add_u32 s42, s42, 128"); A(f"s_cmp_eq_u32 s{sJ}, 6"); A(f"s_cselect_b32 s42, s{sT0W+1}, s42")
    for v in (2, 3):
        A(f"s_add_u32 m0, s{sW1K}, {v*PAGE}"); A("s_nop 0")
        A(f"buffer_load_dwordx4 v{vW+2*(v-2)}, s[16:19], s42 offen lds")
    A(f"v_bfe_u32 v{vZ}, v1, 1, 3"); A(f"v_lshl_add_u32 v2, v2, 7, s{sXS}")
    for s4 in range(4):
        A(f"v_add_u32 v6, {2*s4}, v7"); A(f"v_xor_b32 v6, v6, v{vZ}"); A(f"v_lshl_add_u32 v{vXR+s4}, v6, 4, v2")
    A(f"v_lshl_add_u32 v{vCB}, v7, 3, v2")
    A(f"s_add_u32 m0, s{sXS}, {PAGE}")
    A("v_bfe_u32 v3, v1, 2, 2")
    for sp in range(2): A(f"buffer_load_dwordx4 v{vXS+sp}, s[20:23], s{sT0X+1} offen offset:{1024*sp} lds")
    A("v_lshl_add_u32 v4, v7, 2, v3"); A("v_lshlrev_b32 v4, 7, v4")
    A("v_bfe_u32 v6, v1, 4, 1"); A("v_lshl_add_u32 v4, v6, 5, v4")
    A("v_and_b32 v6, 3, v1"); A("v_lshl_add_u32 v4, v6, 3, v4")
    A("v_lshrrev_b32 v3, 1, v3")
    for sp in range(2, 4): A(f"buffer_load_dwordx4 v{vXS+sp}, s[20:23], s{sT0X+1} offen offset:{1024*sp} lds")
    for t_ in range(2):
        A(f"v_xor_b32 v6, {t_}, v3"); A(f"v_lshl_add_u32 v{vTR+t_}, v6, 6, v4")
    if not P.HE:
        A("v_min_u32 v5, 5, v1"); A("v_lshl_add_u32 v5, v5, 14, s44")
    A(f"s_cmp_eq_u32 s{sWV}, 0"); A("s_cselect_b32 s45, 1.0, 0")
    A(f"s_getreg_b32 s{sHEL}, hwreg(HW_REG_XCC_ID, 0, 4)")
    A(f"s_mov_b32 s{sBASE}, s46")
    A("s_mov_b32 s46, 0x40000")
    if not P.HE: A(f"buffer_load_dwordx2 v[{Y+24}:{Y+25}], v5, s[24:27], 0 offen sc1")
    A(f"s_cmp_eq_u32 s{sJ}, 6"); A("s_cbranch_scc1 L_m6")
    t1, n1 = gen_member(False)
    t2, n2 = gen_member(True)
    T.append(t1); T.append(t2)
    T.append(gen_helper())
    A("L_end:"); A("s_endpgm")
    A('.section .rodata,"a"'); A(".p2align 6")
    A(f""".amdhsa_kernel {k}
  .amdhsa_next_free_vgpr 488
  .amdhsa_next_free_sgpr 102
  .amdhsa_accum_offset 256
  .amdhsa_group_segment_fixed_size 0
  .amdhsa_kernarg_size 48
  .amdhsa_user_sgpr_count 2
  .amdhsa_user_sgpr_kernarg_segment_ptr 1
  .amdhsa_system_sgpr_workgroup_id_x 1
  .amdhsa_float_denorm_mode_32 3
.end_amdhsa_kernel
""")
    H = [f"; @launch grid=(256,1,1) block=(256,1,1) lds={LDS_BYTES}", HEADER]
    if P.stamps:
        H.append("; @st32" + (" @rt" if P.rt else ""))
        H.append("; @names_reg " + " ".join(x.replace(" ", "") for x in n1))
        H.append("; @names_m6 " + " ".join(x.replace(" ", "") for x in n2))
    open(out, "w").write("\n".join(H + T))

main()
```
